```python
import torch

def _softmax(x, axis=-1):
    return torch.softmax(x, dim=axis)
def _gelu(x):
    return torch.nn.functional.gelu(x, approximate="tanh")
def _silu(x):
    return torch.nn.functional.silu(x)
def _sigmoid(x):
    return torch.sigmoid(x)
def _layernorm(x, axis=-1, eps=1e-5):
    m = x.mean(dim=axis, keepdim=True)
    v = x.var(dim=axis, keepdim=True, unbiased=False)
    return (x - m) / torch.sqrt(v + eps)
def _scatter_add(tgt, idx, src, axis=0):
    return tgt.clone().index_add_(axis, idx, src)
def _segment_sum(src, seg, n):
    out = torch.zeros((n,) + src.shape[1:], dtype=src.dtype)
    return out.index_add_(0, seg, src)
def _pad(x, pw):
    flat = tuple(v for pair in reversed(pw) for v in pair)
    return torch.nn.functional.pad(x, flat)

kernel_name = 'sequential_preLN__spectral_fnet__glu_gated_glu__prompt'

def setup_inputs():

    _w = (lambda a: (lambda t: t.to(torch.bfloat16) if t.is_floating_point() else t)(torch.as_tensor(a)))
    def _A_setup():
        B, S, D = 1, 2048, 512
        ns = torch.arange(S)[:, None] * torch.arange(S)[None, :]
        nd = torch.arange(D)[:, None] * torch.arange(D)[None, :]
        Ws_re = torch.cos(-2.0 * torch.pi * ns / S).to(float)
        Ws_im = torch.sin(-2.0 * torch.pi * ns / S).to(float)
        Wd_re = torch.cos(-2.0 * torch.pi * nd / D).to(float)
        Wd_im = torch.sin(-2.0 * torch.pi * nd / D).to(float)
        return {
            "x": _w((lambda *s: torch.randn(*s, dtype=torch.bfloat16) * 0.05)(B, S, D)),
            "dft_seq_re": _w(Ws_re),
            "dft_seq_im": _w(Ws_im),
            "dft_hid_re": _w(Wd_re),
            "dft_hid_im": _w(Wd_im),
        }
    _A_in = _A_setup()

    def _B_setup():
        B, S, D, F = 1, 2048, 512, 1792
        return {
            "x": _w((lambda *s: torch.randn(*s, dtype=torch.bfloat16) * 0.05)(B, S, D)),
            "w_gate": _w((lambda *s: torch.randn(*s, dtype=torch.bfloat16) * 1.6)(D, F)),
            "w_up": _w((lambda *s: torch.randn(*s, dtype=torch.bfloat16) * 0.8)(D, F)),
            "w_down": _w((lambda *s: torch.randn(*s, dtype=torch.bfloat16) * 0.8)(F, D)),
        }
    _B_in = _B_setup()

    return {
        "A_x": _A_in["x"],
        "A_dft_seq_re": _A_in["dft_seq_re"],
        "A_dft_seq_im": _A_in["dft_seq_im"],
        "A_dft_hid_re": _A_in["dft_hid_re"],
        "A_dft_hid_im": _A_in["dft_hid_im"],
        "B_x": _B_in["x"],
        "B_w_gate": _B_in["w_gate"],
        "B_w_up": _B_in["w_up"],
        "B_w_down": _B_in["w_down"],
    }

def reference(A_x, A_dft_seq_re, A_dft_seq_im, A_dft_hid_re, A_dft_hid_im, B_x, B_w_gate, B_w_up, B_w_down):
    def _A_ref(x, dft_seq_re, dft_seq_im, dft_hid_re, dft_hid_im):
        a = torch.einsum("bsd,ed->bse", x, dft_hid_re)
        b = torch.einsum("bsd,ed->bse", x, dft_hid_im)
        y = torch.einsum("ts,bse->bte", dft_seq_re, a) - torch.einsum("ts,bse->bte", dft_seq_im, b)
        return y

    def _B_ref(x, w_gate, w_up, w_down):
        g = torch.einsum("bsd,df->bsf", x, w_gate)
        u = torch.einsum("bsd,df->bsf", x, w_up)
        h = _sigmoid(g) * u
        return torch.einsum("bsf,fd->bsd", h, w_down)

    x = A_x
    h = x + _A_ref(_layernorm(x, axis=-1), A_dft_seq_re, A_dft_seq_im, A_dft_hid_re, A_dft_hid_im)
    h2 = h + _B_ref(_layernorm(h, axis=-1), B_w_gate, B_w_up, B_w_down)
    return h2
```

```python
import re

TRANS = ("v_exp_f32", "v_log_f32", "v_rcp_f32", "v_rsq_f32", "v_sqrt_f32", "v_sin_f32", "v_cos_f32")

def parse_reg(tok):
    tok = tok.strip()
    tok = tok.lstrip('-')
    if tok.startswith('abs(') or tok.startswith('|'):
        tok = tok.replace('abs(', '').replace(')', '').replace('|', '')
    m = re.fullmatch(r'([vas])(\d+)', tok)
    if m:
        return [(m.group(1), int(m.group(2)))]
    m = re.fullmatch(r'([vas])\[(\d+):(\d+)\]', tok)
    if m:
        return [(m.group(1), i) for i in range(int(m.group(2)), int(m.group(3)) + 1)]
    if tok == 'vcc':
        return [('s', 106), ('s', 107)]
    if tok == 'vcc_lo':
        return [('s', 106)]
    if tok == 'vcc_hi':
        return [('s', 107)]
    if tok == 'exec':
        return [('s', 126), ('s', 127)]
    if tok == 'm0':
        return [('s', 124)]
    return []

class Ins:
    def __init__(self, text):
        self.text = text
        t = text.split(';')[0].strip()
        self.is_label = t.endswith(':')
        self.is_dir = t.startswith('.')
        self.op = ''
        self.w = []; self.r = []
        self.srcC = []; self.srcAB = []
        self.kind = 'other'
        self.nops = 1
        if not t or self.is_label or self.is_dir:
            self.kind = 'none'; self.nops = 0
            return
        parts = t.split(None, 1)
        op = parts[0]; self.op = op
        rest = parts[1] if len(parts) > 1 else ''
        ops = [o.strip() for o in rest.split(',')] if rest else []
        mods = ''
        if ops:
            l = ops[-1].split()
            if l:
                ops[-1] = l[0]; mods = ' '.join(l[1:])
        self.mods = mods
        regs = [parse_reg(o) for o in ops]
        self.dpp = ('row_' in mods) or ('quad_perm' in mods) or op.endswith('_dpp') or ('wave_' in mods)
        if op == 's_nop':
            self.kind = 'nop'; self.nops = int(ops[0], 0) + 1
        elif op.startswith('v_mfma'):
            self.kind = 'mfma'
            self.w = regs[0]; self.srcAB = regs[1] + regs[2]; self.srcC = regs[3]
            self.r = self.srcAB + self.srcC
            self.passes = 8 if '32x32' in op else 4
        elif op.startswith('v_'):
            self.kind = 'valu'
            base = op.replace('_e32', '').replace('_e64', '').replace('_dpp', '').replace('_sdwa', '')
            self.base = base
            if base.startswith('v_cmp'):
                self.w = regs[0]; self.r = sum(regs[1:], [])
                if base.startswith('v_cmpx'):
                    self.w = self.w + [('s', 126), ('s', 127)]
            elif base.startswith('v_permlane') and 'swap' in base:
                self.w = regs[0] + regs[1]; self.r = regs[0] + regs[1]
            elif base in ('v_add_co_u32', 'v_sub_co_u32', 'v_addc_co_u32', 'v_subb_co_u32', 'v_mad_u64_u32'):
                self.w = regs[0] + regs[1]; self.r = sum(regs[2:], [])
            elif base in ('v_fmac_f32', 'v_dot2c_f32_bf16', 'v_pk_fmac_f16', 'v_writelane_b32'):
                self.w = regs[0]; self.r = sum(regs, [])
            elif base == 'v_nop':
                pass
            else:
                self.w = regs[0]; self.r = sum(regs[1:], [])
                if base == 'v_cndmask_b32' and len(ops) == 3:
                    self.r = self.r + [('s', 106), ('s', 107)]
                if self.dpp:
                    self.r = self.r + regs[0]
            self.trans = base in TRANS
            self.dl = base.startswith('v_dot')
        elif op.startswith('ds_'):
            self.kind = 'ds'
            if op.startswith('ds_write') :
                self.r = sum(regs, [])
            else:
                self.w = regs[0]; self.r = sum(regs[1:], [])
        elif op.startswith('global_') or op.startswith('buffer_') or op.startswith('flat_'):
            self.kind = 'vmem'
            lds = ('_lds_' in op) or (' lds' in (' ' + mods))
            self.lds = lds
            if 'store' in op:
                self.r = sum(regs, [])
                self.store_data = regs[1] if op.startswith('global_') else regs[0]
            elif 'atomic' in op:
                if 'sc0' in mods:
                    self.w = regs[0]; self.r = sum(regs[1:], [])
                else:
                    self.r = sum(regs, [])
            elif op in ('buffer_wbl2', 'buffer_inv'):
                pass
            elif lds:
                self.r = sum(regs, []) + [('s', 124)]
            else:
                self.w = regs[0]; self.r = sum(regs[1:], [])
        elif op.startswith('s_'):
            self.kind = 'salu'
            if op.startswith('s_cmp') or op.startswith('s_cbranch') or op in ('s_branch', 's_barrier', 's_waitcnt', 's_endpgm', 's_setprio', 's_sleep', 's_bitcmp0_b32', 's_bitcmp1_b32'):
                self.r = sum(regs, [])
            elif op.startswith('s_load') or op.startswith('s_memtime') or op.startswith('s_memrealtime'):
                self.kind = 'smem'; self.w = regs[0]; self.r = sum(regs[1:], [])
            else:
                self.w = regs[0] if regs else []; self.r = sum(regs[1:], [])
                if 'saveexec' in op:
                    self.w = self.w + [('s', 126), ('s', 127)]
        else:
            raise ValueError("unknown instr: " + text)

def need(p, c):
    n = 0
    pw = set(p.w); cr = set(c.r); cw = set(c.w)
    if p.kind == 'valu':
        vw = {x for x in pw if x[0] in 'va'}
        sw = {x for x in pw if x[0] == 's'}
        if c.kind == 'mfma' and vw & cr:
            n = max(n, 2 if not p.dl else 3)
        if c.kind == 'valu':
            if p.trans and not c.trans and vw & cr: n = max(n, 1)
            if p.trans and c.trans and vw & cr: n = max(n, 1)
            if c.dpp and vw & cr: n = max(n, 2)
            if c.base.startswith('v_permlane') and vw & cr: n = max(n, 2)
            if c.base in ('v_readlane_b32', 'v_readfirstlane_b32') and vw & cr: n = max(n, 1)
            if sw & cr:
                n = max(n, 4 if c.base in ('v_readlane_b32', 'v_writelane_b32') else 2)
            if p.dl:
                if c.base == p.base:
                    ab = set(c.r) - set(c.w) if c.base == 'v_dot2c_f32_bf16' else set(c.r[:-1])
                    if vw & ab: n = max(n, 3)
                elif vw & (cr | cw): n = max(n, 3)
            if ('s', 126) in sw:
                n = max(n, 5 if c.dpp else 4)
        if c.kind in ('vmem', 'ds') and p.dl and vw & cr: n = max(n, 3)
        if c.kind in ('vmem','ds') and p.trans and vw & cr: n = max(n, 1)
        if c.kind == 'vmem' and sw & cr: n = max(n, 5)
        if c.kind in ('salu', 'smem') and sw & cr: n = max(n, 1)
        if c.kind == 'mfma' and ('s', 126) in sw: n = max(n, 4)
    elif p.kind == 'mfma':
        P = p.passes
        if c.kind == 'mfma':
            if pw & set(c.srcAB): n = max(n, {4: 8, 8: 12}[P])
            if pw & set(c.srcC):
                if list(p.w) == list(c.srcC) and c.passes == P: n = max(n, 0)
                else: n = max(n, {4: 6, 8: 10}[P])
            if pw & cw and not (pw & set(c.srcC)):
                n = max(n, {4: 6, 8: 10}[P])
        else:
            if pw & (cr | cw): n = max(n, {4: 8, 8: 12}[P])
            if c.kind == 'valu' and set(p.srcC) & cw: n = max(n, {4: 3, 8: 7}[P])
            if c.kind in ('vmem', 'ds') and set(p.srcC) & cw: n = max(n, {4: 3, 8: 7}[P])
    elif p.kind == 'vmem':
        if hasattr(p, 'store_data') and len(p.store_data) >= 3 and set(p.store_data) & cw:
            n = max(n, 2)
    elif p.kind == 'salu':
        if ('s', 124) in pw and ((c.kind == 'vmem' and getattr(c, 'lds', False)) or c.op.startswith('s_movrel')):
            n = max(n, 1)
    return n

class Asm:
    def __init__(self):
        self.lines = []
        self.region = 0
        self.nreg = 0
    def __call__(self, text):
        for l in text.strip('\n').split('\n'):
            l = l.strip()
            if l:
                self.lines.append((l, self.region))
    def cond_begin(self):
        self.nreg += 1; self.region = self.nreg
    def cond_end(self):
        self.region = 0
    def label(self, name):
        self.lines.append((name + ':', self.region))
    def finalize(self, window=24):
        out = []
        hist = []
        for l, reg in self.lines:
            ins = Ins(l); ins.region = reg
            if ins.kind == 'none':
                out.append(l); continue
            req = 0
            h = hist[-window*3:]
            for pi in range(len(h)-1, -1, -1):
                p = h[pi]
                n = need(p, ins)
                if n <= 0: continue
                dist = 0
                for x in h[pi+1:]:
                    if x.region == 0 or x.region == reg or x.region == p.region:
                        dist += x.nops
                if n - dist > req: req = n - dist
            while req > 0:
                k = min(req, 16)
                nop = Ins(f"s_nop {k-1}"); nop.region = reg
                out.append(f"  s_nop {k-1}"); hist.append(nop)
                req -= k
            out.append('  ' + l); hist.append(ins)
        return '\n'.join(out)

def vr(a, n=1):
    return f"v{a}" if n == 1 else f"v[{a}:{a+n-1}]"
def ar(a, n=1):
    return f"a{a}" if n == 1 else f"a[{a}:{a+n-1}]"
def sr(a, n=1):
    return f"s{a}" if n == 1 else f"s[{a}:{a+n-1}]"
```

```python
import sys
from asmlib import Asm, vr, ar, sr

WS_V   = 0
WS_MX  = 2 << 20
WS_RT  = (2 << 20) + (64 << 10)
WS_H   = 3 << 20
WS_WUP = 8 << 20
WS_WD  = 12 << 20
WS_HH  = 16 << 20

def f2u(f):
    import struct
    return struct.unpack('<I', struct.pack('<f', f))[0]
def hx(f):
    return "0x%08x" % f2u(f)

def kd(name, vgpr, accum, sgpr=96):
    return f"""
.amdhsa_kernel {name}
  .amdhsa_next_free_vgpr {vgpr}
  .amdhsa_next_free_sgpr {sgpr}
  .amdhsa_accum_offset {accum}
  .amdhsa_group_segment_fixed_size 0
  .amdhsa_kernarg_size 96
  .amdhsa_user_sgpr_count 2
  .amdhsa_user_sgpr_kernarg_segment_ptr 1
  .amdhsa_system_sgpr_workgroup_id_x 1
.end_amdhsa_kernel
"""

def header(name):
    return f".globl {name}\n.p2align 8\n.type {name},@function\n{name}:\n"

K1_LDS_F = 0
K1_LDS_AX = 32768
K1_LDS_ST = 40960
K1_LDS_HELP = 43008
K1_LDS = 43008 + 32768

def gen_k1():
    a = Asm()
    X = lambda rho, k: 128 + (rho*16 + k)*4
    CS = lambda t, cs, k: 64 + ((t*2 + cs)*4 + k)*4
    G = lambda rho, tile: 48 + (rho*2 + tile)*4
    FB = lambda slot, tile: 32 + (slot*2 + tile)*4
    a(f"""
    s_cmp_ge_u32 s2, 256
    s_cbranch_scc1 K1_done
    s_load_dwordx2 s[4:5], s[0:1], 0
    s_load_dwordx2 s[6:7], s[0:1], 88
    s_load_dwordx4 s[8:11], s[0:1], 48
    s_load_dwordx2 s[12:13], s[0:1], 64
    v_lshrrev_b32 v1, 6, v0
    v_and_b32 v2, 63, v0
    v_readfirstlane_b32 s14, v1
    v_and_b32 v3, 15, v2
    v_lshrrev_b32 v4, 4, v2
    s_and_b32 s15, s2, 7
    s_lshl_b32 s15, s15, 1
    s_bfe_u32 s16, s2, 0x10003
    s_or_b32 s15, s15, s16
    s_lshr_b32 s16, s2, 4
    s_cmp_ge_u32 s14, 4
    s_cbranch_scc1 K1_helper
    """)
    a(f"""
    v_lshrrev_b32 v5, 2, v3
    v_lshlrev_b32 v5, 3, v5
    v_and_b32 v6, 3, v3
    v_add_u32 v5, v5, v6
    s_lshl_b32 s17, s14, 5
    v_add_u32 v5, s17, v5            ; s1 (rho=0)
    v_lshlrev_b32 v6, 4, v5
    v_add_u32 v6, s15, v6            ; s
    v_lshlrev_b32 v7, 10, v6
    v_lshl_add_u32 v7, v4, 4, v7
    v_add_u32 v8, 0x10000, v7
    s_waitcnt lgkmcnt(0)
    """)
    for k in range(16):
        a(f"global_load_dwordx4 {vr(X(0,k),4)}, v7, s[4:5] offset:{64*k}")
        a(f"global_load_dwordx4 {vr(X(1,k),4)}, v8, s[4:5] offset:{64*k}")
    a(f"""
    s_lshl_b32 s17, s16, 4
    s_add_u32 s17, s17, 1
    v_add_u32 v9, s17, v3            ; e
    v_cvt_f32_u32 v10, v9
    v_mul_f32 v10, {hx(-1.0/512)}, v10   ; fe = -e/512
    v_and_b32 v11, 1, v9
    v_sub_u32 v11, 0, v11
    v_and_b32 v11, 0x80008000, v11
    s_lshl_b32 s17, s14, 6           ; 64 w = 32*(2w)
    v_lshlrev_b32 v12, 3, v4
    v_add_u32 v12, s17, v12          ; d0 = 64w + 8q
    v_cvt_f32_u32 v12, v12
    v_mul_f32 v12, v10, v12
    v_lshlrev_b32 v13, 4, v2         ; lane*16
    s_lshl_b32 s17, s14, 12
    v_add_u32 v14, s17, v13
    s_cmp_eq_u32 s16, 15
    s_cselect_b32 s18, 0x8000, 0
    s_cmp_eq_u32 s14, 0
    s_cselect_b32 s18, s18, 0
    s_mov_b32 s19, 0
    v_mov_b32 v15, 0x3f80
    """)
    for kk in range(2):
        if kk == 1:
            a(f"v_fma_f32 v12, v10, s20, v12")
        for j in range(8):
            a(f"v_cos_f32 v{16+j}, v12")
            a(f"v_sin_f32 v{24+j}, v12")
            if j < 7:
                a(f"v_add_f32 v12, v10, v12")
        for jj in range(4):
            a(f"v_cvt_pk_bf16_f32 v{32+jj}, v{16+2*jj}, v{17+2*jj}")
            a(f"v_cvt_pk_bf16_f32 v{36+jj}, v{24+2*jj}, v{25+2*jj}")
        for jj in range(8):
            a(f"v_xor_b32 v{40+jj}, v11, v{32+jj}")
        if kk == 0:
            a(f"v_cndmask_b32 v36, v36, v15, s[18:19]")
        a(f"ds_write_b128 v14, v[32:35] offset:{kk*2048}")
        a(f"ds_write_b128 v14, v[36:39] offset:{kk*2048+1024}")
        a(f"ds_write_b128 v14, v[40:43] offset:{kk*2048+16384}")
        a(f"ds_write_b128 v14, v[44:47] offset:{kk*2048+16384+1024}")
    a(f"""
    s_lshl_b32 s17, s14, 4
    v_add_u32 v9, s17, v3            ; t1
    v_cvt_f32_u32 v10, v9
    v_mul_f32 v10, {hx(1.0/128)}, v10    ; ft
    v_lshlrev_b32 v12, 3, v4
    v_cvt_f32_u32 v12, v12
    v_mul_f32 v12, v10, v12          ; phase (k'=0,j=0)
    v_mov_b32 v11, 0x80000000
    """)
    for k in range(4):
        if k > 0:
            a(f"v_fma_f32 v12, v10, s20, v12")
        for j in range(8):
            a(f"v_cos_f32 v{16+j}, v12")
            a(f"v_sin_f32 v{24+j}, v12")
            if j < 7:
                a(f"v_add_f32 v12, v10, v12")
        for jj in range(4):
            a(f"v_cvt_pk_bf16_f32 v{CS(0,0,k)+jj}, v{16+2*jj}, v{17+2*jj}")
            a(f"v_cvt_pk_bf16_f32 v{CS(0,1,k)+jj}, v{24+2*jj}, v{25+2*jj}")
        for jj in range(4):
            a(f"v_xor_b32 v{CS(1,0,k)+jj}, v11, v{CS(0,0,k)+jj}")
            a(f"v_xor_b32 v{CS(1,1,k)+jj}, v11, v{CS(0,1,k)+jj}")
    for r in range(16, 24):
        a(f"v_mov_b32 v{r}, 0")
    a("v_mov_b32 v24, 0x3f803f80")
    a("s_waitcnt lgkmcnt(0)")
    a("s_barrier")
    def fread(k):
        s = k & 1
        a(f"ds_read_b128 {vr(FB(s,0),4)}, v13 offset:{(k*2)*1024}")
        a(f"ds_read_b128 {vr(FB(s,1),4)}, v13 offset:{(k*2+1)*1024}")
    fread(0)
    for k in range(16):
        if k < 15:
            fread(k+1)
            a(f"s_waitcnt vmcnt({30-2*k}) lgkmcnt(2)")
        else:
            a(f"s_waitcnt vmcnt(0) lgkmcnt(0)")
        s = k & 1
        idx = 0
        for rho in range(2):
            for tile in range(2):
                c = "0" if k == 0 else vr(G(rho,tile),4)
                a(f"v_mfma_f32_16x16x32_bf16 {vr(G(rho,tile),4)}, {vr(X(rho,k),4)}, {vr(FB(s,tile),4)}, {c}")
                for jj in range(2):
                    r = X(rho,k) + tile*2 + jj
                    a(f"v_dot2c_f32_bf16 v{16+rho*4+jj}, v{r}, v24")
                    a(f"v_dot2c_f32_bf16 v{18+rho*4+jj}, v{r}, v{r}")
    a("""
    v_add_f32 v16, v16, v17
    v_add_f32 v18, v18, v19
    v_add_f32 v20, v20, v21
    v_add_f32 v22, v22, v23
    """)
    for r in (16, 18, 20, 22):
        a(f"v_mov_b32 v{r+1}, v{r}")
    for r in (16, 18, 20, 22):
        a(f"v_permlane32_swap_b32 v{r}, v{r+1}")
    for r in (16, 18, 20, 22):
        a(f"v_add_f32 v{r}, v{r}, v{r+1}")
    for r in (16, 18, 20, 22):
        a(f"v_mov_b32 v{r+1}, v{r}")
    for r in (16, 18, 20, 22):
        a(f"v_permlane16_swap_b32 v{r}, v{r+1}")
    for r in (16, 18, 20, 22):
        a(f"v_add_f32 v{r}, v{r}, v{r+1}")
    a(f"s_mov_b32 s21, {hx(1.0/512)}")
    a(f"v_mov_b32 v25, {hx(1e-5)}")
    for rho in range(2):
        sm, sq = 16+rho*4, 18+rho*4
        a(f"""
        v_mul_f32 v{sm}, s21, v{sm}
        v_fma_f32 v{sq}, v{sq}, s21, v25
        v_fma_f32 v{sq}, -v{sm}, v{sm}, v{sq}
        v_rsq_f32 v{sq}, v{sq}
        v_mul_f32 v{sm+1}, v{sm}, v{sq}
        """)
    a(f"""
    s_lshl_b32 s17, s14, 8
    s_add_u32 s17, s17, {K1_LDS_ST}
    v_lshl_add_u32 v26, v3, 2, s17
    v_lshl_add_u32 v27, v4, 4, s17
    ds_write_b32 v26, v18
    ds_write_b32 v26, v22 offset:64
    ds_write_b32 v26, v17 offset:128
    ds_write_b32 v26, v21 offset:192
    s_waitcnt lgkmcnt(0)
    ds_read_b128 v[32:35], v27
    ds_read_b128 v[36:39], v27 offset:64
    ds_read_b128 v[40:43], v27 offset:128
    ds_read_b128 v[44:47], v27 offset:192
    """)
    a(f"""
    s_cmp_lg_u32 s16, 0
    s_cbranch_scc1 K1_nomx
    v_lshlrev_b32 v28, 2, v6
    v_add_u32 v28, {WS_MX}, v28
    s_mov_b64 s[22:23], exec
    s_mov_b64 exec, 0xffff
    global_store_dword v28, v16, s[6:7]
    global_store_dword v28, v20, s[6:7] offset:256
    s_mov_b64 exec, s[22:23]
    K1_nomx:
    """)
    a(f"""
    s_cmp_eq_u32 s16, 15
    s_cselect_b32 s18, 0x80008000, 0
    s_cselect_b32 s19, 0x80008000, 0
    v_mov_b32 v29, 0
    v_cndmask_b32 v29, v29, 1.0, s[18:19]
    s_waitcnt lgkmcnt(0)
    """)
    for rho in range(2):
        for r in range(4):
            a(f"v_mul_f32 v{G(rho,0)+r}, v{G(rho,0)+r}, v{32+rho*4+r}")
            a(f"v_mul_f32 v{G(rho,1)+r}, v{G(rho,1)+r}, v{32+rho*4+r}")
            a(f"v_fma_f32 v{G(rho,1)+r}, -v{40+rho*4+r}, v29, v{G(rho,1)+r}")
    for tile in range(2):
        for rho in range(2):
            a(f"v_cvt_pk_bf16_f32 v{128+tile*4+rho*2}, v{G(rho,tile)}, v{G(rho,tile)+1}")
            a(f"v_cvt_pk_bf16_f32 v{128+tile*4+rho*2+1}, v{G(rho,tile)+2}, v{G(rho,tile)+3}")
    a(f"""
    s_lshl_b32 s17, s14, 11
    v_add_u32 v30, s17, v13
    ds_write_b128 v30, v[128:131] offset:{K1_LDS_AX}
    ds_write_b128 v30, v[132:135] offset:{K1_LDS_AX+1024}
    s_waitcnt lgkmcnt(0)
    s_barrier
    """)
    AR = lambda k: 144 + k*4
    AI = lambda k: 160 + k*4
    NR = lambda k: 176 + k*4
    for k in range(4):
        a(f"ds_read_b128 {vr(AR(k),4)}, v13 offset:{K1_LDS_AX + k*2048}")
        a(f"ds_read_b128 {vr(AI(k),4)}, v13 offset:{K1_LDS_AX + k*2048 + 1024}")
    a(f"""
    v_lshlrev_b32 v31, 14, v9
    s_lshl_b32 s17, s16, 10
    s_lshl_b32 s18, s15, 6
    s_add_u32 s17, s17, s18
    v_add_u32 v31, s17, v31
    v_lshl_add_u32 v31, v4, 4, v31
    v_add_u32 v30, 0x100000, v31
    v_mov_b32 v11, 0x80008000
    """)
    VA = lambda t, c: 192 + (t*2 + c)*4
    for k in range(4):
        a(f"s_waitcnt lgkmcnt({6-2*k})")
        for jj in range(4):
            a(f"v_xor_b32 v{NR(k)+jj}, v11, v{AR(k)+jj}")
        for t in range(2):
            c0 = "0" if k == 0 else vr(VA(t,0),4)
            c1 = "0" if k == 0 else vr(VA(t,1),4)
            a(f"v_mfma_f32_16x16x32_bf16 {vr(VA(t,0),4)}, {vr(AR(k),4)}, {vr(CS(t,0,k),4)}, {c0}")
            a(f"v_mfma_f32_16x16x32_bf16 {vr(VA(t,1),4)}, {vr(AI(k),4)}, {vr(CS(t,0,k),4)}, {c1}")
        for t in range(2):
            a(f"v_mfma_f32_16x16x32_bf16 {vr(VA(t,0),4)}, {vr(AI(k),4)}, {vr(CS(t,1,k),4)}, {vr(VA(t,0),4)}")
            a(f"v_mfma_f32_16x16x32_bf16 {vr(VA(t,1),4)}, {vr(NR(k),4)}, {vr(CS(t,1,k),4)}, {vr(VA(t,1),4)}")
    for t in range(2):
        o = 208 + t*4
        a(f"v_cvt_pk_bf16_f32 v{o}, v{VA(t,0)}, v{VA(t,0)+1}")
        a(f"v_cvt_pk_bf16_f32 v{o+1}, v{VA(t,0)+2}, v{VA(t,0)+3}")
        a(f"v_cvt_pk_bf16_f32 v{o+2}, v{VA(t,1)}, v{VA(t,1)+1}")
        a(f"v_cvt_pk_bf16_f32 v{o+3}, v{VA(t,1)+2}, v{VA(t,1)+3}")
        a(f"global_store_dwordx4 v{31 if t == 0 else 30}, {vr(o,4)}, s[6:7]")
    a("s_endpgm")
    a("K1_helper:")
    a(f"""
    s_sub_u32 s14, s14, 4
    s_lshl_b32 s17, s2, 2
    s_add_u32 s17, s17, s14
    s_lshl_b32 s24, s14, 13
    s_add_u32 s24, s24, {K1_LDS_HELP}
    v_lshrrev_b32 v5, 3, v2          ; lane>>3
    v_and_b32 v6, 7, v2
    v_lshlrev_b32 v6, 4, v6          ; piece*16
    v_lshlrev_b32 v13, 4, v2         ; lane*16
    v_lshrrev_b32 v7, 2, v3
    v_lshl_add_u32 v7, v4, 2, v7
    v_lshlrev_b32 v7, 7, v7
    v_and_b32 v8, 3, v3
    v_lshl_add_u32 v7, v8, 3, v7
    v_add_u32 v7, s24, v7
    s_waitcnt lgkmcnt(0)
    """)
    for u in range(2):
        b = 30 + 10*u
        if u == 1:
            a(f"""
            s_add_u32 s17, s17, 1024
            s_cmp_ge_u32 s17, 1344
            s_cbranch_scc1 K1_h_issued
            """)
        a(f"""
        s_cmp_ge_u32 s17, 896
        s_cbranch_scc1 K1_h_down{u}
        s_and_b32 s25, s17, 1
        s_bfe_u32 s26, s17, 0x40001
        s_lshr_b32 s27, s17, 5
        s_cmp_eq_u32 s25, 0
        s_cselect_b32 s{b}, s8, s10
        s_cselect_b32 s{b+1}, s9, s11
        s_and_b32 s28, s26, 7
        s_lshl_b32 s28, s28, 5           ; 32 i
        s_add_u32 s29, s28, 1
        s_sub_u32 s28, 511, s28
        s_cmp_lt_u32 s26, 8
        s_cselect_b32 s{b+2}, s29, s28   ; rbase
        s_cselect_b32 s{b+3}, 1, -1      ; rsign
        s_cselect_b32 s{b+8}, -1, 256
        s_mov_b32 s{b+4}, 3584
        s_lshl_b32 s{b+5}, s27, 7
        s_lshl_b32 s28, s27, 6
        s_add_u32 s28, s28, s26
        s_lshl_b32 s28, s28, 1
        s_add_u32 s28, s28, s25
        s_lshl_b32 s28, s28, 10
        s_add_u32 s{b+6}, s28, {WS_WUP}
        s_mov_b32 s{b+7}, 32768
        s_branch K1_h_go{u}
        K1_h_down{u}:
        s_sub_u32 s25, s17, 896
        s_lshr_b32 s26, s25, 3           ; k3
        s_and_b32 s27, s25, 7            ; cb
        s_mov_b32 s{b}, s12
        s_mov_b32 s{b+1}, s13
        s_lshl_b32 s{b+2}, s26, 5
        s_mov_b32 s{b+3}, 1
        s_mov_b32 s{b+8}, -1
        s_mov_b32 s{b+4}, 1024
        s_lshl_b32 s{b+5}, s27, 7
        s_mul_i32 s28, s27, 224
        s_add_u32 s28, s28, s26
        s_lshl_b32 s28, s28, 10
        s_add_u32 s{b+6}, s28, {WS_WD}
        s_mov_b32 s{b+7}, {56*1024}
        K1_h_go{u}:
        """)
        for ins in range(4):
            a(f"""
            v_add_u32 v9, {8*ins}, v5
            v_mul_lo_u32 v9, v9, s{b+3}
            v_add_u32 v9, s{b+2}, v9           ; row
            v_cmp_ne_u32 vcc, s{b+8}, v9
            v_cndmask_b32 v9, 0, v9, vcc
            v_mul_lo_u32 v9, v9, s{b+4}
            v_add3_u32 v9, v9, s{b+5}, v6
            s_add_u32 m0, s24, {u*4096 + ins*1024}
            global_load_lds_dwordx4 v9, s[{b}:{b+1}]
            """)
    a("K1_h_issued:")
    a("s_barrier")
    a("s_waitcnt vmcnt(0)")
    for u in range(2):
        b = 30 + 10*u
        if u == 1:
            a(f"""
            s_cmp_ge_u32 s17, 1344
            s_cbranch_scc1 K1_done
            """)
        a(f"v_add_u32 v10, s{b+6}, v13")
        for ct in range(4):
            a(f"ds_read_b64_tr_b16 v[{16+ct*4}:{17+ct*4}], v7 offset:{u*4096 + ct*32}")
            a(f"ds_read_b64_tr_b16 v[{18+ct*4}:{19+ct*4}], v7 offset:{u*4096 + ct*32 + 2048}")
        for ct in range(4):
            a(f"s_waitcnt lgkmcnt({6-2*ct})")
            a(f"global_store_dwordx4 v10, v[{16+ct*4}:{19+ct*4}], s[6:7]")
            if ct < 3:
                a(f"v_add_u32 v10, s{b+7}, v10")
        if u == 0:
            a("s_nop 1")
    a("K1_done:")
    a("s_endpgm")
    txt = a.finalize()
    return txt

def build(which=("k1",)):
    out = []
    launches = []
    if "k1" in which:
        launches.append(f"; @launch kernel=k1_kernel grid=(256,1,1) block=(512,1,1) lds={K1_LDS}")
    out += launches
    out.append('.amdgcn_target "amdgcn-amd-amdhsa--gfx950"')
    out.append(".text")
    kds = []
    if "k1" in which:
        out.append(header("k1_kernel") + "  s_mov_b32 s20, 0x41c80000   ; 25.0\n" + gen_k1())
        kds.append(kd("k1_kernel", 256, 256))
    out.append('.section .rodata,"a"\n.p2align 6')
    out += [".p2align 6\n" + k for k in kds]
    return "\n".join(out) + "\n"

if __name__ == "__main__":
    open(sys.argv[1] if len(sys.argv) > 1 else "out.s", "w").write(build())
```

```python
from asmlib import Asm, vr, ar, sr
from gen import *
import math

K2_LDS = 163840
REG = 40960

def interleave(a, main, fill):
    nm = sum(1 for m in main if m.startswith('v_mfma'))
    fi = 0; seen = 0
    for m in main:
        a(m)
        if m.startswith('v_mfma'):
            seen += 1
            tgt = (len(fill) * seen + nm - 1) // nm if nm else len(fill)
            while fi < tgt:
                a(fill[fi]); fi += 1
    while fi < len(fill):
        a(fill[fi]); fi += 1

def gen_k2():
    a = Asm()
    H = lambda rho, k: 128 + (rho*16 + k)*4
    XF = lambda rho, k: (rho*16 + k)*4
    T = lambda rho, d: 32 + (rho*2 + d)*4
    SEL = lambda d, tb: 48 + (d*2 + tb)*4
    NEGM = lambda rho: 64 + rho*4
    ACC = lambda s, tb: 72 + (s*2 + tb)*4
    TP = lambda rho, d: 104 + (rho*2 + d)*4
    VA = lambda s, tb: 128 + (s*2 + tb)*4
    WF = lambda s, gu: 160 + (s*2 + gu)*4
    a(f"""
    s_cmp_ge_u32 s2, 256
    s_cbranch_scc1 K2_done
    s_load_dwordx2 s[4:5], s[0:1], 0
    s_load_dwordx2 s[6:7], s[0:1], 88
    v_lshrrev_b32 v1, 6, v0
    v_and_b32 v2, 63, v0
    v_readfirstlane_b32 s14, v1
    v_and_b32 v3, 15, v2
    v_lshrrev_b32 v4, 4, v2
    v_lshlrev_b32 v5, 4, v2          ; lane*16
    s_and_b32 s15, s2, 3
    s_lshl_b32 s15, s15, 2
    s_bfe_u32 s16, s2, 0x20003
    s_add_u32 s15, s15, s16          ; j
    s_bfe_u32 s16, s2, 0x10002
    s_lshl_b32 s16, s16, 3
    s_lshr_b32 s17, s2, 5
    s_add_u32 s16, s16, s17          ; n
    s_lshl_b32 s17, s15, 2
    s_add_u32 s17, s17, s14          ; pi = a0
    s_sub_u32 s18, 128, s17
    s_cmp_eq_u32 s17, 0
    s_cselect_b32 s18, 64, s18       ; a1
    s_cselect_b32 s19, 0, 16384
    s_cselect_b32 s20, 16384, 0
    s_mul_i32 s21, s14, {REG}
    s_lshl_b32 s22, s17, 14
    s_lshl_b32 s23, s18, 14
    v_add_u32 v6, s22, v5
    v_add_u32 v7, s23, v5
    v_lshlrev_b32 v8, 7, v3          ; 128*t2
    v_add_u32 v9, s18, v8            ; t (rho1)
    v_add_u32 v8, s17, v8            ; t (rho0)
    v_lshlrev_b32 v10, 10, v8
    v_lshlrev_b32 v11, 10, v9
    v_lshl_add_u32 v12, v4, 4, v10
    v_lshl_add_u32 v13, v4, 4, v11
    v_lshlrev_b32 v14, 2, v8
    v_lshlrev_b32 v15, 2, v9
    v_add_u32 v14, {WS_MX}, v14
    v_add_u32 v15, {WS_MX}, v15
    s_waitcnt lgkmcnt(0)
    s_add_u32 s24, s6, 4096
    s_addc_u32 s25, s7, 0
    s_add_u32 s26, s6, 8192
    s_addc_u32 s27, s7, 0
    s_add_u32 s28, s6, 12288
    s_addc_u32 s29, s7, 0
    """)
    bases = ["s[6:7]", "s[24:25]", "s[26:27]", "s[28:29]"]
    nv = [0]
    def vdma(g4, sel):
        a(f"s_add_u32 m0, s21, {sel*16384 + (g4 & ~3)*1024}")
        a(f"global_load_lds_dwordx4 v{6+sel}, {bases[g4>>2]} offset:{(g4&3)*1024}")
        nv[0] += 1
    vdma(15, 0); vdma(15, 1)
    a("global_load_dword v16, v14, s[6:7]"); a("global_load_dword v17, v15, s[6:7]")
    a("global_load_ushort v18, v10, s[4:5]"); a("global_load_ushort v19, v11, s[4:5]")
    nv[0] += 4
    mark_first = nv[0]
    mark_pair = []
    for i in range(8):
        for g4 in (2*i, 2*i+1):
            if g4 != 15:
                vdma(g4, 0); vdma(g4, 1)
        for rho in range(2):
            a(f"global_load_dwordx4 {ar(XF(rho,i),4)}, v{12+rho}, s[4:5] offset:{64*i+2}")
            a(f"global_load_dwordx4 {ar(XF(rho,8+i),4)}, v{12+rho}, s[4:5] offset:{960-64*i}")
            nv[0] += 2
        mark_pair.append(nv[0])
    a(f"""
    s_mul_i32 s30, s16, {7*32768}
    s_lshl_b32 s31, s14, 13
    s_add_u32 s30, s30, s31
    s_add_u32 s30, s30, {WS_WUP}
    v_add_u32 v24, s30, v5
    """)
    QB = [4, 0, 2, 1, 3, 4, 0]
    mark_w = {}
    def wdma(p):
        for k in range(8):
            a(f"s_add_u32 m0, s21, {QB[p]*8192 + (k & 4)*1024}")
            a(f"global_load_lds_dwordx4 v24, {bases[k>>2]} offset:{(k&3)*1024}")
            nv[0] += 1
        a(f"v_add_u32 v24, 0x8000, v24")
        mark_w[p] = nv[0]
    a(f"""
    s_mov_b32 s32, 0xffff0000
    s_mov_b32 s33, 0xffff0000
    v_lshlrev_b32 v25, 2, v4
    v_cvt_f32_u32 v25, v25           ; 4q
    v_mov_b32 v26, 0x80008000
    """)
    for rho in range(2):
        c, s_ = 72, 76
        a(f"""
        v_cvt_f32_u32 v27, v{8+rho}
        v_mul_f32 v27, {hx(1.0/2048)}, v27
        v_mul_f32 v28, v27, v25
        """)
        for r in range(4):
            a(f"v_cos_f32 v{c+r}, v28")
            a(f"v_sin_f32 v{s_+r}, v28")
            if r < 3: a("v_add_f32 v28, v27, v28")
        for r in range(8):
            a(f"v_mul_f32 v{80+r}, 0.5, v{72+r}")
        a(f"""
        v_cvt_pk_bf16_f32 v88, v72, v73
        v_cvt_pk_bf16_f32 v89, v74, v75      ; Pc
        v_cvt_pk_bf16_f32 v90, v76, v77
        v_cvt_pk_bf16_f32 v91, v78, v79      ; Ps
        v_cvt_pk_bf16_f32 v92, v80, v81
        v_cvt_pk_bf16_f32 v93, v82, v83      ; Pc2
        v_cvt_pk_bf16_f32 v94, v84, v85
        v_cvt_pk_bf16_f32 v95, v86, v87      ; Ps2
        v_xor_b32 v96, v26, v90
        v_xor_b32 v97, v26, v91              ; -Ps
        v_xor_b32 v98, v26, v94
        v_xor_b32 v99, v26, v95              ; -Ps2
        """)
        def sel(dst, c0, c1):
            for k in range(2):
                a(f"v_cndmask_b32 v{dst+k}, v{c0+k}, v{c1+k}, s[32:33]")
                a(f"v_cndmask_b32 v{dst+2+k}, v{c1+k}, v{c0+k}, s[32:33]")
        sel(T(rho,0), 88, 90)
        sel(T(rho,1), 88, 96)
        sel(TP(rho,0), 98, 92)
        sel(TP(rho,1), 94, 92)
    a(f"""
    v_lshlrev_b32 v27, 3, v4
    v_sub_u32 v28, v3, v27           ; m - 8q
    v_sub_u32 v29, 0, v3
    v_sub_u32 v29, v29, v27          ; -m - 8q
    """)
    for (d, tb, src, add) in ((0,0,28,0), (0,1,28,16), (1,0,29,31), (1,1,29,15)):
        a(f"""
        v_add_u32 v30, {add}, v{src}
        v_and_b32 v31, 1, v30
        v_lshlrev_b32 v31, 4, v31
        v_lshlrev_b32 v31, v31, v127
        v_lshrrev_b32 v30, 1, v30
        """)
        for jj in range(4):
            a(f"v_cmp_eq_u32 vcc, {jj}, v30")
            a(f"v_cndmask_b32 v{SEL(d,tb)+jj}, 0, v31, vcc")
    a(f"""
    v_lshrrev_b32 v27, 2, v3
    v_lshl_add_u32 v27, v4, 2, v27   ; s2 = 4q + r'
    v_lshlrev_b32 v27, 6, v27
    v_and_b32 v28, 3, v3
    v_lshl_add_u32 v27, v28, 4, v27
    v_and_b32 v28, 1, v4
    v_lshl_add_u32 v27, v28, 3, v27
    v_add_u32 v120, s21, v27         ; vT0
    v_xor_b32 v121, 8, v120          ; vT1
    v_add_u32 v122, s19, v120
    v_add_u32 v123, s19, v121
    v_add_u32 v124, s20, v120
    v_add_u32 v125, s20, v121
    v_add_u32 v27, 48, v3
    v_lshlrev_b32 v126, 2, v27
    v_mov_b32 v20, 0
    v_mov_b32 v21, 0
    v_mov_b32 v22, 0
    v_mov_b32 v23, 0
    """)
    def trread(dst, rho, d, g):
        if d == 0:
            b0, b1, off = 120, 121, rho*16384 + g*1024
        else:
            b0, b1, off = 122+2*rho, 123+2*rho, g*1024
        a(f"ds_read_b64_tr_b16 {ar(dst,2)}, v{b0} offset:{off}")
        a(f"ds_read_b64_tr_b16 {ar(dst+2,2)}, v{b1} offset:{off}")
    a(f"s_waitcnt vmcnt({min(63, nv[0]-mark_first)})")
    for rho in range(2):
        trread(VA(rho,0), rho, 0, 15)
        trread(VA(rho,1), rho, 1, 15)
    a("s_waitcnt lgkmcnt(0)")
    for rho in range(2):
        a(f"v_mfma_f32_16x16x32_bf16 {vr(ACC(rho,0),4)}, {ar(VA(rho,0),4)}, {vr(TP(rho,0),4)}, 0")
    for rho in range(2):
        a(f"v_mfma_f32_16x16x32_bf16 {vr(ACC(rho,0),4)}, {ar(VA(rho,1),4)}, {vr(TP(rho,1),4)}, {vr(ACC(rho,0),4)}")
    wdma(0)
    for rho in range(2):
        a(f"ds_bpermute_b32 v{27+rho}, v126, v{ACC(rho,0)+3}")
    a("s_waitcnt lgkmcnt(0)")
    for rho in range(2):
        a(f"v_add_f32 v{16+rho}, v{16+rho}, v{27+rho}")
        for r in range(4):
            a(f"v_sub_f32 v{NEGM(rho)+r}, 0, v{16+rho}")
        a(f"v_lshlrev_b32 v{18+rho}, 16, v{18+rho}")
    a(f"""
    v_lshlrev_b32 v27, 3, v4
    v_add_u32 v104, v10, v27
    v_add_u32 v105, v11, v27
    v_add_u32 v104, {WS_H + 2}, v104
    v_add_u32 v105, {WS_H + 2}, v105
    v_sub_u32 v106, v10, v27
    v_sub_u32 v107, v11, v27
    v_add_u32 v106, {WS_H + 1016}, v106
    v_add_u32 v107, {WS_H + 1016}, v107
    v_add_u32 v108, {WS_H}, v10
    v_add_u32 v109, {WS_H}, v11
    s_mov_b32 s34, 0
    s_mov_b32 s35, 0xffff0000        ; lanes q==3
    """)
    units = [(i, rho, d) for i in range(8) for rho in range(2) for d in range(2)]
    def reads(u):
        i, rho, d = units[u]
        if rho == 0 and d == 0:
            a(f"s_waitcnt vmcnt({min(63, nv[0]-mark_pair[i])})")
        trread(VA(u & 3, 0), rho, d, 2*i)
        trread(VA(u & 3, 1), rho, d, 2*i+1)
    def mm(u):
        i, rho, d = units[u]
        s = u & 3; kap = i + 8*d
        for tb in range(2):
            a(f"v_mfma_f32_16x16x32_bf16 {vr(ACC(s,tb),4)}, {ar(VA(s,tb),4)}, {vr(T(rho,d),4)}, {vr(NEGM(rho),4)}")
        for tb in range(2):
            a(f"v_mfma_f32_16x16x32_bf16 {vr(ACC(s,tb),4)}, {vr(SEL(d,tb),4)}, {ar(XF(rho,kap),4)}, {vr(ACC(s,tb),4)}")
    def post(u):
        i, rho, d = units[u]
        s = u & 3; kap = i + 8*d
        h = H(rho, kap)
        for tb in range(2):
            a(f"v_cvt_pk_bf16_f32 v{h+2*tb}, v{ACC(s,tb)}, v{ACC(s,tb)+1}")
            a(f"v_cvt_pk_bf16_f32 v{h+2*tb+1}, v{ACC(s,tb)+2}, v{ACC(s,tb)+3}")
        a(f"s_cmp_eq_u32 s16, {kap}")
        a(f"s_cbranch_scc0 K2_nh{u}")
        a.cond_begin()
        for tb in range(2):
            for r in range(4):
                a(f"v_add_f32 v{110+tb*4+r}, v{16+rho}, v{ACC(s,tb)+r}")
        if kap == 15:
            a(f"v_add_f32 v118, v{16+rho}, v{ACC((u-1)&3,1)+3}")
            a(f"v_cvt_pk_bf16_f32 v119, v117, v117")
            a(f"v_cndmask_b32 v117, v117, v118, s[34:35]")
            a("s_mov_b64 s[36:37], exec")
            a("s_mov_b64 exec, s[34:35]")
            a(f"global_store_short v{108+rho}, v119, s[6:7]")
            a("s_mov_b64 exec, s[36:37]")
        for tb in range(2):
            b = 110 + tb*4
            if d == 0:
                a(f"v_cvt_pk_bf16_f32 v{b}, v{b}, v{b+1}")
                a(f"v_cvt_pk_bf16_f32 v{b+1}, v{b+2}, v{b+3}")
                a(f"global_store_dwordx2 v{104+rho}, v[{b}:{b+1}], s[6:7] offset:{64*i + 32*tb}")
            else:
                a(f"v_cvt_pk_bf16_f32 v118, v{b+3}, v{b+2}")
                a(f"v_cvt_pk_bf16_f32 v119, v{b+1}, v{b}")
                a(f"global_store_dwordx2 v{106+rho}, v[118:119], s[6:7] offset:{-64*i - 32*tb}")
        a.cond_end()
        a(f"K2_nh{u}:")
        for k in range(4):
            a(f"v_dot2c_f32_bf16 v{20+rho*2+(k&1)}, v{h+k}, v{h+k}")
    def fix(u):
        i, rho, d = units[u]
        F = ACC((u-1)&3, 1) + 3; M = ACC(u&3, 1) + 3
        a(f"v_add_f32 v27, v{F}, v{M}")
        a(f"v_mul_f32 v27, 0.5, v27")
        a(f"v_sub_f32 v28, v{18+rho}, v{16+rho}")
        a(f"v_cndmask_b32 v{F}, v{F}, v27, s[34:35]")
        a(f"v_cndmask_b32 v{M}, v{M}, v28, s[34:35]")
    reads(0); reads(1)
    pending = []
    for u in range(32):
        if u + 2 < 32:
            reads(u+2)
            a("s_waitcnt lgkmcnt(8)")
        elif u + 1 < 32:
            a("s_waitcnt lgkmcnt(4)")
        else:
            a("s_waitcnt lgkmcnt(0)")
        mm(u)
        for pu in pending:
            post(pu)
        pending = []
        i, rho, d = units[u]
        if i == 7:
            if d == 1:
                fix(u); pending = [u-1, u]
        else:
            pending = [u]
        if u == 17:
            wdma(1); wdma(2)
    for pu in pending:
        post(pu)
    wdma(3); wdma(4)
    a("""
    v_add_f32 v20, v20, v21
    v_add_f32 v22, v22, v23
    v_mov_b32 v21, v20
    v_mov_b32 v23, v22
    v_permlane32_swap_b32 v20, v21
    v_permlane32_swap_b32 v22, v23
    v_add_f32 v20, v20, v21
    v_add_f32 v22, v22, v23
    v_mov_b32 v21, v20
    v_mov_b32 v23, v22
    v_permlane16_swap_b32 v20, v21
    v_permlane16_swap_b32 v22, v23
    v_add_f32 v20, v20, v21
    v_add_f32 v22, v22, v23
    """)
    a(f"""
    s_mov_b32 s38, {hx(1.0/512)}
    v_mov_b32 v27, {hx(1e-5)}
    v_fma_f32 v20, v20, s38, v27
    v_fma_f32 v22, v22, s38, v27
    v_rsq_f32 v20, v20
    v_rsq_f32 v22, v22
    v_mul_f32 v21, {hx(-math.log2(math.e))}, v20
    v_mul_f32 v23, {hx(-math.log2(math.e))}, v22
    s_cmp_eq_u32 s16, 0
    s_cbranch_scc0 K2_nor
    """)
    a.cond_begin()
    a(f"""
    v_add_u32 v14, {WS_RT - WS_MX}, v14
    v_add_u32 v15, {WS_RT - WS_MX}, v15
    s_mov_b64 s[36:37], exec
    s_mov_b64 exec, 0xffff
    global_store_dword v14, v20, s[6:7]
    global_store_dword v15, v22, s[6:7]
    s_mov_b64 exec, s[36:37]
    """)
    a.cond_end()
    a("K2_nor:")
    for k in range(4):
        a(f"v_add_u32 v{32+k}, {k*REG}, v5")
    a(f"""
    s_mul_i32 s39, s17, 57344
    v_add_u32 v36, s39, v5
    s_mul_i32 s39, s18, 57344
    v_add_u32 v37, s39, v5
    s_mul_i32 s42, s16, 7            ; P0 = 7n
    """)
    MACC = lambda st, gu, rho: 72 + ((st*2 + gu)*2 + rho)*4
    def wread(p, kap):
        out = []
        for gu in range(2):
            phi = kap*2 + gu
            out.append(f"ds_read_b128 {ar(WF(kap & 3, gu),4)}, v{32 + (phi>>3)} offset:{QB[p]*8192 + (phi&7)*1024}")
        return out
    def epilogue(p):
        st = p & 1
        f = []
        f += [f"s_add_u32 s43, s42, {p}", "s_lshr_b32 s44, s43, 1", "s_lshl_b32 s44, s44, 10", "s_and_b32 s43, s43, 1",
              "s_lshl_b32 s43, s43, 3", "s_add_u32 s44, s44, s43", f"s_add_u32 s44, s44, {WS_HH}",
              "s_add_u32 s40, s6, s44", "s_addc_u32 s41, s7, 0"]
        for rho in range(2):
            tb = 40 + rho*4
            g = MACC(st, 0, rho); u_ = MACC(st, 1, rho)
            for r in range(4): f.append(f"v_mul_f32 v{tb+r}, v{21+2*rho}, v{g+r}")
            for r in range(4): f.append(f"v_exp_f32 v{tb+r}, v{tb+r}")
            for r in range(4): f.append(f"v_add_f32 v{tb+r}, 1.0, v{tb+r}")
            for r in range(4): f.append(f"v_rcp_f32 v{tb+r}, v{tb+r}")
            for r in range(4): f.append(f"v_mul_f32 v{tb+r}, v{tb+r}, v{u_+r}")
            f.append(f"v_cvt_pk_bf16_f32 v{48+2*rho}, v{tb}, v{tb+1}")
            f.append(f"v_cvt_pk_bf16_f32 v{49+2*rho}, v{tb+2}, v{tb+3}")
            f.append(f"global_store_dwordx2 v{36+rho}, v[{48+2*rho}:{49+2*rho}], s[40:41]")
        return f
    for p in range(7):
        a(f"s_waitcnt vmcnt({min(63, nv[0]-mark_w[p])})")
        a("s_barrier")
        if p in (1, 2):
            wdma(p+4)
        main = []
        main += wread(p, 0) + wread(p, 1) + wread(p, 2)
        st = p & 1
        for kap in range(16):
            if kap + 3 < 16:
                main += wread(p, kap+3)
                main.append("s_waitcnt lgkmcnt(6)")
            else:
                main.append(f"s_waitcnt lgkmcnt({2*(15-kap)})")
            for gu in range(2):
                for rho in range(2):
                    c = "0" if kap == 0 else vr(MACC(st,gu,rho),4)
                    main.append(f"v_mfma_f32_16x16x32_bf16 {vr(MACC(st,gu,rho),4)}, {ar(WF(kap&3,gu),4)}, {vr(H(rho,kap),4)}, {c}")
        fill = epilogue(p-1) if p > 0 else []
        interleave(a, main, fill)
        if p > 0:
            nv[0] += 2
    for f in epilogue(6):
        a(f)
    a("K2_done:")
    a("s_endpgm")
    return "  v_mov_b32 v127, 0x3f80\n" + a.finalize()

K3_STG = 28672
K3_LDS = 5*K3_STG
def gen_k3():
    a = Asm()
    WD = lambda k3: k3*4
    HB = lambda s: 64 + s*4
    ACC = lambda k: 32 + k*4
    a(f"""
    s_cmp_ge_u32 s2, 256
    s_cbranch_scc1 K3_done
    s_load_dwordx2 s[4:5], s[0:1], 72
    s_load_dwordx2 s[6:7], s[0:1], 88
    v_lshrrev_b32 v1, 6, v0
    v_and_b32 v2, 63, v0
    v_readfirstlane_b32 s14, v1
    v_and_b32 v3, 15, v2
    v_lshrrev_b32 v4, 4, v2
    v_lshlrev_b32 v5, 4, v2          ; lane*16
    s_and_b32 s15, s2, 7
    s_lshl_b32 s15, s15, 2
    s_bfe_u32 s16, s2, 0x20003
    s_add_u32 s15, s15, s16          ; tg
    s_lshr_b32 s16, s2, 5            ; nb
    s_lshl_b32 s17, s16, 2
    s_add_u32 s17, s17, s14          ; nu
    s_lshl_b32 s18, s15, 2           ; tt0
    s_add_u32 s19, s18, s14
    s_mul_i32 s20, s17, {56*1024}
    s_add_u32 s20, s20, {WS_WD}
    v_add_u32 v6, s20, v5
    s_mul_i32 s20, s19, 57344
    s_add_u32 s20, s20, {WS_HH}
    v_add_u32 v7, s20, v5
    s_mul_i32 s21, s14, 7168
    v_lshlrev_b32 v8, 7, v3
    v_add_u32 v8, s18, v8            ; t for k=0
    v_lshlrev_b32 v9, 10, v8
    s_lshl_b32 s20, s17, 5
    v_add_u32 v9, s20, v9
    v_lshl_add_u32 v9, v4, 3, v9
    v_add_u32 v10, {WS_H}, v9
    v_lshlrev_b32 v11, 2, v8
    v_add_u32 v11, {WS_RT}, v11
    s_waitcnt lgkmcnt(0)
    s_add_u32 s24, s6, 4096
    s_addc_u32 s25, s7, 0
    """)
    nv = [0]
    mark = {}
    def issue(sg):
        buf = (sg % 5)*K3_STG
        for k in range(7):
            a(f"s_add_u32 m0, s21, {buf + (k & 4)*1024}")
            a(f"global_load_lds_dwordx4 v7, {'s[6:7]' if k < 4 else 's[24:25]'} offset:{(k&3)*1024}")
        a("v_add_u32 v7, 7168, v7")
        for k in range(7):
            a(f"global_load_dwordx4 {ar(WD(sg*7+k),4)}, v6, {'s[6:7]' if k < 4 else 's[24:25]'} offset:{(k&3)*1024}")
        a("v_add_u32 v6, 7168, v6")
        nv[0] += 14
        mark[sg] = nv[0]
    for sg in range(4):
        issue(sg)
    for k in range(4):
        a(f"global_load_dwordx2 v[{16+2*k}:{17+2*k}], v10, s[6:7] offset:{1024*k}")
        a(f"global_load_dword v{24+k}, v11, s[6:7] offset:{4*k}")
    nv[0] += 8
    issue(4)
    a(f"""
    v_add_u32 v12, {2*K3_STG}, v5
    v_add_u32 v13, {4*K3_STG}, v5
    """)
    def rd(slot, sg, k, tile):
        b = sg % 5
        base = (5, 5, 12, 12, 13)[b]
        off = (b & 1)*K3_STG if b < 4 else 0
        return f"ds_read_b128 {vr(HB(slot),4)}, v{base} offset:{off + tile*7168 + k*1024}"
    for sg in range(8):
        a(f"s_waitcnt vmcnt({min(63, nv[0]-mark[sg])})")
        a("s_barrier")
        if sg >= 1 and sg + 4 < 8:
            issue(sg+4)
        seq = [(k, t) for k in range(7) for t in range(4)]
        for x in range(6):
            a(rd(x & 7, sg, *seq[x]))
        for x, (k, t) in enumerate(seq):
            if x + 6 < 28:
                a(rd((x+6) & 7, sg, *seq[x+6]))
                a("s_waitcnt lgkmcnt(6)")
            else:
                a(f"s_waitcnt lgkmcnt({27-x})")
            c = "0" if (sg == 0 and k == 0) else vr(ACC(t),4)
            a(f"v_mfma_f32_16x16x32_bf16 {vr(ACC(t),4)}, {ar(WD(sg*7+k),4)}, {vr(HB(x&7),4)}, {c}")
    a("v_mov_b32 v14, 0xffff0000")
    for k in range(4):
        a(f"""
        v_lshlrev_b32 v48, 16, v{16+2*k}
        v_and_b32 v49, v14, v{16+2*k}
        v_lshlrev_b32 v50, 16, v{17+2*k}
        v_and_b32 v51, v14, v{17+2*k}
        """)
        for r in range(4):
            a(f"v_fma_f32 v{48+r}, v{ACC(k)+r}, v{24+k}, v{48+r}")
        a(f"v_cvt_pk_bf16_f32 v{52+2*k}, v48, v49")
        a(f"v_cvt_pk_bf16_f32 v{53+2*k}, v50, v51")
        a(f"global_store_dwordx2 v9, v[{52+2*k}:{53+2*k}], s[4:5] offset:{1024*k}")
    a("K3_done:")
    a("s_endpgm")
    return a.finalize()

def build_all(which=("k1", "k2", "k3")):
    out = []
    hdr = open("sequential_preLN__spectral_fnet__glu_gated_glu__prompt.s.ref").read().split("\n")
    out += [l for l in hdr if l.startswith(";") and "@launch" not in l]
    if "k1" in which: out.append(f"; @launch kernel=k1_kernel grid=(256,1,1) block=(512,1,1) lds={K1_LDS}")
    if "k2" in which: out.append(f"; @launch kernel=k2_kernel grid=(256,1,1) block=(256,1,1) lds={K2_LDS}")
    if "k3" in which: out.append(f"; @launch kernel=k3_kernel grid=(256,1,1) block=(256,1,1) lds={K3_LDS}")
    out.append('.amdgcn_target "amdgcn-amd-amdhsa--gfx950"')
    out.append(".text")
    kds = []
    if "k1" in which:
        out.append(header("k1_kernel") + "  s_mov_b32 s20, 0x41c80000   ; 25.0\n" + gen_k1())
        kds.append(kd("k1_kernel", 256, 256))
    if "k2" in which:
        out.append(header("k2_kernel") + gen_k2())
        kds.append(kd("k2_kernel", 256+192, 256))
    if "k3" in which:
        out.append(header("k3_kernel") + gen_k3())
        kds.append(kd("k3_kernel", 128+224, 128))
    out.append('.section .rodata,"a"')
    out += [".p2align 6\n" + k for k in kds]
    return "\n".join(out) + "\n"

if __name__ == "__main__":
    import sys
    open(sys.argv[1] if len(sys.argv) > 1 else "all.s", "w").write(build_all())
```

```python
import re

TRANS = ("v_exp_f32", "v_log_f32", "v_rcp_f32", "v_rsq_f32", "v_sqrt_f32", "v_sin_f32", "v_cos_f32")

def parse_reg(tok):
    tok = tok.strip()
    tok = tok.lstrip('-')
    if tok.startswith('abs(') or tok.startswith('|'):
        tok = tok.replace('abs(', '').replace(')', '').replace('|', '')
    m = re.fullmatch(r'([vas])(\d+)', tok)
    if m:
        return [(m.group(1), int(m.group(2)))]
    m = re.fullmatch(r'([vas])\[(\d+):(\d+)\]', tok)
    if m:
        return [(m.group(1), i) for i in range(int(m.group(2)), int(m.group(3)) + 1)]
    if tok == 'vcc':
        return [('s', 106), ('s', 107)]
    if tok == 'vcc_lo':
        return [('s', 106)]
    if tok == 'vcc_hi':
        return [('s', 107)]
    if tok == 'exec':
        return [('s', 126), ('s', 127)]
    if tok == 'm0':
        return [('s', 124)]
    return []

class Ins:
    def __init__(self, text):
        self.text = text
        t = text.split(';')[0].strip()
        self.is_label = t.endswith(':')
        self.is_dir = t.startswith('.')
        self.op = ''
        self.w = []; self.r = []
        self.srcC = []; self.srcAB = []
        self.kind = 'other'
        self.nops = 1
        if not t or self.is_label or self.is_dir:
            self.kind = 'none'; self.nops = 0
            return
        parts = t.split(None, 1)
        op = parts[0]; self.op = op
        rest = parts[1] if len(parts) > 1 else ''
        ops = [o.strip() for o in rest.split(',')] if rest else []
        mods = ''
        if ops:
            l = ops[-1].split()
            if l:
                ops[-1] = l[0]; mods = ' '.join(l[1:])
        self.mods = mods
        regs = [parse_reg(o) for o in ops]
        self.dpp = ('row_' in mods) or ('quad_perm' in mods) or op.endswith('_dpp') or ('wave_' in mods)
        if op == 's_nop':
            self.kind = 'nop'; self.nops = int(ops[0], 0) + 1
        elif op.startswith('v_mfma'):
            self.kind = 'mfma'
            self.w = regs[0]; self.srcAB = regs[1] + regs[2]; self.srcC = regs[3]
            self.r = self.srcAB + self.srcC
            self.passes = 8 if '32x32' in op else 4
        elif op.startswith('v_'):
            self.kind = 'valu'
            base = op.replace('_e32', '').replace('_e64', '').replace('_dpp', '').replace('_sdwa', '')
            self.base = base
            if base.startswith('v_cmp'):
                self.w = regs[0]; self.r = sum(regs[1:], [])
                if base.startswith('v_cmpx'):
                    self.w = self.w + [('s', 126), ('s', 127)]
            elif base.startswith('v_permlane') and 'swap' in base:
                self.w = regs[0] + regs[1]; self.r = regs[0] + regs[1]
            elif base in ('v_add_co_u32', 'v_sub_co_u32', 'v_addc_co_u32', 'v_subb_co_u32', 'v_mad_u64_u32'):
                self.w = regs[0] + regs[1]; self.r = sum(regs[2:], [])
            elif base in ('v_fmac_f32', 'v_dot2c_f32_bf16', 'v_pk_fmac_f16', 'v_writelane_b32'):
                self.w = regs[0]; self.r = sum(regs, [])
            elif base == 'v_nop':
                pass
            else:
                self.w = regs[0]; self.r = sum(regs[1:], [])
                if base == 'v_cndmask_b32' and len(ops) == 3:
                    self.r = self.r + [('s', 106), ('s', 107)]
                if self.dpp:
                    self.r = self.r + regs[0]
            self.trans = base in TRANS
            self.dl = base.startswith('v_dot')
        elif op.startswith('ds_'):
            self.kind = 'ds'
            if op.startswith('ds_write') :
                self.r = sum(regs, [])
            else:
                self.w = regs[0]; self.r = sum(regs[1:], [])
        elif op.startswith('global_') or op.startswith('buffer_') or op.startswith('flat_'):
            self.kind = 'vmem'
            lds = ('_lds_' in op) or (' lds' in (' ' + mods))
            self.lds = lds
            if 'store' in op:
                self.r = sum(regs, [])
                self.store_data = regs[1] if op.startswith('global_') else regs[0]
            elif 'atomic' in op:
                if 'sc0' in mods:
                    self.w = regs[0]; self.r = sum(regs[1:], [])
                else:
                    self.r = sum(regs, [])
            elif op in ('buffer_wbl2', 'buffer_inv'):
                pass
            elif lds:
                self.r = sum(regs, []) + [('s', 124)]
            else:
                self.w = regs[0]; self.r = sum(regs[1:], [])
        elif op.startswith('s_'):
            self.kind = 'salu'
            if op.startswith('s_cmp') or op.startswith('s_cbranch') or op in ('s_branch', 's_barrier', 's_waitcnt', 's_endpgm', 's_setprio', 's_sleep', 's_bitcmp0_b32', 's_bitcmp1_b32'):
                self.r = sum(regs, [])
            elif op.startswith('s_load') or op.startswith('s_memtime') or op.startswith('s_memrealtime'):
                self.kind = 'smem'; self.w = regs[0]; self.r = sum(regs[1:], [])
            else:
                self.w = regs[0] if regs else []; self.r = sum(regs[1:], [])
                if 'saveexec' in op:
                    self.w = self.w + [('s', 126), ('s', 127)]
        else:
            raise ValueError("unknown instr: " + text)

def need(p, c):
    n = 0
    pw = set(p.w); cr = set(c.r); cw = set(c.w)
    if p.kind == 'valu':
        vw = {x for x in pw if x[0] in 'va'}
        sw = {x for x in pw if x[0] == 's'}
        if c.kind == 'mfma' and vw & cr:
            n = max(n, 2 if not p.dl else 3)
        if c.kind == 'valu':
            if p.trans and not c.trans and vw & cr: n = max(n, 1)
            if p.trans and c.trans and vw & cr: n = max(n, 1)
            if c.dpp and vw & cr: n = max(n, 2)
            if c.base.startswith('v_permlane') and vw & cr: n = max(n, 2)
            if c.base in ('v_readlane_b32', 'v_readfirstlane_b32') and vw & cr: n = max(n, 1)
            if sw & cr:
                n = max(n, 4 if c.base in ('v_readlane_b32', 'v_writelane_b32') else 2)
            if p.dl:
                if c.base == p.base:
                    ab = set(c.r) - set(c.w) if c.base == 'v_dot2c_f32_bf16' else set(c.r[:-1])
                    if vw & ab: n = max(n, 3)
                elif vw & (cr | cw): n = max(n, 3)
            if ('s', 126) in sw:
                n = max(n, 5 if c.dpp else 4)
        if c.kind in ('vmem', 'ds') and p.dl and vw & cr: n = max(n, 3)
        if c.kind in ('vmem','ds') and p.trans and vw & cr: n = max(n, 1)
        if c.kind == 'vmem' and sw & cr: n = max(n, 5)
        if c.kind in ('salu', 'smem') and sw & cr: n = max(n, 1)
        if c.kind == 'mfma' and ('s', 126) in sw: n = max(n, 4)
    elif p.kind == 'mfma':
        P = p.passes
        if c.kind == 'mfma':
            if pw & set(c.srcAB): n = max(n, {4: 8, 8: 12}[P])
            if pw & set(c.srcC):
                if list(p.w) == list(c.srcC) and c.passes == P: n = max(n, 0)
                else: n = max(n, {4: 6, 8: 10}[P])
            if pw & cw and not (pw & set(c.srcC)):
                n = max(n, {4: 6, 8: 10}[P])
        else:
            if pw & (cr | cw): n = max(n, {4: 8, 8: 12}[P])
            if c.kind == 'valu' and set(p.srcC) & cw: n = max(n, {4: 3, 8: 7}[P])
            if c.kind in ('vmem', 'ds') and set(p.srcC) & cw: n = max(n, {4: 3, 8: 7}[P])
    elif p.kind == 'vmem':
        if hasattr(p, 'store_data') and len(p.store_data) >= 3 and set(p.store_data) & cw:
            n = max(n, 2)
    elif p.kind == 'salu':
        if ('s', 124) in pw and ((c.kind == 'vmem' and getattr(c, 'lds', False)) or c.op.startswith('s_movrel')):
            n = max(n, 1)
    return n

class Asm:
    def __init__(self):
        self.lines = []
        self.region = 0
        self.nreg = 0
    def __call__(self, text):
        for l in text.strip('\n').split('\n'):
            l = l.strip()
            if l:
                self.lines.append((l, self.region))
    def stamp(self, k):
        if getattr(self, 'stamps', False):
            self(f"s_waitcnt lgkmcnt(0)\ns_memtime s[{64+2*k}:{65+2*k}]\ns_waitcnt lgkmcnt(0)")
            self.nstamp = max(getattr(self, 'nstamp', 0), k+1)
    def dump_stamps(self, base_off, wsreg="s[6:7]", wave="s14", tmp=(1, 2)):
        if not getattr(self, 'stamps', False): return
        self(f"s_lshl_b32 s62, s2, 3\ns_add_u32 s62, s62, {wave}\ns_lshl_b32 s62, s62, 6\ns_add_u32 s62, s62, {base_off}")
        self(f"v_mov_b32 v{tmp[0]}, s62")
        self("s_mov_b64 exec, 1")
        for k in range(self.nstamp):
            self(f"v_mov_b32 v{tmp[1]}, s{64+2*k}")
            self(f"global_store_dword v{tmp[0]}, v{tmp[1]}, {wsreg} offset:{4*k}")
            self("s_nop 1")
    def cond_begin(self):
        self.nreg += 1; self.region = self.nreg
    def cond_end(self):
        self.region = 0
    def label(self, name):
        self.lines.append((name + ':', self.region))
    def finalize(self, window=24):
        out = []
        hist = []
        for l, reg in self.lines:
            ins = Ins(l); ins.region = reg
            if ins.kind == 'none':
                out.append(l); continue
            req = 0
            h = hist[-window*3:]
            for pi in range(len(h)-1, -1, -1):
                p = h[pi]
                n = need(p, ins)
                if n <= 0: continue
                dist = 0
                for x in h[pi+1:]:
                    if x.region == 0 or x.region == reg or x.region == p.region:
                        dist += x.nops
                if n - dist > req: req = n - dist
            while req > 0:
                k = min(req, 16)
                nop = Ins(f"s_nop {k-1}"); nop.region = reg
                out.append(f"  s_nop {k-1}"); hist.append(nop)
                req -= k
            out.append('  ' + l); hist.append(ins)
        return '\n'.join(out)

def vr(a, n=1):
    return f"v{a}" if n == 1 else f"v[{a}:{a+n-1}]"
def ar(a, n=1):
    return f"a{a}" if n == 1 else f"a[{a}:{a+n-1}]"
def sr(a, n=1):
    return f"s{a}" if n == 1 else f"s[{a}:{a+n-1}]"
```

```python
import sys, math, struct
from asmlib import Asm, vr, ar, sr

WS_V   = 0
WS_MXP = 2 << 20
WS_MT  = (2 << 20) + (64 << 10)
WS_XP  = 3 << 20
WS_HC  = 5 << 20
WS_WUP = 8 << 20
WS_WD  = 12 << 20
WS_HH  = 16 << 20
WS_ST  = 32 << 20
STAMPS = False

def f2u(f): return struct.unpack('<I', struct.pack('<f', f))[0]
def hx(f): return "0x%08x" % f2u(f)

def kd(name, vgpr, accum, sgpr=100):
    return f"""
.amdhsa_kernel {name}
  .amdhsa_next_free_vgpr {vgpr}
  .amdhsa_next_free_sgpr {sgpr}
  .amdhsa_accum_offset {accum}
  .amdhsa_group_segment_fixed_size 0
  .amdhsa_kernarg_size 96
  .amdhsa_user_sgpr_count 2
  .amdhsa_user_sgpr_kernarg_segment_ptr 1
  .amdhsa_system_sgpr_workgroup_id_x 1
.end_amdhsa_kernel
"""
def header(name):
    return f".globl {name}\n.p2align 8\n.type {name},@function\n{name}:\n"

def interleave(a, main, fill, key='v_mfma'):
    nm = sum(1 for m in main if m.startswith(key))
    fi = 0; seen = 0
    for m in main:
        a(m)
        if m.startswith(key):
            seen += 1
            tgt = (len(fill) * seen + nm - 1) // nm if nm else len(fill)
            while fi < tgt:
                a(fill[fi]); fi += 1
    while fi < len(fill):
        a(fill[fi]); fi += 1

MF16 = "v_mfma_f32_16x16x32_bf16"
MF32 = "v_mfma_f32_32x32x16_bf16"

K1_LDS_F = 131072
K1_LDS_HELP = 147456
K1_LDS = 163840

def gen_k1():
    a = Asm(); a.stamps = STAMPS
    CS = lambda t, cs, k: 64 + ((t*2 + cs)*4 + k)*4
    G = lambda hi, rho, tile: 128 + ((hi*2 + rho)*2 + tile)*4
    FB = lambda s, tile: 160 + (s*6 + tile)*4
    XB = lambda s, hi, rho: 160 + (s*6 + 2 + hi*2 + rho)*4
    a(f"""
    s_cmp_ge_u32 s2, 256
    s_cbranch_scc1 K1_done
    s_load_dwordx2 s[4:5], s[0:1], 0
    s_load_dwordx2 s[6:7], s[0:1], 88
    s_load_dwordx4 s[8:11], s[0:1], 48
    s_load_dwordx2 s[12:13], s[0:1], 64
    v_lshrrev_b32 v1, 6, v0
    v_and_b32 v2, 63, v0
    v_readfirstlane_b32 s14, v1
    v_and_b32 v3, 15, v2
    v_lshrrev_b32 v4, 4, v2
    v_lshlrev_b32 v13, 4, v2         ; lane*16
    s_and_b32 s15, s2, 7
    s_lshl_b32 s15, s15, 1
    s_bfe_u32 s16, s2, 0x10003
    s_or_b32 s15, s15, s16           ; s2 index
    s_lshr_b32 s16, s2, 4            ; eb
    s_cmp_ge_u32 s14, 4
    s_cbranch_scc1 K1_helper
    """)
    a.stamp(0)
    a(f"""
    v_lshrrev_b32 v5, 2, v2
    v_lshlrev_b32 v5, 17, v5         ; i4*8*16*1024
    s_lshl_b32 s17, s14, 15
    s_lshl_b32 s18, s15, 10
    s_add_u32 s18, s18, s17
    v_add_u32 v5, s18, v5
    v_sub_u32 v6, 0, v4
    v_xor_b32 v6, v6, v2
    v_and_b32 v6, 3, v6
    v_lshl_add_u32 v7, v6, 4, v5
    v_add_u32 v8, 0x4000, v7         ; rho1
    s_waitcnt lgkmcnt(0)
    """)
    nv = 0
    mark = []
    for k in range(8):
        for hi in range(2):
            for rho in range(2):
                kk = k + 8*hi
                a(f"s_add_u32 m0, s17, {(rho*16+kk)*1024 - 64*kk}")
                a(f"global_load_lds_dwordx4 v{7+rho}, s[4:5] offset:{64*kk}")
                nv += 1
        mark.append(nv)
    a.stamp(1)
    a(f"""
    s_mov_b32 s20, 0x41c80000        ; 25.0
    s_lshl_b32 s21, s16, 4
    s_add_u32 s21, s21, 1
    v_add_u32 v9, s21, v3            ; e
    v_cvt_f32_u32 v10, v9
    v_mul_f32 v10, {hx(-1.0/512)}, v10
    v_lshlrev_b32 v11, 31, v9
    v_or_b32 v56, 1.0, v11           ; sc = (-1)^e
    s_lshl_b32 s21, s14, 6
    v_lshlrev_b32 v12, 3, v4
    v_add_u32 v12, s21, v12          ; d0 = 64w + 8q
    v_cvt_f32_u32 v12, v12
    v_mul_f32 v12, v10, v12
    s_lshl_b32 s21, s14, 12
    s_add_u32 s21, s21, {K1_LDS_F}
    v_add_u32 v14, s21, v13
    s_cmp_eq_u32 s16, 15
    s_cselect_b32 s22, 0x80008000, 0
    s_cselect_b32 s23, 0x80008000, 0
    s_cselect_b32 s18, 0x8000, 0
    s_cmp_eq_u32 s14, 0
    s_cselect_b32 s18, s18, 0
    s_mov_b32 s19, 0
    v_mov_b32 v15, 0x3f80
    v_cndmask_b32 v57, v56, 0, s[22:23]      ; ss
    v_cndmask_b32 v58, 0, 1.0, s[22:23]
    """)
    for kk in range(2):
        if kk == 1:
            a("v_fma_f32 v12, v10, s20, v12")
        for j in range(8):
            a(f"v_cos_f32 v{16+j}, v12")
            a(f"v_sin_f32 v{24+j}, v12")
            if j < 7: a("v_add_f32 v12, v10, v12")
        o = 32 + kk*8
        for jj in range(4):
            a(f"v_cvt_pk_bf16_f32 v{o+jj}, v{16+2*jj}, v{17+2*jj}")
            a(f"v_cvt_pk_bf16_f32 v{o+4+jj}, v{24+2*jj}, v{25+2*jj}")
        if kk == 0:
            a(f"v_cndmask_b32 v{o+4}, v{o+4}, v15, s[18:19]")
        a(f"ds_write_b128 v14, {vr(o,4)} offset:{kk*2048}")
        a(f"ds_write_b128 v14, {vr(o+4,4)} offset:{kk*2048+1024}")
    a("s_waitcnt lgkmcnt(0)")
    a("s_barrier")
    a(f"""
    s_lshl_b32 s21, s14, 4
    v_add_u32 v9, s21, v3            ; t1
    v_cvt_f32_u32 v10, v9
    v_mul_f32 v10, {hx(1.0/128)}, v10    ; ft
    v_mul_f32 v11, {hx(8.0)}, v10        ; 8 ft
    v_lshlrev_b32 v12, 5, v4
    v_cvt_f32_u32 v12, v12
    v_mul_f32 v12, v10, v12          ; ft*32q
    v_mov_b32 v15, 0x80008000
    """)
    for k in range(4):
        for hh in range(2):
            a("v_mov_b32 v14, v12")
            for r in range(4):
                j = hh*4 + r
                a(f"v_cos_f32 v{16+j}, v14")
                a(f"v_sin_f32 v{24+j}, v14")
                if r < 3: a("v_add_f32 v14, v11, v14")
            a("v_add_f32 v12, v10, v12")
        for jj in range(4):
            a(f"v_cvt_pk_bf16_f32 v{CS(0,0,k)+jj}, v{16+2*jj}, v{17+2*jj}")
            a(f"v_cvt_pk_bf16_f32 v{CS(0,1,k)+jj}, v{24+2*jj}, v{25+2*jj}")
        for cs in range(2):
            for jj in range(2):
                a(f"v_mov_b32 v{CS(1,cs,k)+jj}, v{CS(0,cs,k)+jj}")
                a(f"v_xor_b32 v{CS(1,cs,k)+2+jj}, v15, v{CS(0,cs,k)+2+jj}")
    a(f"""
    v_lshrrev_b32 v5, 2, v3
    v_sub_u32 v5, 0, v5
    v_and_b32 v5, 3, v5              ; g
    v_xor_b32 v6, v5, v4
    v_lshlrev_b32 v6, 4, v6
    v_lshl_add_u32 v6, v3, 6, v6
    v_add_u32 v6, s17, v6
    v_add_u32 v12, {K1_LDS_F}, v13
    """)
    for r in range(16, 24):
        a(f"v_mov_b32 v{r}, 0")
    a("v_mov_b32 v24, 0x3f803f80")
    a.stamp(2)
    def reads(k):
        s = k & 1
        a(f"s_waitcnt vmcnt({nv - mark[k]})")
        a(f"ds_read_b128 {vr(FB(s,0),4)}, v12 offset:{(k*2)*1024}")
        a(f"ds_read_b128 {vr(FB(s,1),4)}, v12 offset:{(k*2+1)*1024}")
        for hi in range(2):
            for rho in range(2):
                a(f"ds_read_b128 {vr(XB(s,hi,rho),4)}, v6 offset:{(rho*16 + k + 8*hi)*1024}")
    reads(0)
    for k in range(8):
        if k < 7:
            reads(k+1)
            a("s_waitcnt lgkmcnt(6)")
        else:
            a("s_waitcnt lgkmcnt(0)")
        s = k & 1
        if k == 0:
            a(f"v_lshlrev_b32 v59, 16, v{XB(0,0,0)}")
            a(f"v_lshlrev_b32 v61, 16, v{XB(0,0,1)}")
        for hi in range(2):
            for rho in range(2):
                for tile in range(2):
                    c = "0" if k == 0 else vr(G(hi,rho,tile),4)
                    a(f"{MF16} {vr(G(hi,rho,tile),4)}, {vr(XB(s,hi,rho),4)}, {vr(FB(s,tile),4)}, {c}")
                    for jj in range(2):
                        r = XB(s,hi,rho) + tile*2 + jj
                        a(f"v_dot2c_f32_bf16 v{16+rho*4+jj}, v{r}, v24")
                        a(f"v_dot2c_f32_bf16 v{18+rho*4+jj}, v{r}, v{r}")
    a.stamp(3)
    a(f"""
    s_sub_u32 s21, 23, s16
    s_cmp_lt_u32 s16, 8
    s_cselect_b32 s21, s16, s21
    s_cselect_b32 s24, 16, 0
    s_lshl_b32 s21, s21, 10
    v_add_u32 v25, s21, v6           ; a1
    v_add_u32 v26, 1, v4
    v_lshrrev_b32 v27, 2, v26        ; q==3 ? 1:0
    v_and_b32 v26, 3, v26
    v_xor_b32 v26, v26, v5
    v_lshlrev_b32 v26, 4, v26
    v_lshl_add_u32 v26, v3, 6, v26
    v_lshl_add_u32 v26, v27, 10, v26
    s_add_u32 s21, s21, s17
    v_add_u32 v26, s21, v26          ; a2
    ds_read_b128 v[160:163], v25
    ds_read_b32 v164, v26
    ds_read_b128 v[168:171], v25 offset:16384
    ds_read_b32 v172, v26 offset:16384
    """)
    a("""
    v_add_f32 v16, v16, v17
    v_add_f32 v18, v18, v19
    v_add_f32 v20, v20, v21
    v_add_f32 v22, v22, v23
    """)
    for sw in ("v_permlane32_swap_b32", "v_permlane16_swap_b32"):
        for r in (16, 18, 20, 22): a(f"v_mov_b32 v{r+1}, v{r}")
        for r in (16, 18, 20, 22): a(f"{sw} v{r}, v{r+1}")
        for r in (16, 18, 20, 22): a(f"v_add_f32 v{r}, v{r}, v{r+1}")
    a(f"s_mov_b32 s25, {hx(1.0/512)}")
    a(f"v_mov_b32 v27, {hx(1e-5)}")
    for rho in range(2):
        sm, sq = 16+rho*4, 18+rho*4
        a(f"""
        v_mul_f32 v{sm}, s25, v{sm}
        v_fma_f32 v{sq}, v{sq}, s25, v27
        v_fma_f32 v{sq}, -v{sm}, v{sm}, v{sq}
        v_rsq_f32 v{sq}, v{sq}
        v_mul_f32 v{sm+1}, v{sm}, v{sq}
        """)
    for rho in range(2):
        for tile in range(2):
            for r in range(4):
                a(f"v_fma_f32 v{G(0,rho,tile)+r}, v{G(1,rho,tile)+r}, v{56+tile}, v{G(0,rho,tile)+r}")
    a(f"""
    s_lshl_b32 s21, s14, 5
    s_add_u32 s21, s21, s15          ; t1' (rho0)
    s_lshl_b32 s26, s21, 4
    s_add_u32 s26, s26, s16
    s_lshl_b32 s26, s26, 10
    s_add_u32 s26, s26, {WS_XP}
    v_add_u32 v28, s26, v13
    v_add_u32 v29, 0x40000, v28
    v_mov_b32 v30, s24
    s_waitcnt lgkmcnt(0)
    """)
    for rho in range(2):
        b = 160 + rho*8
        for k in range(4):
            a(f"v_alignbit_b32 v{176+rho*4+k}, v{b+k+1}, v{b+k}, v30")
        a(f"global_store_dwordx4 v{28+rho}, {vr(176+rho*4,4)}, s[6:7]")
    a(f"""
    s_add_u32 s26, s17, 2048
    v_lshl_add_u32 v26, v3, 2, s26
    v_lshl_add_u32 v27, v4, 4, s26
    ds_write_b32 v26, v18
    ds_write_b32 v26, v22 offset:64
    ds_write_b32 v26, v17 offset:128
    ds_write_b32 v26, v21 offset:192
    s_waitcnt lgkmcnt(0)
    ds_read_b128 v[32:35], v27
    ds_read_b128 v[36:39], v27 offset:64
    ds_read_b128 v[40:43], v27 offset:128
    ds_read_b128 v[44:47], v27 offset:192
    s_cmp_lg_u32 s16, 0
    s_cbranch_scc1 K1_nomx
    """)
    a.cond_begin()
    a(f"""
    s_lshl_b32 s26, s21, 7
    s_add_u32 s26, s26, {WS_MXP}
    v_lshl_add_u32 v28, v3, 3, s26
    v_mov_b32 v60, v59
    v_mov_b32 v59, v16
    v_mov_b32 v62, v61
    v_mov_b32 v61, v20
    v_mov_b32 v48, v59
    v_mov_b32 v49, v60
    v_mov_b32 v50, v61
    v_mov_b32 v51, v62
    s_mov_b64 s[28:29], exec
    s_mov_b64 exec, 0xffff
    global_store_dwordx2 v28, v[48:49], s[6:7]
    global_store_dwordx2 v28, v[50:51], s[6:7] offset:2048
    s_mov_b64 exec, s[28:29]
    """)
    a.cond_end()
    a("K1_nomx:")
    a("s_waitcnt lgkmcnt(0)")
    for rho in range(2):
        for r in range(4):
            a(f"v_mul_f32 v{G(0,rho,0)+r}, v{G(0,rho,0)+r}, v{32+rho*4+r}")
            a(f"v_mul_f32 v{G(0,rho,1)+r}, v{G(0,rho,1)+r}, v{32+rho*4+r}")
            a(f"v_fma_f32 v{G(0,rho,1)+r}, -v{40+rho*4+r}, v58, v{G(0,rho,1)+r}")
    for tile in range(2):
        for rho in range(2):
            a(f"v_cvt_pk_bf16_f32 v{184+tile*4+rho*2}, v{G(0,rho,tile)}, v{G(0,rho,tile)+1}")
            a(f"v_cvt_pk_bf16_f32 v{184+tile*4+rho*2+1}, v{G(0,rho,tile)+2}, v{G(0,rho,tile)+3}")
    a(f"""
    v_add_u32 v30, s17, v13
    ds_write_b128 v30, v[184:187]
    ds_write_b128 v30, v[188:191] offset:1024
    v_add_u32 v29, 0x10000, v13
    s_waitcnt lgkmcnt(0)
    """)
    a.stamp(4)
    a("s_barrier")
    a.stamp(5)
    AR = lambda k: 192 + k*4
    AI = lambda k: 208 + k*4
    NR = lambda k: 224 + k*4
    for k in range(4):
        b = 13 if k < 2 else 29
        a(f"ds_read_b128 {vr(AR(k),4)}, v{b} offset:{(k&1)*32768}")
        a(f"ds_read_b128 {vr(AI(k),4)}, v{b} offset:{(k&1)*32768 + 1024}")
    a(f"""
    v_lshlrev_b32 v31, 14, v9
    s_lshl_b32 s21, s16, 10
    s_lshl_b32 s26, s15, 6
    s_add_u32 s21, s21, s26
    v_add_u32 v31, s21, v31
    v_lshl_add_u32 v31, v4, 4, v31
    v_add_u32 v30, 0x100000, v31
    """)
    VA = lambda t, c: 128 + (t*2 + c)*4
    for k in range(4):
        a(f"s_waitcnt lgkmcnt({6-2*k})")
        for jj in range(4):
            a(f"v_xor_b32 v{NR(k)+jj}, v15, v{AR(k)+jj}")
        for t in range(2):
            c0 = "0" if k == 0 else vr(VA(t,0),4)
            c1 = "0" if k == 0 else vr(VA(t,1),4)
            a(f"{MF16} {vr(VA(t,0),4)}, {vr(AR(k),4)}, {vr(CS(t,0,k),4)}, {c0}")
            a(f"{MF16} {vr(VA(t,1),4)}, {vr(AI(k),4)}, {vr(CS(t,0,k),4)}, {c1}")
        for t in range(2):
            a(f"{MF16} {vr(VA(t,0),4)}, {vr(AI(k),4)}, {vr(CS(t,1,k),4)}, {vr(VA(t,0),4)}")
            a(f"{MF16} {vr(VA(t,1),4)}, {vr(NR(k),4)}, {vr(CS(t,1,k),4)}, {vr(VA(t,1),4)}")
    for t in range(2):
        o = 160 + t*4
        a(f"v_cvt_pk_bf16_f32 v{o}, v{VA(t,0)}, v{VA(t,0)+1}")
        a(f"v_cvt_pk_bf16_f32 v{o+1}, v{VA(t,0)+2}, v{VA(t,0)+3}")
        a(f"v_cvt_pk_bf16_f32 v{o+2}, v{VA(t,1)}, v{VA(t,1)+1}")
        a(f"v_cvt_pk_bf16_f32 v{o+3}, v{VA(t,1)+2}, v{VA(t,1)+3}")
        a(f"global_store_dwordx4 v{31 if t == 0 else 30}, {vr(o,4)}, s[6:7]")
    a.stamp(6)
    if STAMPS: a("s_waitcnt vmcnt(0)")
    a.stamp(7)
    a.dump_stamps(WS_ST)
    a("s_endpgm")
    a("K1_helper:")
    a(f"""
    s_sub_u32 s14, s14, 4
    s_lshl_b32 s17, s2, 2
    s_add_u32 s17, s17, s14          ; hw
    s_lshl_b32 s24, s14, 12
    s_add_u32 s24, s24, {K1_LDS_HELP}
    v_add_u32 v14, s24, v13
    v_lshrrev_b32 v5, 2, v3          ; r'
    v_and_b32 v6, 3, v3
    v_lshlrev_b32 v6, 3, v6          ; c'*8
    v_lshrrev_b32 v7, 1, v4
    v_lshl_add_u32 v7, v7, 3, v5
    v_lshl_add_u32 v7, v7, 6, v6
    v_and_b32 v8, 1, v4
    v_lshl_add_u32 v7, v8, 11, v7
    v_add_u32 v7, s24, v7
    v_lshrrev_b32 v9, 1, v4
    v_lshlrev_b32 v9, 4, v9
    v_lshl_add_u32 v9, v8, 2, v9
    v_add_u32 v9, v9, v5
    v_lshl_add_u32 v9, v9, 7, v6
    v_add_u32 v9, s24, v9
    v_lshrrev_b32 v10, 3, v2
    v_and_b32 v11, 7, v2
    v_lshlrev_b32 v11, 4, v11
    v_lshl_add_u32 v10, v10, 10, v11
    s_waitcnt lgkmcnt(0)
    """)
    def down_load(sreg, rb, sd):
        a(f"""
        s_lshr_b32 s26, {sreg}, 3        ; k3
        s_and_b32 s27, {sreg}, 7         ; cb
        s_lshl_b32 s28, s26, 15
        s_lshl_b32 s29, s27, 7
        s_add_u32 s28, s28, s29
        v_add_u32 v12, s28, v10
        s_mul_i32 s28, s27, 224
        s_add_u32 s28, s28, s26
        s_lshl_b32 s28, s28, 10
        s_add_u32 s{sd}, s28, {WS_WD}
        """)
        for ins in range(4):
            a(f"global_load_dwordx4 {vr(rb+4*ins,4)}, v12, s[12:13]")
            if ins < 3: a("v_add_u32 v12, 0x2000, v12")
    def down_proc(rb, sd):
        for ins in range(4):
            a(f"ds_write_b128 v14, {vr(rb+4*ins,4)} offset:{ins*1024}")
        a(f"v_add_u32 v12, s{sd}, v13")
        a("s_waitcnt lgkmcnt(0)")
        for ct in range(4):
            a(f"ds_read_b64_tr_b16 v[{48+ct*4}:{49+ct*4}], v9 offset:{ct*32}")
            a(f"ds_read_b64_tr_b16 v[{50+ct*4}:{51+ct*4}], v9 offset:{ct*32 + 1024}")
        for ct in range(4):
            a(f"s_waitcnt lgkmcnt({6-2*ct})")
            a(f"global_store_dwordx4 v12, {vr(48+ct*4,4)}, s[6:7]")
            if ct < 3: a(f"v_add_u32 v12, {56*1024}, v12")
    a("""
    s_cmp_ge_u32 s17, 896
    s_cbranch_scc1 K1_hA_down
    """)
    a.cond_begin()
    a(f"""
    s_and_b32 s26, s17, 15
    s_lshr_b32 s27, s17, 4
    s_and_b32 s28, s26, 7
    s_lshl_b32 s28, s28, 5
    s_add_u32 s29, s28, 1
    s_sub_u32 s28, 511, s28
    s_cmp_lt_u32 s26, 8
    s_cselect_b32 s30, s29, s28      ; rbase
    s_cselect_b32 s31, 1, -1         ; rsign
    s_cselect_b32 s32, -1, 256
    s_lshl_b32 s33, s27, 6
    s_mov_b32 s34, 3584
    s_lshl_b32 s28, s27, 5
    s_add_u32 s28, s28, s26
    s_lshl_b32 s28, s28, 11
    s_add_u32 s40, s28, {WS_WUP}
    v_lshrrev_b32 v11, 2, v2
    v_and_b32 v15, 3, v2
    v_lshlrev_b32 v15, 4, v15
    """)
    for ins in range(2):
        a(f"""
        v_add_u32 v12, {16*ins}, v11
        v_mul_lo_u32 v12, v12, s31
        v_add_u32 v12, s30, v12
        v_cmp_ne_u32 vcc, s32, v12
        v_cndmask_b32 v12, 0, v12, vcc
        v_mul_lo_u32 v12, v12, s34
        v_add3_u32 v12, v12, s33, v15
        global_load_dwordx4 {vr(16+4*ins,4)}, v12, s[8:9]
        global_load_dwordx4 {vr(24+4*ins,4)}, v12, s[10:11]
        """)
    a("s_branch K1_hA_go")
    a.cond_end()
    a("K1_hA_down:")
    a.cond_begin()
    a("s_sub_u32 s25, s17, 896")
    down_load("s25", 16, 40)
    a.cond_end()
    a("K1_hA_go:")
    a("""
    s_cmp_ge_u32 s17, 320
    s_cbranch_scc1 K1_hB_skip
    """)
    a.cond_begin()
    a("s_add_u32 s25, s17, 128")
    down_load("s25", 32, 41)
    a.cond_end()
    a("K1_hB_skip:")
    a("s_barrier")
    a("s_waitcnt vmcnt(0)")
    a("""
    s_cmp_ge_u32 s17, 896
    s_cbranch_scc1 K1_hA_down2
    """)
    a.cond_begin()
    for ins in range(4):
        a(f"ds_write_b128 v14, {vr(16+4*ins,4)} offset:{ins*1024}")
    a("v_add_u32 v12, s40, v13")
    a("s_waitcnt lgkmcnt(0)")
    idx = 0
    for Pp in range(2):
        for aa in range(2):
            a(f"ds_read_b64_tr_b16 v[{48+idx*4}:{49+idx*4}], v7 offset:{aa*256 + Pp*32}")
            a(f"ds_read_b64_tr_b16 v[{50+idx*4}:{51+idx*4}], v7 offset:{aa*256 + Pp*32 + 1024}")
            idx += 1
    idx = 0
    for Pp in range(2):
        for aa in range(2):
            a(f"s_waitcnt lgkmcnt({6-2*idx})")
            a(f"global_store_dwordx4 v12, {vr(48+idx*4,4)}, s[6:7] offset:{aa*1024}")
            idx += 1
        if Pp == 0: a("v_add_u32 v12, 0x8000, v12")
    a("s_branch K1_hA_go2")
    a.cond_end()
    a("K1_hA_down2:")
    a.cond_begin()
    down_proc(16, 40)
    a.cond_end()
    a("K1_hA_go2:")
    a("""
    s_cmp_ge_u32 s17, 320
    s_cbranch_scc1 K1_done
    s_nop 1
    """)
    down_proc(32, 41)
    a("K1_done:")
    a("s_endpgm")
    return a.finalize()

K2_LDS = 163840
REG = 40960

def gen_k2():
    a = Asm(); a.stamps = STAMPS
    H = lambda rho, k: 128 + (rho*16 + k)*4
    XF = lambda rho, k: (rho*16 + k)*4
    T = lambda rho, d: 32 + (rho*2 + d)*4
    SEL = lambda d, tb: 48 + (d*2 + tb)*4
    NEGM = lambda rho: 64 + rho*4
    ACC = lambda s, tb: 72 + (s*2 + tb)*4
    TP = lambda rho, d: 104 + (rho*2 + d)*4
    VA = lambda s, tb: 128 + (s*2 + tb)*4
    WF = lambda s: 160 + s*4
    a(f"""
    s_cmp_ge_u32 s2, 256
    s_cbranch_scc1 K2_done
    s_load_dwordx2 s[6:7], s[0:1], 88
    v_mov_b32 v127, 0x3f80
    v_lshrrev_b32 v1, 6, v0
    v_and_b32 v2, 63, v0
    v_readfirstlane_b32 s14, v1
    v_and_b32 v3, 15, v2
    v_lshrrev_b32 v4, 4, v2
    v_lshlrev_b32 v5, 4, v2          ; lane*16
    s_and_b32 s15, s2, 3
    s_lshl_b32 s15, s15, 2
    s_bfe_u32 s16, s2, 0x20003
    s_add_u32 s15, s15, s16          ; j
    s_bfe_u32 s16, s2, 0x10002
    s_lshl_b32 s16, s16, 3
    s_lshr_b32 s17, s2, 5
    s_add_u32 s16, s16, s17          ; n
    s_lshl_b32 s17, s15, 2
    s_add_u32 s17, s17, s14          ; a0
    s_sub_u32 s18, 128, s17
    s_cmp_eq_u32 s17, 0
    s_cselect_b32 s18, 64, s18       ; a1
    s_cselect_b32 s19, 0, 16384
    s_cselect_b32 s20, 16384, 0
    s_mul_i32 s21, s14, {REG}
    s_lshl_b32 s22, s17, 14
    s_lshl_b32 s23, s18, 14
    v_add_u32 v6, s22, v5
    v_add_u32 v7, s23, v5
    v_add_u32 v12, {WS_XP}, v6
    v_add_u32 v13, {WS_XP}, v7
    v_lshlrev_b32 v8, 7, v3
    v_add_u32 v9, s18, v8            ; t (rho1)
    v_add_u32 v8, s17, v8            ; t (rho0)
    s_lshl_b32 s22, s17, 7
    s_lshl_b32 s23, s18, 7
    s_add_u32 s22, s22, {WS_MXP}
    s_add_u32 s23, s23, {WS_MXP}
    v_lshl_add_u32 v14, v3, 3, s22
    v_lshl_add_u32 v15, v3, 3, s23
    s_waitcnt lgkmcnt(0)
    s_add_u32 s24, s6, 4096
    s_addc_u32 s25, s7, 0
    s_add_u32 s26, s6, 8192
    s_addc_u32 s27, s7, 0
    s_add_u32 s28, s6, 12288
    s_addc_u32 s29, s7, 0
    """)
    a.stamp(0)
    bases = ["s[6:7]", "s[24:25]", "s[26:27]", "s[28:29]"]
    nv = [0]
    def vdma(g4, sel):
        a(f"s_add_u32 m0, s21, {sel*16384 + (g4 & ~3)*1024}")
        a(f"global_load_lds_dwordx4 v{6+sel}, {bases[g4>>2]} offset:{(g4&3)*1024}")
        nv[0] += 1
    vdma(15, 0); vdma(15, 1)
    a("global_load_dwordx2 v[16:17], v14, s[6:7]"); a("global_load_dwordx2 v[18:19], v15, s[6:7]")
    nv[0] += 2
    mark_first = nv[0]
    mark_pair = []
    for i in range(8):
        for g4 in (2*i, 2*i+1):
            if g4 != 15:
                vdma(g4, 0); vdma(g4, 1)
        for kap in (i, 8+i):
            for rho in range(2):
                a(f"global_load_dwordx4 {ar(XF(rho,kap),4)}, v{12+rho}, {bases[kap>>2]} offset:{(kap&3)*1024}")
                nv[0] += 1
        mark_pair.append(nv[0])
    a(f"""
    s_mul_i32 s30, s16, {7*32768}
    s_lshl_b32 s31, s14, 13
    s_add_u32 s30, s30, s31
    s_add_u32 s30, s30, {WS_WUP}
    v_add_u32 v24, s30, v5
    """)
    QB = [4, 0, 2, 1, 3, 4, 0]
    mark_w = {}
    def wdma_list(p):
        l = []
        for k in range(8):
            l.append(f"s_add_u32 m0, s21, {QB[p]*8192 + (k & 4)*1024}")
            l.append(f"global_load_lds_dwordx4 v24, {bases[k>>2]} offset:{(k&3)*1024}")
        l.append("v_add_u32 v24, 0x8000, v24")
        return l
    def wdma(p):
        for x in wdma_list(p): a(x)
        nv[0] += 8
        mark_w[p] = nv[0]
    a.stamp(1)
    a(f"""
    s_mov_b32 s32, 0xffff0000
    s_mov_b32 s33, 0xffff0000
    v_lshlrev_b32 v25, 2, v4
    v_cvt_f32_u32 v25, v25
    v_mov_b32 v26, 0x80008000
    """)
    for rho in range(2):
        a(f"""
        v_cvt_f32_u32 v27, v{8+rho}
        v_mul_f32 v27, {hx(1.0/2048)}, v27
        v_mul_f32 v28, v27, v25
        """)
        for r in range(4):
            a(f"v_cos_f32 v{72+r}, v28")
            a(f"v_sin_f32 v{76+r}, v28")
            if r < 3: a("v_add_f32 v28, v27, v28")
        for r in range(8):
            a(f"v_mul_f32 v{80+r}, 0.5, v{72+r}")
        a(f"""
        v_cvt_pk_bf16_f32 v88, v72, v73
        v_cvt_pk_bf16_f32 v89, v74, v75
        v_cvt_pk_bf16_f32 v90, v76, v77
        v_cvt_pk_bf16_f32 v91, v78, v79
        v_cvt_pk_bf16_f32 v92, v80, v81
        v_cvt_pk_bf16_f32 v93, v82, v83
        v_cvt_pk_bf16_f32 v94, v84, v85
        v_cvt_pk_bf16_f32 v95, v86, v87
        v_xor_b32 v96, v26, v90
        v_xor_b32 v97, v26, v91
        v_xor_b32 v98, v26, v94
        v_xor_b32 v99, v26, v95
        """)
        def sel(dst, c0, c1):
            for k in range(2):
                a(f"v_cndmask_b32 v{dst+k}, v{c0+k}, v{c1+k}, s[32:33]")
                a(f"v_cndmask_b32 v{dst+2+k}, v{c1+k}, v{c0+k}, s[32:33]")
        sel(T(rho,0), 88, 90); sel(T(rho,1), 88, 96); sel(TP(rho,0), 98, 92); sel(TP(rho,1), 94, 92)
    a(f"""
    v_lshlrev_b32 v27, 3, v4
    v_sub_u32 v28, v3, v27
    v_sub_u32 v29, 0, v3
    v_sub_u32 v29, v29, v27
    """)
    for (d, tb, src, add) in ((0,0,28,0), (0,1,28,16), (1,0,29,31), (1,1,29,15)):
        a(f"""
        v_add_u32 v30, {add}, v{src}
        v_and_b32 v31, 1, v30
        v_lshlrev_b32 v31, 4, v31
        v_lshlrev_b32 v31, v31, v127
        v_lshrrev_b32 v30, 1, v30
        """)
        for jj in range(4):
            a(f"v_cmp_eq_u32 vcc, {jj}, v30")
            a(f"v_cndmask_b32 v{SEL(d,tb)+jj}, 0, v31, vcc")
    a(f"""
    v_lshrrev_b32 v27, 2, v3
    v_lshl_add_u32 v27, v4, 2, v27
    v_lshlrev_b32 v27, 6, v27
    v_and_b32 v28, 3, v3
    v_lshl_add_u32 v27, v28, 4, v27
    v_and_b32 v28, 1, v4
    v_lshl_add_u32 v27, v28, 3, v27
    v_add_u32 v120, s21, v27
    v_xor_b32 v121, 8, v120
    v_add_u32 v122, s19, v120
    v_add_u32 v123, s19, v121
    v_add_u32 v124, s20, v120
    v_add_u32 v125, s20, v121
    v_add_u32 v27, 48, v3
    v_lshlrev_b32 v126, 2, v27
    v_mov_b32 v20, 0
    v_mov_b32 v21, 0
    v_mov_b32 v22, 0
    v_mov_b32 v23, 0
    """)
    def trread(dst, rho, d, g):
        if d == 0:
            b0, b1, off = 120, 121, rho*16384 + g*1024
        else:
            b0, b1, off = 122+2*rho, 123+2*rho, g*1024
        a(f"ds_read_b64_tr_b16 {ar(dst,2)}, v{b0} offset:{off}")
        a(f"ds_read_b64_tr_b16 {ar(dst+2,2)}, v{b1} offset:{off}")
    a.stamp(2)
    a(f"s_waitcnt vmcnt({min(63, nv[0]-mark_first)})")
    for rho in range(2):
        trread(VA(rho,0), rho, 0, 15)
        trread(VA(rho,1), rho, 1, 15)
    a("s_waitcnt lgkmcnt(0)")
    for rho in range(2):
        a(f"{MF16} {vr(ACC(rho,0),4)}, {ar(VA(rho,0),4)}, {vr(TP(rho,0),4)}, 0")
    for rho in range(2):
        a(f"{MF16} {vr(ACC(rho,0),4)}, {ar(VA(rho,1),4)}, {vr(TP(rho,1),4)}, {vr(ACC(rho,0),4)}")
    wdma(0)
    for rho in range(2):
        a(f"ds_bpermute_b32 v{27+rho}, v126, v{ACC(rho,0)+3}")
    a("s_waitcnt lgkmcnt(0)")
    for rho in range(2):
        a(f"v_add_f32 v{16+2*rho}, v{16+2*rho}, v{27+rho}")
        for r in range(4):
            a(f"v_sub_f32 v{NEGM(rho)+r}, 0, v{16+2*rho}")
    a(f"""
    v_mov_b32 v27, s17
    v_mov_b32 v28, s18
    v_cndmask_b32 v27, v27, v28, s[32:33]
    v_lshrrev_b32 v28, 1, v4                  ; hf
    v_lshlrev_b32 v104, 14, v27
    v_lshl_add_u32 v104, v28, 9, v104
    v_lshl_add_u32 v104, v3, 4, v104
    v_add_u32 v104, {WS_HC}, v104
    s_mov_b32 s36, 57344
    v_mul_lo_u32 v105, v27, s36
    v_lshl_add_u32 v105, v28, 8, v105
    v_lshl_add_u32 v105, v3, 4, v105
    s_mov_b32 s34, 0
    s_mov_b32 s35, 0xffff0000        ; lanes q==3
    s_cmp_eq_u32 s16, 0
    s_cbranch_scc0 K2_nomt
    """)
    a.cond_begin()
    a(f"""
    s_lshl_b32 s22, s17, 6
    s_lshl_b32 s23, s18, 6
    s_add_u32 s22, s22, {WS_MT}
    s_add_u32 s23, s23, {WS_MT}
    v_lshl_add_u32 v14, v3, 2, s22
    v_lshl_add_u32 v15, v3, 2, s23
    s_mov_b64 s[36:37], exec
    s_mov_b64 exec, 0xffff
    global_store_dword v14, v16, s[6:7]
    global_store_dword v15, v18, s[6:7]
    s_mov_b64 exec, s[36:37]
    """)
    a.cond_end()
    a("K2_nomt:")
    units = [(i, d, rho) for i in range(8) for d in range(2) for rho in range(2)]
    def reads(u):
        i, d, rho = units[u]
        if rho == 0 and d == 0:
            a(f"s_waitcnt vmcnt({min(63, nv[0]-mark_pair[i])})")
        trread(VA(u & 3, 0), rho, d, 2*i)
        trread(VA(u & 3, 1), rho, d, 2*i+1)
    def mm(u):
        i, d, rho = units[u]
        s = u & 3; kap = i + 8*d
        for tb in range(2):
            a(f"{MF16} {vr(ACC(s,tb),4)}, {ar(VA(s,tb),4)}, {vr(T(rho,d),4)}, {vr(NEGM(rho),4)}")
        for tb in range(2):
            a(f"{MF16} {vr(ACC(s,tb),4)}, {vr(SEL(d,tb),4)}, {ar(XF(rho,kap),4)}, {vr(ACC(s,tb),4)}")
    def post(u):
        i, d, rho = units[u]
        s = u & 3; kap = i + 8*d
        h = H(rho, kap)
        for tb in range(2):
            a(f"v_cvt_pk_bf16_f32 v{h+2*tb}, v{ACC(s,tb)}, v{ACC(s,tb)+1}")
            a(f"v_cvt_pk_bf16_f32 v{h+2*tb+1}, v{ACC(s,tb)+2}, v{ACC(s,tb)+3}")
        if rho == 1:
            h0 = H(0, kap)
            for k in range(4):
                a(f"v_permlane16_swap_b32 v{h0+k}, v{h+k}")
            for k in range(4):
                a(f"v_dot2c_f32_bf16 v{20+(k&1)}, v{h0+k}, v{h0+k}")
                a(f"v_dot2c_f32_bf16 v{22+(k&1)}, v{h+k}, v{h+k}")
            a(f"s_cmp_eq_u32 s16, {kap}")
            a(f"s_cbranch_scc0 K2_nh{u}")
            a.cond_begin()
            a(f"v_add_u32 v27, {kap*1024}, v104")
            a(f"global_store_dwordx4 v27, {vr(h0,4)}, s[6:7]")
            a(f"global_store_dwordx4 v27, {vr(h,4)}, s[6:7] offset:256")
            a.cond_end()
            a(f"K2_nh{u}:")
    def fix(rho):
        F = ACC((28+rho)&3, 1) + 3; M = ACC((30+rho)&3, 1) + 3
        a(f"v_add_f32 v27, v{F}, v{M}")
        a(f"v_mul_f32 v27, 0.5, v27")
        a(f"v_sub_f32 v28, v{17+2*rho}, v{16+2*rho}")
        a(f"v_cndmask_b32 v{F}, v{F}, v27, s[34:35]")
        a(f"v_cndmask_b32 v{M}, v{M}, v28, s[34:35]")
    a.stamp(3)
    reads(0); reads(1)
    pending = []
    for u in range(32):
        if u + 2 < 32:
            reads(u+2)
            a("s_waitcnt lgkmcnt(8)")
        elif u + 1 < 32:
            a("s_waitcnt lgkmcnt(4)")
        else:
            a("s_waitcnt lgkmcnt(0)")
        mm(u)
        for pu in pending: post(pu)
        pending = [u] if u < 28 else []
        if u == 17:
            wdma(1); wdma(2)
    fix(0); fix(1)
    for u in range(28, 32): post(u)
    wdma(3); wdma(4)
    a.stamp(4)
    a(f"""
    v_add_f32 v20, v20, v21
    v_add_f32 v22, v22, v23
    v_add_f32 v20, v20, v22
    v_mov_b32 v21, v20
    v_permlane32_swap_b32 v20, v21
    v_add_f32 v20, v20, v21
    s_mov_b32 s38, {hx(1.0/512)}
    v_mov_b32 v27, {hx(1e-5)}
    v_fma_f32 v20, v20, s38, v27
    v_rsq_f32 v20, v20
    v_mul_f32 v21, {hx(-math.log2(math.e))}, v20
    """)
    for k in range(4):
        a(f"v_add_u32 v{32+k}, {k*REG}, v5")
    a("s_mul_i32 s42, s16, 7")
    MACC = lambda st: 72 + st*16
    def wread(p, phi):
        return f"ds_read_b128 {ar(WF(phi & 7),4)}, v{32 + (phi>>3)} offset:{QB[p]*8192 + (phi&7)*1024}"
    def epilogue(p):
        st = p & 1
        f = []
        f += [f"s_add_u32 s43, s42, {p}", "s_lshl_b32 s44, s43, 9", f"s_add_u32 s44, s44, {WS_HH}",
              "s_add_u32 s40, s6, s44", "s_addc_u32 s41, s7, 0"]
        m = MACC(st)
        for r in range(8): f.append(f"v_mul_f32 v{40+r}, v21, v{m+r}")
        for r in range(8): f.append(f"v_exp_f32 v{40+r}, v{40+r}")
        for r in range(8): f.append(f"v_mul_f32 v{48+r}, v20, v{m+8+r}")
        for r in range(8): f.append(f"v_add_f32 v{40+r}, 1.0, v{40+r}")
        for r in range(8): f.append(f"v_rcp_f32 v{40+r}, v{40+r}")
        for r in range(8): f.append(f"v_mul_f32 v{40+r}, v{40+r}, v{48+r}")
        for r in range(4): f.append(f"v_cvt_pk_bf16_f32 v{56+r}, v{40+2*r}, v{41+2*r}")
        f.append("global_store_dwordx4 v105, v[56:59], s[40:41]")
        return f
    PF = 5
    for p in range(7):
        a(f"s_waitcnt vmcnt({min(63, nv[0]-mark_w[p])})")
        a("s_barrier")
        a.stamp(5+p)
        main = [wread(p, x) for x in range(PF)]
        st = p & 1
        for phi in range(32):
            kap, aa = phi >> 1, phi & 1
            if phi + PF < 32:
                main.append(wread(p, phi+PF))
                main.append(f"s_waitcnt lgkmcnt({PF})")
            else:
                main.append(f"s_waitcnt lgkmcnt({31-phi})")
            c = "0" if phi == 0 else vr(MACC(st),16)
            main.append(f"{MF32} {vr(MACC(st),16)}, {ar(WF(phi&7),4)}, {vr(H(aa,kap),4)}, {c}")
        fill = []
        if p in (1, 2):
            fill += wdma_list(p+4)
            nv[0] += 8; mark_w[p+4] = nv[0]
        if p > 0:
            fill += epilogue(p-1)
            nv[0] += 1
        interleave(a, main, fill)
    a.stamp(12)
    for f in epilogue(6): a(f)
    if STAMPS: a("s_waitcnt vmcnt(0)")
    a.stamp(13)
    a.dump_stamps(WS_ST + (1 << 20))
    a("K2_done:")
    a("s_endpgm")
    return a.finalize()

K3_STG = 28672
K3_LDS = 5*K3_STG
def gen_k3():
    a = Asm(); a.stamps = STAMPS
    WD = lambda k3: k3*4
    HB = lambda s: 64 + s*4
    ACC = lambda k: 32 + k*4
    HC = lambda k, x: 96 + (k*2 + x)*4
    SEL = lambda x: 48 + x*4
    a(f"""
    s_cmp_ge_u32 s2, 256
    s_cbranch_scc1 K3_done
    s_load_dwordx2 s[4:5], s[0:1], 72
    s_load_dwordx2 s[6:7], s[0:1], 88
    v_lshrrev_b32 v1, 6, v0
    v_and_b32 v2, 63, v0
    v_readfirstlane_b32 s14, v1
    v_and_b32 v3, 15, v2
    v_lshrrev_b32 v4, 4, v2
    v_lshlrev_b32 v5, 4, v2
    s_and_b32 s15, s2, 7
    s_lshl_b32 s15, s15, 2
    s_bfe_u32 s16, s2, 0x20003
    s_add_u32 s15, s15, s16          ; tg
    s_lshr_b32 s16, s2, 5            ; nb
    s_lshl_b32 s17, s16, 2
    s_add_u32 s17, s17, s14          ; nu
    s_lshl_b32 s18, s15, 2           ; tt0
    s_add_u32 s19, s18, s14
    s_mul_i32 s20, s17, {56*1024}
    s_add_u32 s20, s20, {WS_WD}
    v_add_u32 v6, s20, v5
    s_mul_i32 s20, s19, 57344
    s_add_u32 s20, s20, {WS_HH}
    v_add_u32 v7, s20, v5
    s_mul_i32 s21, s14, 7168
    v_lshlrev_b32 v8, 7, v3
    v_add_u32 v8, s18, v8
    v_lshlrev_b32 v9, 10, v8
    s_lshl_b32 s20, s17, 5
    v_add_u32 v9, s20, v9
    v_lshl_add_u32 v9, v4, 3, v9
    s_lshl_b32 s20, s18, 6
    s_add_u32 s20, s20, {WS_MT}
    v_lshl_add_u32 v11, v3, 2, s20
    s_lshr_b32 s30, s17, 1
    s_lshl_b32 s31, s17, 4           ; 16 nu
    s_sub_u32 s32, 496, s31
    s_lshr_b32 s32, s32, 5
    s_add_u32 s32, s32, 8
    s_cmp_lt_u32 s17, 16
    s_cselect_b32 s30, s30, s32      ; kap1
    s_sub_u32 s33, s30, 1
    s_cmp_eq_u32 s17, 0
    s_cselect_b32 s33, 15, s33
    s_cmp_eq_u32 s17, 16
    s_cselect_b32 s33, 7, s33
    s_max_i32 s33, s33, 0
    s_and_b32 s34, s17, 1
    s_cmp_gt_u32 s17, 16
    s_cselect_b32 s34, 1, s34
    s_lshl_b32 s35, s18, 14
    s_add_u32 s35, s35, {WS_HC}
    s_lshl_b32 s36, s30, 10
    s_add_u32 s36, s36, s35
    v_add_u32 v14, s36, v5
    s_lshl_b32 s36, s33, 10
    s_add_u32 s36, s36, s35
    v_add_u32 v15, s36, v5
    s_waitcnt lgkmcnt(0)
    s_add_u32 s24, s6, 4096
    s_addc_u32 s25, s7, 0
    """)
    a.stamp(0)
    nv = [0]; mark = {}
    def issue(sg):
        buf = (sg % 5)*K3_STG
        for k in range(7):
            a(f"s_add_u32 m0, s21, {buf + (k & 4)*1024}")
            a(f"global_load_lds_dwordx4 v7, {'s[6:7]' if k < 4 else 's[24:25]'} offset:{(k&3)*1024}")
        a("v_add_u32 v7, 7168, v7")
        for k in range(7):
            a(f"global_load_dwordx4 {ar(WD(sg*7+k),4)}, v6, {'s[6:7]' if k < 4 else 's[24:25]'} offset:{(k&3)*1024}")
        a("v_add_u32 v6, 7168, v6")
        nv[0] += 14
        mark[sg] = nv[0]
    for sg in range(4): issue(sg)
    for k in range(4):
        a(f"global_load_dwordx4 {vr(HC(k,0),4)}, v14, s[6:7]")
        a(f"global_load_dwordx4 {vr(HC(k,1),4)}, v15, s[6:7]")
        a(f"global_load_dword v{24+k}, v11, s[6:7] offset:{64*k}")
        if k < 3:
            a("v_add_u32 v14, 0x4000, v14"); a("v_add_u32 v15, 0x4000, v15")
    nv[0] += 12
    issue(4)
    a.stamp(1)
    a(f"""
    v_add_u32 v16, s31, v3           ; n
    v_mov_b32 v23, 0x3f80
    """)
    for x, sk in ((0, 30), (1, 33)):
        a(f"""
        s_and_b32 s36, s{sk}, 7
        s_lshl_b32 s36, s36, 5
        s_sub_u32 s37, -1, s36           ; -(32k+1)
        s_sub_u32 s38, 511, s36
        s_cmp_lt_u32 s{sk}, 8
        s_cselect_b32 s37, s37, s38      ; sB
        s_cselect_b32 s38, 1, -1         ; sA
        s_cmp_eq_u32 s{sk}, 15
        s_cselect_b32 s39, 0, -1
        s_cselect_b32 s40, 256, -1
        v_mul_lo_u32 v17, v16, s38
        v_add_u32 v17, s37, v17          ; rho*
        v_cmp_eq_u32 vcc, s40, v16
        v_cndmask_b32 v17, v17, -1, vcc
        v_cmp_eq_u32 vcc, s39, v16
        v_cndmask_b32 v17, v17, 31, vcc
        """)
        if x == 1:
            a(f"""
            s_cmp_eq_u32 s34, 1
            s_cselect_b32 s36, -1, 0
            v_or_b32 v17, s36, v17
            """)
        a(f"""
        v_bfe_u32 v18, v17, 2, 2
        v_cmp_eq_u32 vcc, v18, v4
        v_cndmask_b32 v17, -1, v17, vcc
        v_lshrrev_b32 v18, 4, v17
        v_lshlrev_b32 v18, 1, v18
        v_bfe_u32 v19, v17, 1, 1
        v_add_u32 v18, v18, v19
        v_and_b32 v19, 1, v17
        v_lshlrev_b32 v19, 4, v19
        v_lshlrev_b32 v19, v19, v23
        """)
        for jj in range(4):
            a(f"v_cmp_eq_u32 vcc, {jj}, v18")
            a(f"v_cndmask_b32 v{SEL(x)+jj}, 0, v19, vcc")
    a(f"""
    v_add_u32 v12, {2*K3_STG}, v5
    v_add_u32 v13, {4*K3_STG}, v5
    """)
    def rd(slot, sg, k, tile):
        b = sg % 5
        base = (5, 5, 12, 12, 13)[b]
        off = (b & 1)*K3_STG if b < 4 else 0
        return f"ds_read_b128 {vr(HB(slot),4)}, v{base} offset:{off + tile*7168 + k*1024}"
    for sg in range(8):
        a(f"s_waitcnt vmcnt({min(63, nv[0]-mark[sg])})")
        a("s_barrier")
        a.stamp(2+sg)
        if sg >= 1 and sg + 4 < 8: issue(sg+4)
        seq = [(k, t) for k in range(7) for t in range(4)]
        for x in range(6): a(rd(x & 7, sg, *seq[x]))
        for x, (k, t) in enumerate(seq):
            if x + 6 < 28:
                a(rd((x+6) & 7, sg, *seq[x+6]))
                a("s_waitcnt lgkmcnt(6)")
            else:
                a(f"s_waitcnt lgkmcnt({27-x})")
            c = "0" if (sg == 0 and k == 0) else vr(ACC(t),4)
            a(f"{MF16} {vr(ACC(t),4)}, {ar(WD(sg*7+k),4)}, {vr(HB(x&7),4)}, {c}")
        if sg == 4:
            for x in range(2):
                for t in range(4):
                    a(f"{MF16} {vr(ACC(t),4)}, {vr(SEL(x),4)}, {vr(HC(t,x),4)}, {vr(ACC(t),4)}")
    a.stamp(10)
    for k in range(4):
        for r in range(4):
            a(f"v_add_f32 v{ACC(k)+r}, v{24+k}, v{ACC(k)+r}")
        a(f"v_cvt_pk_bf16_f32 v{56+2*k}, v{ACC(k)}, v{ACC(k)+1}")
        a(f"v_cvt_pk_bf16_f32 v{57+2*k}, v{ACC(k)+2}, v{ACC(k)+3}")
        a(f"global_store_dwordx2 v9, v[{56+2*k}:{57+2*k}], s[4:5] offset:{1024*k}")
    if STAMPS: a("s_waitcnt vmcnt(0)")
    a.stamp(11)
    a.dump_stamps(WS_ST + (2 << 20))
    a("K3_done:")
    a("s_endpgm")
    return a.finalize()

def build_all():
    out = []
    hdr = open("sequential_preLN__spectral_fnet__glu_gated_glu__prompt.s.ref").read().split("\n")
    out += [l for l in hdr if l.startswith(";") and "@launch" not in l]
    out.append(f"; @launch kernel=k1_kernel grid=(256,1,1) block=(512,1,1) lds={K1_LDS}")
    out.append(f"; @launch kernel=k2_kernel grid=(256,1,1) block=(256,1,1) lds={K2_LDS}")
    out.append(f"; @launch kernel=k3_kernel grid=(256,1,1) block=(256,1,1) lds={K3_LDS}")
    out.append('.amdgcn_target "amdgcn-amd-amdhsa--gfx950"')
    out.append(".text")
    out.append(header("k1_kernel") + gen_k1())
    out.append(header("k2_kernel") + gen_k2())
    out.append(header("k3_kernel") + gen_k3())
    out.append('.section .rodata,"a"')
    for k in (kd("k1_kernel", 256, 256), kd("k2_kernel", 256+192, 256), kd("k3_kernel", 128+224, 128)):
        out.append(".p2align 6\n" + k)
    return "\n".join(out) + "\n"

if __name__ == "__main__":
    if len(sys.argv) > 2 and sys.argv[2] == "stamps": STAMPS = True
    open(sys.argv[1] if len(sys.argv) > 1 else "v2.s", "w").write(build_all())
```

```python
import re

TRANS = ("v_exp_f32", "v_log_f32", "v_rcp_f32", "v_rsq_f32", "v_sqrt_f32", "v_sin_f32", "v_cos_f32")

def parse_reg(tok):
    tok = tok.strip()
    tok = tok.lstrip('-')
    if tok.startswith('abs(') or tok.startswith('|'):
        tok = tok.replace('abs(', '').replace(')', '').replace('|', '')
    m = re.fullmatch(r'([vas])(\d+)', tok)
    if m:
        return [(m.group(1), int(m.group(2)))]
    m = re.fullmatch(r'([vas])\[(\d+):(\d+)\]', tok)
    if m:
        return [(m.group(1), i) for i in range(int(m.group(2)), int(m.group(3)) + 1)]
    if tok == 'vcc':
        return [('s', 106), ('s', 107)]
    if tok == 'vcc_lo':
        return [('s', 106)]
    if tok == 'vcc_hi':
        return [('s', 107)]
    if tok == 'exec':
        return [('s', 126), ('s', 127)]
    if tok == 'm0':
        return [('s', 124)]
    return []

class Ins:
    def __init__(self, text):
        self.text = text
        t = text.split(';')[0].strip()
        self.is_label = t.endswith(':')
        self.is_dir = t.startswith('.')
        self.op = ''
        self.w = []; self.r = []
        self.srcC = []; self.srcAB = []
        self.kind = 'other'
        self.nops = 1
        if not t or self.is_label or self.is_dir:
            self.kind = 'none'; self.nops = 0
            return
        parts = t.split(None, 1)
        op = parts[0]; self.op = op
        rest = parts[1] if len(parts) > 1 else ''
        ops = [o.strip() for o in rest.split(',')] if rest else []
        mods = ''
        if ops:
            l = ops[-1].split()
            if l:
                ops[-1] = l[0]; mods = ' '.join(l[1:])
        self.mods = mods
        regs = [parse_reg(o) for o in ops]
        self.dpp = ('row_' in mods) or ('quad_perm' in mods) or op.endswith('_dpp') or ('wave_' in mods)
        if op == 's_nop':
            self.kind = 'nop'; self.nops = int(ops[0], 0) + 1
        elif op.startswith('v_mfma'):
            self.kind = 'mfma'
            self.w = regs[0]; self.srcAB = regs[1] + regs[2]; self.srcC = regs[3]
            self.r = self.srcAB + self.srcC
            self.passes = 8 if '32x32' in op else 4
        elif op.startswith('v_'):
            self.kind = 'valu'
            base = op.replace('_e32', '').replace('_e64', '').replace('_dpp', '').replace('_sdwa', '')
            self.base = base
            if base.startswith('v_cmp'):
                self.w = regs[0]; self.r = sum(regs[1:], [])
                if base.startswith('v_cmpx'):
                    self.w = self.w + [('s', 126), ('s', 127)]
            elif base.startswith('v_permlane') and 'swap' in base:
                self.w = regs[0] + regs[1]; self.r = regs[0] + regs[1]
            elif base in ('v_add_co_u32', 'v_sub_co_u32', 'v_addc_co_u32', 'v_subb_co_u32', 'v_mad_u64_u32'):
                self.w = regs[0] + regs[1]; self.r = sum(regs[2:], [])
            elif base in ('v_fmac_f32', 'v_dot2c_f32_bf16', 'v_pk_fmac_f16', 'v_writelane_b32'):
                self.w = regs[0]; self.r = sum(regs, [])
            elif base == 'v_nop':
                pass
            else:
                self.w = regs[0]; self.r = sum(regs[1:], [])
                if base == 'v_cndmask_b32' and len(ops) == 3:
                    self.r = self.r + [('s', 106), ('s', 107)]
                if self.dpp:
                    self.r = self.r + regs[0]
            self.trans = base in TRANS
            self.dl = base.startswith('v_dot')
        elif op.startswith('ds_'):
            self.kind = 'ds'
            if op.startswith('ds_write') :
                self.r = sum(regs, [])
            else:
                self.w = regs[0]; self.r = sum(regs[1:], [])
        elif op.startswith('global_') or op.startswith('buffer_') or op.startswith('flat_'):
            self.kind = 'vmem'
            lds = ('_lds_' in op) or (' lds' in (' ' + mods))
            self.lds = lds
            if 'store' in op:
                self.r = sum(regs, [])
                self.store_data = regs[1] if op.startswith('global_') else regs[0]
            elif 'atomic' in op:
                if 'sc0' in mods:
                    self.w = regs[0]; self.r = sum(regs[1:], [])
                else:
                    self.r = sum(regs, [])
            elif op in ('buffer_wbl2', 'buffer_inv'):
                pass
            elif lds:
                self.r = sum(regs, []) + [('s', 124)]
            else:
                self.w = regs[0]; self.r = sum(regs[1:], [])
        elif op.startswith('s_'):
            self.kind = 'salu'
            if op.startswith('s_cmp') or op.startswith('s_cbranch') or op in ('s_branch', 's_barrier', 's_waitcnt', 's_endpgm', 's_setprio', 's_sleep', 's_bitcmp0_b32', 's_bitcmp1_b32'):
                self.r = sum(regs, [])
            elif op.startswith('s_load') or op.startswith('s_memtime') or op.startswith('s_memrealtime'):
                self.kind = 'smem'; self.w = regs[0]; self.r = sum(regs[1:], [])
            else:
                self.w = regs[0] if regs else []; self.r = sum(regs[1:], [])
                if 'saveexec' in op:
                    self.w = self.w + [('s', 126), ('s', 127)]
        else:
            raise ValueError("unknown instr: " + text)

def need(p, c):
    n = 0
    pw = set(p.w); cr = set(c.r); cw = set(c.w)
    if p.kind == 'valu':
        vw = {x for x in pw if x[0] in 'va'}
        sw = {x for x in pw if x[0] == 's'}
        if c.kind == 'mfma' and vw & cr:
            n = max(n, 2 if not p.dl else 3)
        if c.kind == 'valu':
            if p.trans and not c.trans and vw & cr: n = max(n, 1)
            if p.trans and c.trans and vw & cr: n = max(n, 1)
            if c.dpp and vw & cr: n = max(n, 2)
            if c.base.startswith('v_permlane') and vw & cr: n = max(n, 2)
            if c.base in ('v_readlane_b32', 'v_readfirstlane_b32') and vw & cr: n = max(n, 1)
            if sw & cr:
                n = max(n, 4 if c.base in ('v_readlane_b32', 'v_writelane_b32') else 2)
            if p.dl:
                if c.base == p.base:
                    ab = set(c.r) - set(c.w) if c.base == 'v_dot2c_f32_bf16' else set(c.r[:-1])
                    if vw & ab: n = max(n, 3)
                elif vw & (cr | cw): n = max(n, 3)
            if ('s', 126) in sw:
                n = max(n, 5 if c.dpp else 4)
        if c.kind in ('vmem', 'ds') and p.dl and vw & cr: n = max(n, 3)
        if c.kind in ('vmem','ds') and p.trans and vw & cr: n = max(n, 1)
        if c.kind == 'vmem' and sw & cr: n = max(n, 5)
        if c.kind in ('salu', 'smem') and sw & cr: n = max(n, 1)
        if c.kind == 'mfma' and ('s', 126) in sw: n = max(n, 4)
    elif p.kind == 'mfma':
        P = p.passes
        if c.kind == 'mfma':
            if pw & set(c.srcAB): n = max(n, {4: 8, 8: 12}[P])
            if pw & set(c.srcC):
                if list(p.w) == list(c.srcC) and c.passes == P: n = max(n, 0)
                else: n = max(n, {4: 6, 8: 10}[P])
            if pw & cw and not (pw & set(c.srcC)):
                n = max(n, {4: 6, 8: 10}[P])
        else:
            if pw & (cr | cw): n = max(n, {4: 8, 8: 12}[P])
            if c.kind == 'valu' and set(p.srcC) & cw: n = max(n, {4: 3, 8: 7}[P])
            if c.kind in ('vmem', 'ds') and set(p.srcC) & cw: n = max(n, {4: 3, 8: 7}[P])
    elif p.kind == 'vmem':
        if hasattr(p, 'store_data') and len(p.store_data) >= 3 and set(p.store_data) & cw:
            n = max(n, 2)
    elif p.kind == 'salu':
        if ('s', 124) in pw and ((c.kind == 'vmem' and getattr(c, 'lds', False)) or c.op.startswith('s_movrel')):
            n = max(n, 1)
    return n

class Asm:
    def __init__(self):
        self.lines = []
        self.region = 0
        self.nreg = 0
    def __call__(self, text):
        if isinstance(text, (list, tuple)):
            for t in text: self(t)
            return
        for l in text.strip('\n').split('\n'):
            l = l.strip()
            if l == '@cond_begin': self.cond_begin()
            elif l == '@cond_end': self.cond_end()
            elif l.startswith('@stamp'): self.stamp(int(l.split()[1]))
            elif l:
                self.lines.append((l, self.region))
    def stamp(self, k):
        if getattr(self, 'stamps', False):
            op = "s_memrealtime" if k >= 14 else "s_memtime"
            self(f"s_waitcnt lgkmcnt(0)\n{op} s[{64+2*k}:{65+2*k}]\ns_waitcnt lgkmcnt(0)")
            self.nstamp = max(getattr(self, 'nstamp', 0), k+1)
    def dump_stamps(self, base_off, wsreg="s[6:7]", wave="s14", tmp=(1, 2)):
        if not getattr(self, 'stamps', False): return
        self(f"s_lshl_b32 s62, s2, 3\ns_add_u32 s62, s62, {wave}\ns_lshl_b32 s62, s62, 6\ns_add_u32 s62, s62, {base_off}")
        self(f"v_mov_b32 v{tmp[0]}, s62")
        self("s_mov_b64 exec, 1")
        for k in range(self.nstamp):
            self(f"v_mov_b32 v{tmp[1]}, s{64+2*k}")
            self(f"global_store_dword v{tmp[0]}, v{tmp[1]}, {wsreg} offset:{4*k}")
            self("s_nop 1")
    def cond_begin(self):
        self.nreg += 1; self.region = self.nreg
    def cond_end(self):
        self.region = 0
    def label(self, name):
        self.lines.append((name + ':', self.region))
    def finalize(self, window=24):
        lines = []
        cnt = 0; tags = {}
        for l, reg in self.lines:
            if l.startswith('@waitv'):
                parts = l.split()
                n = min(cnt - tags[t] for t in parts[1].split(','))
                extra = ' '.join(parts[2:])
                lines.append((f"s_waitcnt vmcnt({min(63, n)}) {extra}".strip(), reg)); continue
            t = l.split(';')[0].strip()
            op = t.split()[0] if t else ''
            if (op.startswith('global_') or op.startswith('buffer_')) and reg == 0:
                cnt += 1
            if ';@tag=' in l:
                tags[l.split(';@tag=')[1].strip()] = cnt
            lines.append((l, reg))
        self.lines = lines
        out = []
        hist = []
        for l, reg in self.lines:
            ins = Ins(l); ins.region = reg
            if ins.kind == 'none':
                out.append(l); continue
            req = 0
            h = hist[-window*3:]
            for pi in range(len(h)-1, -1, -1):
                p = h[pi]
                n = need(p, ins)
                if n <= 0: continue
                dist = 0
                for x in h[pi+1:]:
                    if x.region == 0 or x.region == reg or x.region == p.region:
                        dist += x.nops
                if n - dist > req: req = n - dist
            while req > 0:
                k = min(req, 16)
                nop = Ins(f"s_nop {k-1}"); nop.region = reg
                out.append(f"  s_nop {k-1}"); hist.append(nop)
                req -= k
            out.append('  ' + l); hist.append(ins)
        return '\n'.join(out)

def vr(a, n=1):
    return f"v{a}" if n == 1 else f"v[{a}:{a+n-1}]"
def ar(a, n=1):
    return f"a{a}" if n == 1 else f"a[{a}:{a+n-1}]"
def sr(a, n=1):
    return f"s{a}" if n == 1 else f"s[{a}:{a+n-1}]"


def weave(main, items, start=0, every=None, end=None):
    if not items: return list(main)
    end = len(main) if end is None else end
    n = len(items)
    pos = [start + (end - start) * k // n for k in range(n)] if every is None else [min(start + every*k, len(main)) for k in range(n)]
    out = []; k = 0
    for i, m in enumerate(main):
        while k < n and pos[k] <= i:
            out += items[k]; k += 1
        out.append(m)
    while k < n:
        out += items[k]; k += 1
    return out

def L(text):
    return [l.strip() for l in text.strip('\n').split('\n') if l.strip()]
```

```python
import sys, math, struct
from asmlib import Asm, vr, ar, sr, weave, L

WS_V   = 0
WS_MX  = 2 << 20
WS_X0  = (2 << 20) + 8192
WS_MT  = (2 << 20) + (64 << 10)
WS_XP  = 3 << 20
WS_HC  = 5 << 20
WS_WUP = 8 << 20
WS_WD  = 12 << 20
WS_HH  = 16 << 20
WS_ST  = 32 << 20
STAMPS = False

def f2u(f): return struct.unpack('<I', struct.pack('<f', f))[0]
def hx(f): return "0x%08x" % f2u(f)
def kd(name, vgpr, accum, sgpr=100):
    return f"""
.amdhsa_kernel {name}
  .amdhsa_next_free_vgpr {vgpr}
  .amdhsa_next_free_sgpr {sgpr}
  .amdhsa_accum_offset {accum}
  .amdhsa_group_segment_fixed_size 0
  .amdhsa_kernarg_size 96
  .amdhsa_user_sgpr_count 2
  .amdhsa_user_sgpr_kernarg_segment_ptr 1
  .amdhsa_system_sgpr_workgroup_id_x 1
.end_amdhsa_kernel
"""
def header(name):
    return f".globl {name}\n.p2align 8\n.type {name},@function\n{name}:\n"

def interleave(main, fill, key='v_mfma'):
    out = []
    nm = sum(1 for m in main if m.startswith(key))
    fi = 0; seen = 0
    for m in main:
        out.append(m)
        if m.startswith(key):
            seen += 1
            tgt = (len(fill) * seen + nm - 1) // nm
            while fi < tgt:
                out.append(fill[fi]); fi += 1
    out += fill[fi:]
    return out

MF16 = "v_mfma_f32_16x16x32_bf16"
MF32 = "v_mfma_f32_32x32x16_bf16"

K1_LDS_F = 131072
K1_LDS_HELP = 147456
K1_LDS = 163840

def gen_k1():
    a = Asm(); a.stamps = STAMPS
    CS = lambda t, cs, k: 64 + ((t*2 + cs)*4 + k)*4
    G = lambda hi, rho, tile: 128 + ((hi*2 + rho)*2 + tile)*4
    FB = lambda s, tile: 160 + (s*6 + tile)*4
    XB = lambda s, hi, rho: 160 + (s*6 + 2 + hi*2 + rho)*4
    SM = lambda rho: 208 + rho*4
    SQ = lambda rho: 216 + rho*4
    ONES = 224
    a(f"""
    s_cmp_ge_u32 s2, 256
    s_cbranch_scc1 K1_done
    s_load_dwordx2 s[4:5], s[0:1], 0
    s_load_dwordx2 s[6:7], s[0:1], 88
    s_load_dwordx4 s[8:11], s[0:1], 48
    s_load_dwordx2 s[12:13], s[0:1], 64
    v_lshrrev_b32 v1, 6, v0
    v_and_b32 v2, 63, v0
    v_readfirstlane_b32 s14, v1
    v_and_b32 v3, 15, v2
    v_lshrrev_b32 v4, 4, v2
    v_lshlrev_b32 v13, 4, v2         ; lane*16
    s_and_b32 s15, s2, 7
    s_lshl_b32 s15, s15, 1
    s_bfe_u32 s16, s2, 0x10003
    s_or_b32 s15, s15, s16           ; s2 index
    s_lshr_b32 s16, s2, 4            ; eb
    s_cmp_ge_u32 s14, 4
    s_cbranch_scc1 K1_helper
    """)
    a.stamp(0); a.stamp(14)
    a(f"""
    v_lshrrev_b32 v5, 2, v2
    v_lshlrev_b32 v5, 17, v5
    s_lshl_b32 s17, s14, 15
    s_lshl_b32 s18, s15, 10
    s_add_u32 s18, s18, s17
    v_add_u32 v5, s18, v5
    v_sub_u32 v6, 0, v4
    v_xor_b32 v6, v6, v2
    v_and_b32 v6, 3, v6
    v_lshl_add_u32 v7, v6, 4, v5
    v_add_u32 v8, 0x4000, v7
    s_waitcnt lgkmcnt(0)
    """)
    xi = []
    for k in range(8):
        for hi in range(2):
            for rho in range(2):
                kk = k + 8*hi
                tag = f" ;@tag=x{k}" if (hi == 1 and rho == 1) else ""
                xi.append([f"s_add_u32 m0, s17, {(rho*16+kk)*1024 - 64*kk}",
                           f"global_load_lds_dwordx4 v{7+rho}, s[4:5] offset:{64*kk}{tag}"])
    for it in xi[:8]: a(it)
    a.stamp(1)
    fg = L(f"""
    s_mov_b32 s20, 0x41c80000
    s_lshl_b32 s21, s16, 4
    s_add_u32 s21, s21, 1
    v_add_u32 v9, s21, v3
    v_cvt_f32_u32 v10, v9
    v_mul_f32 v10, {hx(-1.0/512)}, v10
    v_lshlrev_b32 v11, 31, v9
    v_or_b32 v56, 1.0, v11
    s_lshl_b32 s21, s14, 6
    v_lshlrev_b32 v12, 3, v4
    v_add_u32 v12, s21, v12
    v_cvt_f32_u32 v12, v12
    v_mul_f32 v12, v10, v12
    s_lshl_b32 s21, s14, 12
    s_add_u32 s21, s21, {K1_LDS_F}
    v_add_u32 v14, s21, v13
    """)
    fg.append("""s_cmp_eq_u32 s16, 15
    s_cselect_b32 s22, 0x80008000, 0
    s_cselect_b32 s23, 0x80008000, 0
    s_cselect_b32 s18, 0x8000, 0
    s_cmp_eq_u32 s14, 0
    s_cselect_b32 s18, s18, 0
    s_mov_b32 s19, 0""")
    fg += L("""
    v_mov_b32 v15, 0x3f80
    v_cndmask_b32 v57, v56, 0, s[22:23]
    v_cndmask_b32 v58, 0, 1.0, s[22:23]
    """)
    for kk in range(2):
        if kk == 1: fg.append("v_fma_f32 v12, v10, s20, v12")
        for j in range(8):
            fg.append(f"v_cos_f32 v{16+j}, v12")
            fg.append(f"v_sin_f32 v{24+j}, v12")
            if j < 7: fg.append("v_add_f32 v12, v10, v12")
        o = 32 + kk*8
        for jj in range(4):
            fg.append(f"v_cvt_pk_bf16_f32 v{o+jj}, v{16+2*jj}, v{17+2*jj}")
            fg.append(f"v_cvt_pk_bf16_f32 v{o+4+jj}, v{24+2*jj}, v{25+2*jj}")
        if kk == 0: fg.append(f"v_cndmask_b32 v{o+4}, v{o+4}, v15, s[18:19]")
        fg.append(f"ds_write_b128 v14, {vr(o,4)} offset:{kk*2048}")
        fg.append(f"ds_write_b128 v14, {vr(o+4,4)} offset:{kk*2048+1024}")
    a(weave(fg, xi[8:16]))
    cs = L(f"""
    s_lshl_b32 s21, s14, 4
    v_add_u32 v9, s21, v3
    v_cvt_f32_u32 v10, v9
    v_mul_f32 v10, {hx(1.0/128)}, v10
    v_mul_f32 v11, {hx(8.0)}, v10
    v_lshlrev_b32 v12, 5, v4
    v_cvt_f32_u32 v12, v12
    v_mul_f32 v12, v10, v12
    v_mov_b32 v15, 0x80008000
    """)
    for k in range(4):
        for hh in range(2):
            cs.append("v_mov_b32 v14, v12")
            for r in range(4):
                j = hh*4 + r
                cs.append(f"v_cos_f32 v{16+j}, v14")
                cs.append(f"v_sin_f32 v{24+j}, v14")
                if r < 3: cs.append("v_add_f32 v14, v11, v14")
            cs.append("v_add_f32 v12, v10, v12")
        for jj in range(4):
            cs.append(f"v_cvt_pk_bf16_f32 v{CS(0,0,k)+jj}, v{16+2*jj}, v{17+2*jj}")
            cs.append(f"v_cvt_pk_bf16_f32 v{CS(0,1,k)+jj}, v{24+2*jj}, v{25+2*jj}")
        for c_ in range(2):
            for jj in range(2):
                cs.append(f"v_mov_b32 v{CS(1,c_,k)+jj}, v{CS(0,c_,k)+jj}")
                cs.append(f"v_xor_b32 v{CS(1,c_,k)+2+jj}, v15, v{CS(0,c_,k)+2+jj}")
    cs += L(f"""
    v_lshrrev_b32 v5, 2, v3
    v_sub_u32 v5, 0, v5
    v_and_b32 v5, 3, v5
    v_xor_b32 v6, v5, v4
    v_lshlrev_b32 v6, 4, v6
    v_lshl_add_u32 v6, v3, 6, v6
    v_add_u32 v6, s17, v6
    v_add_u32 v12, {K1_LDS_F}, v13
    v_mul_u32_u24 v16, 80, v4
    """)
    for r in range(4): cs.append(f"v_mov_b32 v{ONES+r}, 0x3f803f80")
    cs.append(f"""s_sub_u32 s21, 23, s16
    s_cmp_lt_u32 s16, 8
    s_cselect_b32 s21, s16, s21
    s_cselect_b32 s24, 16, 0
    s_lshl_b32 s21, s21, 10""")
    cs += L(f"""
    v_add_u32 v25, s21, v6
    v_add_u32 v26, 1, v4
    v_lshrrev_b32 v27, 2, v26
    v_and_b32 v26, 3, v26
    v_xor_b32 v26, v26, v5
    v_lshlrev_b32 v26, 4, v26
    v_lshl_add_u32 v26, v3, 6, v26
    v_lshl_add_u32 v26, v27, 10, v26
    s_add_u32 s21, s21, s17
    v_add_u32 v26, s21, v26
    s_lshl_b32 s21, s14, 5
    s_add_u32 s21, s21, s15
    s_lshl_b32 s26, s21, 4
    s_add_u32 s26, s26, s16
    s_lshl_b32 s26, s26, 10
    s_add_u32 s26, s26, {WS_XP}
    v_add_u32 v28, s26, v13
    v_add_u32 v29, 0x40000, v28
    v_mov_b32 v30, s24
    v_lshlrev_b32 v31, 14, v9
    s_lshl_b32 s26, s16, 10
    s_lshl_b32 s27, s15, 6
    s_add_u32 s26, s26, s27
    v_add_u32 v31, s26, v31
    v_lshl_add_u32 v31, v4, 4, v31
    v_add_u32 v17, 0x100000, v31
    v_add_u32 v18, s17, v13
    v_add_u32 v19, 0x10000, v13
    s_mov_b32 s25, {hx(1.0/512)}
    v_mov_b32 v27, {hx(1e-5)}
    """)
    a(weave(cs, xi[16:]))
    a("s_waitcnt lgkmcnt(0)")
    a.stamp(2)
    a("s_barrier")
    def reads(k):
        s = k & 1
        a(f"@waitv x{k}")
        a(f"ds_read_b128 {vr(FB(s,0),4)}, v12 offset:{(k*2)*1024}")
        a(f"ds_read_b128 {vr(FB(s,1),4)}, v12 offset:{(k*2+1)*1024}")
        for hi in range(2):
            for rho in range(2):
                a(f"ds_read_b128 {vr(XB(s,hi,rho),4)}, v6 offset:{(rho*16 + k + 8*hi)*1024}")
    reads(0)
    for k in range(8):
        if k < 7:
            reads(k+1)
            a("s_waitcnt lgkmcnt(6)")
        else:
            a(f"""
            ds_read_b128 v[32:35], v25
            ds_read_b32 v36, v26
            ds_read_b128 v[40:43], v25 offset:16384
            ds_read_b32 v44, v26 offset:16384
            s_waitcnt lgkmcnt(4)
            """)
        s = k & 1
        if k == 0:
            a(f"v_lshlrev_b32 v59, 16, v{XB(0,0,0)}")
            a(f"v_lshlrev_b32 v60, 16, v{XB(0,0,1)}")
        for hi in range(2):
            for rho in range(2):
                first = (k == 0 and hi == 0)
                x = vr(XB(s,hi,rho),4)
                a(f"{MF16} {vr(SQ(rho),4)}, {x}, {x}, {'0' if first else vr(SQ(rho),4)}")
                a(f"{MF16} {vr(SM(rho),4)}, {x}, {vr(ONES,4)}, {'0' if first else vr(SM(rho),4)}")
        for hi in range(2):
            for rho in range(2):
                for tile in range(2):
                    c = "0" if k == 0 else vr(G(hi,rho,tile),4)
                    a(f"{MF16} {vr(G(hi,rho,tile),4)}, {vr(XB(s,hi,rho),4)}, {vr(FB(s,tile),4)}, {c}")
    a.stamp(3)
    for rho in range(2):
        for r in range(4):
            a(f"ds_bpermute_b32 v{160+rho*4+r}, v16, v{SQ(rho)+r} offset:{4*r}")
    a("s_waitcnt lgkmcnt(8)")
    for rho in range(2):
        b = 32 + rho*8
        for k in range(4):
            a(f"v_alignbit_b32 v{48+rho*4+k}, v{b+k+1}, v{b+k}, v30")
        a(f"global_store_dwordx4 v{28+rho}, {vr(48+rho*4,4)}, s[6:7]")
    for rho in range(2):
        for r in range(4):
            a(f"v_mul_f32 v{SM(rho)+r}, s25, v{SM(rho)+r}")
    for rho in range(2):
        for tile in range(2):
            for r in range(4):
                a(f"v_fma_f32 v{G(0,rho,tile)+r}, v{G(1,rho,tile)+r}, v{56+tile}, v{G(0,rho,tile)+r}")
    for rho in range(2):
        for r in range(4):
            a(f"v_fma_f32 v{G(0,rho,1)+r}, -v{SM(rho)+r}, v58, v{G(0,rho,1)+r}")
    a("s_waitcnt lgkmcnt(0)")
    for rho in range(2):
        for r in range(4):
            q_ = 160+rho*4+r
            a(f"v_fma_f32 v{q_}, v{q_}, s25, v27")
            a(f"v_fma_f32 v{q_}, -v{SM(rho)+r}, v{SM(rho)+r}, v{q_}")
            a(f"v_rsq_f32 v{q_}, v{q_}")
    for rho in range(2):
        for tile in range(2):
            for r in range(4):
                a(f"v_mul_f32 v{G(0,rho,tile)+r}, v{G(0,rho,tile)+r}, v{160+rho*4+r}")
    for tile in range(2):
        for rho in range(2):
            a(f"v_cvt_pk_bf16_f32 v{184+tile*4+rho*2}, v{G(0,rho,tile)}, v{G(0,rho,tile)+1}")
            a(f"v_cvt_pk_bf16_f32 v{184+tile*4+rho*2+1}, v{G(0,rho,tile)+2}, v{G(0,rho,tile)+3}")
    a(f"""
    ds_write_b128 v18, v[184:187]
    ds_write_b128 v18, v[188:191] offset:1024
    s_cmp_lg_u32 s16, 0
    s_cbranch_scc1 K1_nomx
    @cond_begin
    s_lshl_b32 s26, s21, 6
    s_add_u32 s26, s26, {WS_MX}
    v_lshl_add_u32 v20, v4, 4, s26
    v_lshl_add_u32 v21, v3, 2, s26
    s_mov_b64 s[28:29], exec
    s_mov_b32 exec_lo, 0x00010001
    s_mov_b32 exec_hi, 0x00010001
    global_store_dwordx4 v20, {vr(SM(0),4)}, s[6:7]
    global_store_dwordx4 v20, {vr(SM(1),4)}, s[6:7] offset:1024
    s_mov_b64 exec, 0xffff
    v_add_u32 v21, {WS_X0 - WS_MX}, v21
    global_store_dword v21, v59, s[6:7]
    global_store_dword v21, v60, s[6:7] offset:1024
    s_mov_b64 exec, s[28:29]
    @cond_end
    K1_nomx:
    s_waitcnt lgkmcnt(0)
    """)
    a.stamp(4)
    a("s_barrier")
    a.stamp(5)
    AR = lambda k: 192 + k*4
    AI = lambda k: 160 + k*4
    NR = lambda k: 232 + k*4
    for k in range(4):
        b = 13 if k < 2 else 19
        a(f"ds_read_b128 {vr(AR(k),4)}, v{b} offset:{(k&1)*32768}")
        a(f"ds_read_b128 {vr(AI(k),4)}, v{b} offset:{(k&1)*32768 + 1024}")
    VA = lambda t, c: 128 + (t*2 + c)*4
    for k in range(4):
        a(f"s_waitcnt lgkmcnt({6-2*k})")
        for jj in range(4):
            a(f"v_xor_b32 v{NR(k)+jj}, v15, v{AR(k)+jj}")
        for t in range(2):
            c0 = "0" if k == 0 else vr(VA(t,0),4)
            c1 = "0" if k == 0 else vr(VA(t,1),4)
            a(f"{MF16} {vr(VA(t,0),4)}, {vr(AR(k),4)}, {vr(CS(t,0,k),4)}, {c0}")
            a(f"{MF16} {vr(VA(t,1),4)}, {vr(AI(k),4)}, {vr(CS(t,0,k),4)}, {c1}")
        for t in range(2):
            a(f"{MF16} {vr(VA(t,0),4)}, {vr(AI(k),4)}, {vr(CS(t,1,k),4)}, {vr(VA(t,0),4)}")
            a(f"{MF16} {vr(VA(t,1),4)}, {vr(NR(k),4)}, {vr(CS(t,1,k),4)}, {vr(VA(t,1),4)}")
    for t in range(2):
        o = 32 + t*4
        a(f"v_cvt_pk_bf16_f32 v{o}, v{VA(t,0)}, v{VA(t,0)+1}")
        a(f"v_cvt_pk_bf16_f32 v{o+1}, v{VA(t,0)+2}, v{VA(t,0)+3}")
        a(f"v_cvt_pk_bf16_f32 v{o+2}, v{VA(t,1)}, v{VA(t,1)+1}")
        a(f"v_cvt_pk_bf16_f32 v{o+3}, v{VA(t,1)+2}, v{VA(t,1)+3}")
        a(f"global_store_dwordx4 v{31 if t == 0 else 17}, {vr(o,4)}, s[6:7]")
    a.stamp(6)
    if STAMPS: a("s_waitcnt vmcnt(0)")
    a.stamp(7); a.stamp(15)
    a.dump_stamps(WS_ST)
    a("s_endpgm")
    a("K1_helper:")
    a(f"""
    s_barrier
    s_sub_u32 s14, s14, 4
    s_lshl_b32 s17, s2, 2
    s_add_u32 s17, s17, s14
    s_lshl_b32 s24, s14, 12
    s_add_u32 s24, s24, {K1_LDS_HELP}
    v_add_u32 v14, s24, v13
    v_lshrrev_b32 v5, 2, v3
    v_and_b32 v6, 3, v3
    v_lshlrev_b32 v6, 3, v6
    v_lshrrev_b32 v7, 1, v4
    v_lshl_add_u32 v7, v7, 3, v5
    v_lshl_add_u32 v7, v7, 6, v6
    v_and_b32 v8, 1, v4
    v_lshl_add_u32 v7, v8, 11, v7
    v_add_u32 v7, s24, v7
    v_lshrrev_b32 v9, 1, v4
    v_lshlrev_b32 v9, 4, v9
    v_lshl_add_u32 v9, v8, 2, v9
    v_add_u32 v9, v9, v5
    v_lshl_add_u32 v9, v9, 7, v6
    v_add_u32 v9, s24, v9
    v_lshrrev_b32 v10, 3, v2
    v_and_b32 v11, 7, v2
    v_lshlrev_b32 v11, 4, v11
    v_lshl_add_u32 v10, v10, 10, v11
    s_waitcnt lgkmcnt(0)
    """)
    def down_load(sreg, rb, sd):
        a(f"""
        s_lshr_b32 s26, {sreg}, 3
        s_and_b32 s27, {sreg}, 7
        s_lshl_b32 s28, s26, 15
        s_lshl_b32 s29, s27, 7
        s_add_u32 s28, s28, s29
        v_add_u32 v12, s28, v10
        s_mul_i32 s28, s27, 224
        s_add_u32 s28, s28, s26
        s_lshl_b32 s28, s28, 10
        s_add_u32 s{sd}, s28, {WS_WD}
        """)
        for ins in range(4):
            a(f"global_load_dwordx4 {vr(rb+4*ins,4)}, v12, s[12:13]")
            if ins < 3: a("v_add_u32 v12, 0x2000, v12")
    def down_proc(rb, sd):
        for ins in range(4):
            a(f"ds_write_b128 v14, {vr(rb+4*ins,4)} offset:{ins*1024}")
        a(f"v_add_u32 v12, s{sd}, v13")
        a("s_waitcnt lgkmcnt(0)")
        for ct in range(4):
            a(f"ds_read_b64_tr_b16 v[{48+ct*4}:{49+ct*4}], v9 offset:{ct*32}")
            a(f"ds_read_b64_tr_b16 v[{50+ct*4}:{51+ct*4}], v9 offset:{ct*32 + 1024}")
        for ct in range(4):
            a(f"s_waitcnt lgkmcnt({6-2*ct})")
            a(f"global_store_dwordx4 v12, {vr(48+ct*4,4)}, s[6:7]")
            if ct < 3: a(f"v_add_u32 v12, {56*1024}, v12")
    a("""
    s_cmp_ge_u32 s17, 896
    s_cbranch_scc1 K1_hA_down
    """)
    a.cond_begin()
    a(f"""
    s_and_b32 s26, s17, 15
    s_lshr_b32 s27, s17, 4
    s_and_b32 s28, s26, 7
    s_lshl_b32 s28, s28, 5
    s_add_u32 s29, s28, 1
    s_sub_u32 s28, 511, s28
    s_cmp_lt_u32 s26, 8
    s_cselect_b32 s30, s29, s28
    s_cselect_b32 s31, 1, -1
    s_cselect_b32 s32, -1, 256
    s_lshl_b32 s33, s27, 6
    s_mov_b32 s34, 3584
    s_lshl_b32 s28, s27, 5
    s_add_u32 s28, s28, s26
    s_lshl_b32 s28, s28, 11
    s_add_u32 s40, s28, {WS_WUP}
    v_lshrrev_b32 v11, 2, v2
    v_and_b32 v15, 3, v2
    v_lshlrev_b32 v15, 4, v15
    """)
    for ins in range(2):
        a(f"""
        v_add_u32 v12, {16*ins}, v11
        v_mul_lo_u32 v12, v12, s31
        v_add_u32 v12, s30, v12
        v_cmp_ne_u32 vcc, s32, v12
        v_cndmask_b32 v12, 0, v12, vcc
        v_mul_lo_u32 v12, v12, s34
        v_add3_u32 v12, v12, s33, v15
        global_load_dwordx4 {vr(16+4*ins,4)}, v12, s[8:9]
        global_load_dwordx4 {vr(24+4*ins,4)}, v12, s[10:11]
        """)
    a("s_branch K1_hA_go")
    a.cond_end()
    a("K1_hA_down:")
    a.cond_begin()
    a("s_sub_u32 s25, s17, 896")
    down_load("s25", 16, 40)
    a.cond_end()
    a("K1_hA_go:")
    a("""
    s_cmp_ge_u32 s17, 320
    s_cbranch_scc1 K1_hB_skip
    """)
    a.cond_begin()
    a("s_add_u32 s25, s17, 128")
    down_load("s25", 32, 41)
    a.cond_end()
    a("K1_hB_skip:")
    a("s_waitcnt vmcnt(0)")
    a("""
    s_cmp_ge_u32 s17, 896
    s_cbranch_scc1 K1_hA_down2
    """)
    a.cond_begin()
    for ins in range(4):
        a(f"ds_write_b128 v14, {vr(16+4*ins,4)} offset:{ins*1024}")
    a("v_add_u32 v12, s40, v13")
    a("s_waitcnt lgkmcnt(0)")
    idx = 0
    for Pp in range(2):
        for aa in range(2):
            a(f"ds_read_b64_tr_b16 v[{48+idx*4}:{49+idx*4}], v7 offset:{aa*256 + Pp*32}")
            a(f"ds_read_b64_tr_b16 v[{50+idx*4}:{51+idx*4}], v7 offset:{aa*256 + Pp*32 + 1024}")
            idx += 1
    idx = 0
    for Pp in range(2):
        for aa in range(2):
            a(f"s_waitcnt lgkmcnt({6-2*idx})")
            a(f"global_store_dwordx4 v12, {vr(48+idx*4,4)}, s[6:7] offset:{aa*1024}")
            idx += 1
        if Pp == 0: a("v_add_u32 v12, 0x8000, v12")
    a("s_branch K1_hA_go2")
    a.cond_end()
    a("K1_hA_down2:")
    a.cond_begin()
    down_proc(16, 40)
    a.cond_end()
    a("K1_hA_go2:")
    a("""
    s_cmp_ge_u32 s17, 320
    s_cbranch_scc1 K1_done
    s_nop 1
    """)
    down_proc(32, 41)
    a("K1_done:")
    a("s_endpgm")
    return a.finalize()

K2_LDS = 163840
REG = 40960

def gen_k2():
    a = Asm(); a.stamps = STAMPS
    H = lambda rho, k: 128 + (rho*16 + k)*4
    XF = lambda rho, k: (rho*16 + k)*4
    T = lambda rho, d: 32 + (rho*2 + d)*4
    SEL = lambda d, tb: 48 + (d*2 + tb)*4
    NEGM = lambda rho: 64 + rho*4
    ACC = lambda s, tb: 72 + (s*2 + tb)*4
    TP = lambda rho, d: 104 + (rho*2 + d)*4
    VA = lambda s, tb: 128 + (s*2 + tb)*4
    WF = lambda s: 160 + s*4
    a(f"""
    s_cmp_ge_u32 s2, 256
    s_cbranch_scc1 K2_done
    s_load_dwordx2 s[6:7], s[0:1], 88
    v_lshrrev_b32 v1, 6, v0
    v_and_b32 v2, 63, v0
    v_readfirstlane_b32 s14, v1
    v_and_b32 v3, 15, v2
    v_lshrrev_b32 v4, 4, v2
    v_lshlrev_b32 v5, 4, v2
    s_and_b32 s15, s2, 3
    s_lshl_b32 s15, s15, 2
    s_bfe_u32 s16, s2, 0x20003
    s_add_u32 s15, s15, s16          ; j
    s_bfe_u32 s16, s2, 0x10002
    s_lshl_b32 s16, s16, 3
    s_lshr_b32 s17, s2, 5
    s_add_u32 s16, s16, s17          ; n
    s_lshl_b32 s17, s15, 2
    s_add_u32 s17, s17, s14          ; a0
    s_sub_u32 s18, 128, s17
    s_cmp_eq_u32 s17, 0
    s_cselect_b32 s18, 64, s18       ; a1
    s_cselect_b32 s19, 0, 16384
    s_cselect_b32 s20, 16384, 0
    s_mul_i32 s21, s14, {REG}
    s_lshl_b32 s22, s17, 14
    s_lshl_b32 s23, s18, 14
    v_add_u32 v6, s22, v5
    v_add_u32 v7, s23, v5
    v_add_u32 v12, {WS_XP}, v6
    v_add_u32 v13, {WS_XP}, v7
    s_lshl_b32 s22, s17, 6
    s_lshl_b32 s23, s18, 6
    s_add_u32 s22, s22, {WS_MX}
    s_add_u32 s23, s23, {WS_MX}
    v_lshl_add_u32 v14, v3, 2, s22
    v_lshl_add_u32 v15, v3, 2, s23
    s_waitcnt lgkmcnt(0)
    s_add_u32 s24, s6, 4096
    s_addc_u32 s25, s7, 0
    s_add_u32 s26, s6, 8192
    s_addc_u32 s27, s7, 0
    s_add_u32 s28, s6, 12288
    s_addc_u32 s29, s7, 0
    """)
    a.stamp(0); a.stamp(14)
    bases = ["s[6:7]", "s[24:25]", "s[26:27]", "s[28:29]"]
    def vdma(g4, sel, tag=""):
        return [f"s_add_u32 m0, s21, {sel*16384 + (g4 & ~3)*1024}",
                f"global_load_lds_dwordx4 v{6+sel}, {bases[g4>>2]} offset:{(g4&3)*1024}{tag}"]
    a(vdma(15, 0)); a(vdma(15, 1))
    a("""
    global_load_dword v16, v14, s[6:7]
    global_load_dword v18, v15, s[6:7]
    global_load_dword v17, v14, s[26:27]
    global_load_dword v19, v15, s[26:27] ;@tag=first
    """)
    pair_items = []
    for i in range(8):
        it = []
        for g4 in (2*i, 2*i+1):
            if g4 != 15:
                it.append(vdma(g4, 0)); it.append(vdma(g4, 1))
        for kap in (i, 8+i):
            for rho in range(2):
                tag = f" ;@tag=p{i}" if (kap >= 8 and rho == 1) else ""
                it.append([f"global_load_dwordx4 {ar(XF(rho,kap),4)}, v{12+rho}, {bases[kap>>2]} offset:{(kap&3)*1024}{tag}"])
        pair_items.append(it)
    for it in pair_items[0]: a(it)
    QB = [4, 0, 2, 1, 3, 4, 0]
    def wdma_items(p):
        l = []
        for k in range(8):
            tag = f" ;@tag=w{p}" if k == 7 else ""
            x = [f"s_add_u32 m0, s21, {QB[p]*8192 + (k & 4)*1024}",
                 f"global_load_lds_dwordx4 v24, {bases[k>>2]} offset:{(k&3)*1024}{tag}"]
            if k == 7: x.append("v_add_u32 v24, 0x8000, v24")
            l.append(x)
        return l
    a.stamp(1)
    su = L(f"""
    v_mov_b32 v127, 0x3f80
    v_lshlrev_b32 v8, 7, v3
    v_add_u32 v9, s18, v8
    v_add_u32 v8, s17, v8
    s_mul_i32 s30, s16, {7*32768}
    s_lshl_b32 s31, s14, 13
    s_add_u32 s30, s30, s31
    s_add_u32 s30, s30, {WS_WUP}
    v_add_u32 v24, s30, v5
    s_mov_b32 s32, 0xffff0000
    s_mov_b32 s33, 0xffff0000
    v_lshlrev_b32 v25, 2, v4
    v_cvt_f32_u32 v25, v25
    v_mov_b32 v26, 0x80008000
    """)
    for rho in range(2):
        su += L(f"""
        v_cvt_f32_u32 v27, v{8+rho}
        v_mul_f32 v27, {hx(1.0/2048)}, v27
        v_mul_f32 v28, v27, v25
        """)
        for r in range(4):
            su.append(f"v_cos_f32 v{72+r}, v28")
            su.append(f"v_sin_f32 v{76+r}, v28")
            if r < 3: su.append("v_add_f32 v28, v27, v28")
        for r in range(8): su.append(f"v_mul_f32 v{80+r}, 0.5, v{72+r}")
        su += L(f"""
        v_cvt_pk_bf16_f32 v88, v72, v73
        v_cvt_pk_bf16_f32 v89, v74, v75
        v_cvt_pk_bf16_f32 v90, v76, v77
        v_cvt_pk_bf16_f32 v91, v78, v79
        v_cvt_pk_bf16_f32 v92, v80, v81
        v_cvt_pk_bf16_f32 v93, v82, v83
        v_cvt_pk_bf16_f32 v94, v84, v85
        v_cvt_pk_bf16_f32 v95, v86, v87
        v_xor_b32 v96, v26, v90
        v_xor_b32 v97, v26, v91
        v_xor_b32 v98, v26, v94
        v_xor_b32 v99, v26, v95
        """)
        for dst, c0, c1 in ((TP(rho,0), 98, 92), (TP(rho,1), 94, 92), (T(rho,0), 88, 90), (T(rho,1), 88, 96)):
            for k in range(2):
                su.append(f"v_cndmask_b32 v{dst+k}, v{c0+k}, v{c1+k}, s[32:33]")
                su.append(f"v_cndmask_b32 v{dst+2+k}, v{c1+k}, v{c0+k}, s[32:33]")
    su += L(f"""
    v_lshrrev_b32 v27, 2, v3
    v_lshl_add_u32 v27, v4, 2, v27
    v_lshlrev_b32 v27, 6, v27
    v_and_b32 v28, 3, v3
    v_lshl_add_u32 v27, v28, 4, v27
    v_and_b32 v28, 1, v4
    v_lshl_add_u32 v27, v28, 3, v27
    v_add_u32 v120, s21, v27
    v_xor_b32 v121, 8, v120
    v_add_u32 v122, s19, v120
    v_add_u32 v123, s19, v121
    v_add_u32 v124, s20, v120
    v_add_u32 v125, s20, v121
    v_add_u32 v27, 48, v3
    v_lshlrev_b32 v126, 2, v27
    """)
    a(weave(su, pair_items[1] + pair_items[2]))
    def trread(dst, rho, d, g):
        if d == 0: b0, b1, off = 120, 121, rho*16384 + g*1024
        else: b0, b1, off = 122+2*rho, 123+2*rho, g*1024
        return [f"ds_read_b64_tr_b16 {ar(dst,2)}, v{b0} offset:{off}", f"ds_read_b64_tr_b16 {ar(dst+2,2)}, v{b1} offset:{off}"]
    a.stamp(2)
    a("@waitv first")
    for rho in range(2):
        a(trread(VA(rho,0), rho, 0, 15)); a(trread(VA(rho,1), rho, 1, 15))
    se = L(f"""
    v_lshlrev_b32 v27, 3, v4
    v_sub_u32 v28, v3, v27
    v_sub_u32 v29, 0, v3
    v_sub_u32 v29, v29, v27
    """)
    for (d, tb, src, add) in ((0,0,28,0), (0,1,28,16), (1,0,29,31), (1,1,29,15)):
        se += L(f"""
        v_add_u32 v30, {add}, v{src}
        v_and_b32 v31, 1, v30
        v_lshlrev_b32 v31, 4, v31
        v_lshlrev_b32 v31, v31, v127
        v_lshrrev_b32 v30, 1, v30
        """)
        for jj in range(4):
            se.append(f"v_cmp_eq_u32 s[{44+2*jj}:{45+2*jj}], {jj}, v30")
        for jj in range(4):
            se.append(f"v_cndmask_b32 v{SEL(d,tb)+jj}, 0, v31, s[{44+2*jj}:{45+2*jj}]")
    a(se[:20])
    a("s_waitcnt lgkmcnt(0)")
    for rho in range(2):
        a(f"{MF16} {vr(ACC(rho,0),4)}, {ar(VA(rho,0),4)}, {vr(TP(rho,0),4)}, 0")
    for rho in range(2):
        a(f"{MF16} {vr(ACC(rho,0),4)}, {ar(VA(rho,1),4)}, {vr(TP(rho,1),4)}, {vr(ACC(rho,0),4)}")
    a(se[20:38])
    for rho in range(2):
        a(f"ds_bpermute_b32 v{100+rho}, v126, v{ACC(rho,0)+3}")
    a(se[38:])
    a(f"""
    v_mov_b32 v27, s17
    v_mov_b32 v28, s18
    v_cndmask_b32 v27, v27, v28, s[32:33]
    v_lshrrev_b32 v28, 1, v4
    v_lshlrev_b32 v10, 14, v27
    v_lshl_add_u32 v10, v28, 9, v10
    v_lshl_add_u32 v10, v3, 4, v10
    v_add_u32 v10, {WS_HC}, v10
    s_mov_b32 s36, 57344
    v_mul_lo_u32 v11, v27, s36
    v_lshl_add_u32 v11, v28, 8, v11
    v_lshl_add_u32 v11, v3, 4, v11
    s_mov_b32 s34, 0
    s_mov_b32 s35, 0xffff0000
    v_mov_b32 v20, 0
    v_mov_b32 v21, 0
    v_mov_b32 v22, 0
    v_mov_b32 v23, 0
    s_waitcnt lgkmcnt(0)
    """)
    for rho in range(2):
        a(f"v_add_f32 v{16+2*rho}, v{16+2*rho}, v{100+rho}")
        for r in range(4):
            a(f"v_sub_f32 v{NEGM(rho)+r}, 0, v{16+2*rho}")
    mt_store = f"""s_cmp_eq_u32 s16, 0
    s_cbranch_scc0 K2_nomt
    @cond_begin
    v_add_u32 v14, {WS_MT - WS_MX}, v14
    v_add_u32 v15, {WS_MT - WS_MX}, v15
    s_mov_b64 s[36:37], exec
    s_mov_b64 exec, 0xffff
    global_store_dword v14, v16, s[6:7]
    global_store_dword v15, v18, s[6:7]
    s_mov_b64 exec, s[36:37]
    @cond_end
    K2_nomt:"""
    units = [(i, d, rho) for i in range(8) for d in range(2) for rho in range(2)]
    def reads(u):
        i, d, rho = units[u]
        o = []
        if rho == 0 and d == 0: o.append(f"@waitv p{i}")
        o += trread(VA(u & 3, 0), rho, d, 2*i) + trread(VA(u & 3, 1), rho, d, 2*i+1)
        return o
    def mm(u):
        i, d, rho = units[u]
        s = u & 3; kap = i + 8*d
        o = []
        for tb in range(2):
            o.append(f"{MF16} {vr(ACC(s,tb),4)}, {ar(VA(s,tb),4)}, {vr(T(rho,d),4)}, {vr(NEGM(rho),4)}")
        for tb in range(2):
            o.append(f"{MF16} {vr(ACC(s,tb),4)}, {vr(SEL(d,tb),4)}, {ar(XF(rho,kap),4)}, {vr(ACC(s,tb),4)}")
        return o
    def post(u):
        i, d, rho = units[u]
        s = u & 3; kap = i + 8*d
        h = H(rho, kap)
        o = []
        for tb in range(2):
            o.append(f"v_cvt_pk_bf16_f32 v{h+2*tb}, v{ACC(s,tb)}, v{ACC(s,tb)+1}")
            o.append(f"v_cvt_pk_bf16_f32 v{h+2*tb+1}, v{ACC(s,tb)+2}, v{ACC(s,tb)+3}")
        return o
    def post2(kap):
        h0 = H(0, kap); h = H(1, kap)
        o = []
        for k in range(4): o.append(f"v_permlane16_swap_b32 v{h0+k}, v{h+k}")
        for k in range(4):
            o.append(f"v_dot2c_f32_bf16 v{20+(k&1)}, v{h0+k}, v{h0+k}")
            o.append(f"v_dot2c_f32_bf16 v{22+(k&1)}, v{h+k}, v{h+k}")
        o.append(f"""s_cmp_eq_u32 s16, {kap}
        s_cbranch_scc0 K2_nh{kap}
        @cond_begin
        v_add_u32 v27, {kap*1024}, v10
        global_store_dwordx4 v27, {vr(h0,4)}, s[6:7]
        global_store_dwordx4 v27, {vr(h,4)}, s[6:7] offset:256
        @cond_end
        K2_nh{kap}:""")
        return o
    def fix(rho):
        F = ACC((28+rho)&3, 1) + 3; M = ACC((30+rho)&3, 1) + 3
        return L(f"""
        v_add_f32 v27, v{F}, v{M}
        v_mul_f32 v27, 0.5, v27
        v_sub_f32 v28, v{17+2*rho}, v{16+2*rho}
        v_cndmask_b32 v{F}, v{F}, v27, s[34:35]
        v_cndmask_b32 v{M}, v{M}, v28, s[34:35]
        """)
    a.stamp(3)
    a(reads(0)); a(reads(1))
    extra = {0: pair_items[3] + pair_items[4][:4], 1: pair_items[4][4:] + pair_items[5], 2: pair_items[6], 3: pair_items[7],
             4: wdma_items(0), 5: wdma_items(1), 6: wdma_items(2), 7: []}
    for i in range(8):
        seq = []
        for u in range(4*i, 4*i+4):
            if u + 2 < 32:
                seq += reads(u+2); seq.append("s_waitcnt lgkmcnt(8)")
            elif u + 1 < 32: seq.append("s_waitcnt lgkmcnt(4)")
            else: seq.append("s_waitcnt lgkmcnt(0)")
            fill = []
            if 1 <= u <= 28: fill += post(u-1)
            if u >= 3 and u <= 29 and units[u-2][2] == 1 and u-2 < 28:
                fill += post2(units[u-2][0] + 8*units[u-2][1])
            seq += interleave(mm(u), fill)
        if i == 0: seq.append(mt_store)
        a(weave(seq, extra[i]))
    a(fix(0)); a(fix(1))
    tail = []
    for u in range(28, 32): tail += post(u)
    tail += post2(7) + post2(15)
    a(weave(tail, wdma_items(3)))
    a.stamp(4)
    a(f"""
    v_add_f32 v20, v20, v21
    v_add_f32 v22, v22, v23
    v_add_f32 v20, v20, v22
    v_mov_b32 v21, v20
    v_permlane32_swap_b32 v20, v21
    v_add_f32 v20, v20, v21
    s_mov_b32 s38, {hx(1.0/512)}
    v_mov_b32 v27, {hx(1e-5)}
    v_fma_f32 v20, v20, s38, v27
    v_rsq_f32 v20, v20
    v_mul_f32 v21, {hx(-math.log2(math.e))}, v20
    """)
    for k in range(4): a(f"v_add_u32 v{32+k}, {k*REG}, v5")
    a("s_mul_i32 s42, s16, 7")
    MACC = lambda st: 72 + st*16
    def wread(p, phi):
        return f"ds_read_b128 {ar(WF(phi & 7),4)}, v{32 + (phi>>3)} offset:{QB[p]*8192 + (phi&7)*1024}"
    def epilogue(p):
        st = p & 1
        f = [f"""s_add_u32 s43, s42, {p}
              s_lshl_b32 s44, s43, 9
              s_add_u32 s44, s44, {WS_HH}
              s_add_u32 s40, s6, s44
              s_addc_u32 s41, s7, 0"""]
        m = MACC(st)
        for r in range(8): f.append(f"v_mul_f32 v{40+r}, v21, v{m+r}")
        for r in range(8):
            f.append(f"v_exp_f32 v{40+r}, v{40+r}")
            f.append(f"v_mul_f32 v{48+r}, v20, v{m+8+r}")
        for r in range(8): f.append(f"v_add_f32 v{40+r}, 1.0, v{40+r}")
        for r in range(8): f.append(f"v_rcp_f32 v{40+r}, v{40+r}")
        for r in range(8): f.append(f"v_mul_f32 v{40+r}, v{40+r}, v{48+r}")
        for r in range(4): f.append(f"v_cvt_pk_bf16_f32 v{56+r}, v{40+2*r}, v{41+2*r}")
        f.append("global_store_dwordx4 v11, v[56:59], s[40:41]")
        return f
    PF = 6
    bar = {0: "w0", 1: "w1,w2", 3: "w3,w4", 5: "w5,w6"}
    for p in range(7):
        if p in bar:
            a(f"@waitv {bar[p]}")
            a("s_barrier")
            a.stamp(5+p)
            pre = [wread(p, x) for x in range(PF)]
        else:
            pre = []
        main = pre
        st = p & 1
        nxt_ok = (p+1 < 7) and (p+1 not in bar)
        for phi in range(32):
            kap, aa = phi >> 1, phi & 1
            if phi + PF < 32:
                main.append(wread(p, phi+PF)); main.append(f"s_waitcnt lgkmcnt({PF})")
            elif nxt_ok:
                main.append(wread(p+1, phi+PF-32)); main.append(f"s_waitcnt lgkmcnt({PF})")
            else:
                main.append(f"s_waitcnt lgkmcnt({31-phi})")
            c = "0" if phi == 0 else vr(MACC(st),16)
            main.append(f"{MF32} {vr(MACC(st),16)}, {ar(WF(phi&7),4)}, {vr(H(aa,kap),4)}, {c}")
        fill = []
        if p == 0: fill += wdma_items(4)
        if p == 3: fill = fill + wdma_items(5) + wdma_items(6)
        if p > 0:
            ep = epilogue(p-1)
            fill = weave(ep, fill) if fill else ep
        a(interleave(main, fill))
    a.stamp(12)
    a(epilogue(6))
    if STAMPS: a("s_waitcnt vmcnt(0)")
    a.stamp(13); a.stamp(15)
    a.dump_stamps(WS_ST + (1 << 20))
    a("K2_done:")
    a("s_endpgm")
    return a.finalize()

K3_STG = 28672
K3_LDS = 5*K3_STG
def gen_k3():
    a = Asm(); a.stamps = STAMPS
    WD = lambda k3: k3*4
    HB = lambda s: 64 + s*4
    ACC = lambda k: 32 + k*4
    HC = lambda k, x: 96 + (k*2 + x)*4
    SEL = lambda x: 48 + x*4
    a(f"""
    s_cmp_ge_u32 s2, 256
    s_cbranch_scc1 K3_done
    s_load_dwordx2 s[4:5], s[0:1], 72
    s_load_dwordx2 s[6:7], s[0:1], 88
    v_lshrrev_b32 v1, 6, v0
    v_and_b32 v2, 63, v0
    v_readfirstlane_b32 s14, v1
    v_and_b32 v3, 15, v2
    v_lshrrev_b32 v4, 4, v2
    v_lshlrev_b32 v5, 4, v2
    s_and_b32 s15, s2, 7
    s_lshl_b32 s15, s15, 2
    s_bfe_u32 s16, s2, 0x20003
    s_add_u32 s15, s15, s16
    s_lshr_b32 s16, s2, 5
    s_lshl_b32 s17, s16, 2
    s_add_u32 s17, s17, s14          ; nu
    s_lshl_b32 s18, s15, 2           ; tt0
    s_add_u32 s19, s18, s14
    s_mul_i32 s20, s17, {56*1024}
    s_add_u32 s20, s20, {WS_WD}
    v_add_u32 v6, s20, v5
    s_mul_i32 s20, s19, 57344
    s_add_u32 s20, s20, {WS_HH}
    v_add_u32 v7, s20, v5
    s_mul_i32 s21, s14, 7168
    s_waitcnt lgkmcnt(0)
    s_add_u32 s24, s6, 4096
    s_addc_u32 s25, s7, 0
    """)
    a.stamp(0); a.stamp(14)
    def items(sg):
        buf = (sg % 5)*K3_STG
        l = []
        for k in range(7):
            x = [f"s_add_u32 m0, s21, {buf + (k & 4)*1024}",
                 f"global_load_lds_dwordx4 v7, {'s[6:7]' if k < 4 else 's[24:25]'} offset:{(k&3)*1024}"]
            if k == 6: x.append("v_add_u32 v7, 7168, v7")
            l.append(x)
            tag = f" ;@tag=s{sg}" if k == 6 else ""
            x = [f"global_load_dwordx4 {ar(WD(sg*7+k),4)}, v6, {'s[6:7]' if k < 4 else 's[24:25]'} offset:{(k&3)*1024}{tag}"]
            if k == 6: x.append("v_add_u32 v6, 7168, v6")
            l.append(x)
        return l
    for it in items(0): a(it)
    su = L(f"""
    v_lshlrev_b32 v8, 7, v3
    v_add_u32 v8, s18, v8
    v_lshlrev_b32 v9, 10, v8
    s_lshl_b32 s20, s17, 5
    v_add_u32 v9, s20, v9
    v_lshl_add_u32 v9, v4, 3, v9
    s_lshl_b32 s20, s18, 6
    s_add_u32 s20, s20, {WS_MT}
    v_lshl_add_u32 v11, v3, 2, s20
    """)
    su.append(f"""s_lshr_b32 s30, s17, 1
    s_lshl_b32 s31, s17, 4
    s_sub_u32 s32, 496, s31
    s_lshr_b32 s32, s32, 5
    s_add_u32 s32, s32, 8
    s_cmp_lt_u32 s17, 16
    s_cselect_b32 s30, s30, s32
    s_sub_u32 s33, s30, 1
    s_cmp_eq_u32 s17, 0
    s_cselect_b32 s33, 15, s33
    s_cmp_eq_u32 s17, 16
    s_cselect_b32 s33, 7, s33
    s_max_i32 s33, s33, 0
    s_and_b32 s34, s17, 1
    s_cmp_gt_u32 s17, 16
    s_cselect_b32 s34, 1, s34
    s_lshl_b32 s35, s18, 14
    s_add_u32 s35, s35, {WS_HC}
    s_lshl_b32 s36, s30, 10
    s_add_u32 s36, s36, s35
    v_add_u32 v14, s36, v5
    s_lshl_b32 s36, s33, 10
    s_add_u32 s36, s36, s35
    v_add_u32 v15, s36, v5""")
    su += L(f"""
    v_add_u32 v16, s31, v3
    v_mov_b32 v23, 0x3f80
    v_add_u32 v12, {2*K3_STG}, v5
    v_add_u32 v13, {4*K3_STG}, v5
    """)
    for x, sk in ((0, 30), (1, 33)):
        su.append(f"""s_and_b32 s36, s{sk}, 7
        s_lshl_b32 s36, s36, 5
        s_sub_u32 s37, -1, s36
        s_sub_u32 s38, 511, s36
        s_cmp_lt_u32 s{sk}, 8
        s_cselect_b32 s37, s37, s38
        s_cselect_b32 s38, 1, -1
        s_cmp_eq_u32 s{sk}, 15
        s_cselect_b32 s39, 0, -1
        s_cselect_b32 s40, 256, -1""")
        su += L(f"""
        v_mul_lo_u32 v17, v16, s38
        v_add_u32 v17, s37, v17
        v_cmp_eq_u32 vcc, s40, v16
        v_cndmask_b32 v17, v17, -1, vcc
        v_cmp_eq_u32 vcc, s39, v16
        v_cndmask_b32 v17, v17, 31, vcc
        """)
        if x == 1:
            su.append("""s_cmp_eq_u32 s34, 1
            s_cselect_b32 s36, -1, 0
            v_or_b32 v17, s36, v17""")
        su += L(f"""
        v_bfe_u32 v18, v17, 2, 2
        v_cmp_eq_u32 vcc, v18, v4
        v_cndmask_b32 v17, -1, v17, vcc
        v_lshrrev_b32 v18, 4, v17
        v_lshlrev_b32 v18, 1, v18
        v_bfe_u32 v19, v17, 1, 1
        v_add_u32 v18, v18, v19
        v_and_b32 v19, 1, v17
        v_lshlrev_b32 v19, 4, v19
        v_lshlrev_b32 v19, v19, v23
        """)
        for jj in range(4):
            su.append(f"v_cmp_eq_u32 vcc, {jj}, v18")
            su.append(f"v_cndmask_b32 v{SEL(x)+jj}, 0, v19, vcc")
    a(weave(su, items(1) + items(2)))
    hcl = []
    for k in range(4):
        hcl.append([f"global_load_dwordx4 {vr(HC(k,0),4)}, v14, s[6:7]", "v_add_u32 v14, 0x4000, v14"])
        hcl.append([f"global_load_dwordx4 {vr(HC(k,1),4)}, v15, s[6:7]", "v_add_u32 v15, 0x4000, v15"])
        hcl.append([f"global_load_dword v{24+k}, v11, s[6:7] offset:{64*k}"])
    a.stamp(1)
    def rd(slot, sg, k, tile):
        b = sg % 5
        base = (5, 5, 12, 12, 13)[b]
        off = (b & 1)*K3_STG if b < 4 else 0
        return f"ds_read_b128 {vr(HB(slot),4)}, v{base} offset:{off + tile*7168 + k*1024}"
    for sg in range(8):
        a(f"@waitv s{sg}")
        a("s_barrier")
        a.stamp(2+sg)
        seq = [(k, t) for k in range(7) for t in range(4)]
        main = [rd(x & 7, sg, *seq[x]) for x in range(6)]
        for x, (k, t) in enumerate(seq):
            if x + 6 < 28:
                main.append(rd((x+6) & 7, sg, *seq[x+6])); main.append("s_waitcnt lgkmcnt(6)")
            else:
                main.append(f"s_waitcnt lgkmcnt({27-x})")
            c = "0" if (sg == 0 and k == 0) else vr(ACC(t),4)
            main.append(f"{MF16} {vr(ACC(t),4)}, {ar(WD(sg*7+k),4)}, {vr(HB(x&7),4)}, {c}")
        fill = []
        if sg + 3 < 8: fill += items(sg+3)
        if sg == 4: fill += hcl
        a(interleave(main, fill))
        if sg == 7:
            a("s_waitcnt vmcnt(0)")
            for x in range(2):
                for t in range(4):
                    a(f"{MF16} {vr(ACC(t),4)}, {vr(SEL(x),4)}, {vr(HC(t,x),4)}, {vr(ACC(t),4)}")
    a.stamp(10)
    for k in range(4):
        for r in range(4):
            a(f"v_add_f32 v{ACC(k)+r}, v{24+k}, v{ACC(k)+r}")
        a(f"v_cvt_pk_bf16_f32 v{56+2*k}, v{ACC(k)}, v{ACC(k)+1}")
        a(f"v_cvt_pk_bf16_f32 v{57+2*k}, v{ACC(k)+2}, v{ACC(k)+3}")
        a(f"global_store_dwordx2 v9, v[{56+2*k}:{57+2*k}], s[4:5] offset:{1024*k}")
    if STAMPS: a("s_waitcnt vmcnt(0)")
    a.stamp(11); a.stamp(15)
    a.dump_stamps(WS_ST + (2 << 20))
    a("K3_done:")
    a("s_endpgm")
    return a.finalize()

def build_all():
    out = []
    hdr = open("sequential_preLN__spectral_fnet__glu_gated_glu__prompt.s.ref").read().split("\n")
    out += [l for l in hdr if l.startswith(";") and "@launch" not in l]
    out.append(f"; @launch kernel=k1_kernel grid=(256,1,1) block=(512,1,1) lds={K1_LDS}")
    out.append(f"; @launch kernel=k2_kernel grid=(256,1,1) block=(256,1,1) lds={K2_LDS}")
    out.append(f"; @launch kernel=k3_kernel grid=(256,1,1) block=(256,1,1) lds={K3_LDS}")
    out.append('.amdgcn_target "amdgcn-amd-amdhsa--gfx950"')
    out.append(".text")
    out.append(header("k1_kernel") + gen_k1())
    out.append(header("k2_kernel") + gen_k2())
    out.append(header("k3_kernel") + gen_k3())
    out.append('.section .rodata,"a"')
    for k in (kd("k1_kernel", 256, 256), kd("k2_kernel", 256+192, 256), kd("k3_kernel", 128+224, 128)):
        out.append(".p2align 6\n" + k)
    return "\n".join(out) + "\n"

if __name__ == "__main__":
    if len(sys.argv) > 2 and sys.argv[2] == "stamps": STAMPS = True
    open(sys.argv[1] if len(sys.argv) > 1 else "v3.s", "w").write(build_all())
```

```python
import sys, math, struct
from asmlib import Asm, vr, ar, sr, weave, L

WS_V   = 0
WS_MX  = 2 << 20
WS_X0  = (2 << 20) + 8192
WS_MT  = (2 << 20) + (64 << 10)
WS_FL  = (2 << 20) + (128 << 10)
WS_XP  = 3 << 20
WS_HC  = 5 << 20
WS_WUP = 8 << 20
WS_WD  = 12 << 20
WS_HH  = 16 << 20
WS_ST  = 32 << 20
STAMPS = False
ROT2 = False
ROTP = False
ROT3 = False
DOTS_IN_C = True
FUSE = True
WD_IN_MAIN = 6

def f2u(f): return struct.unpack('<I', struct.pack('<f', f))[0]
def hx(f): return "0x%08x" % f2u(f)
def kd(name, vgpr, accum, sgpr=100):
    return f"""
.amdhsa_kernel {name}
  .amdhsa_next_free_vgpr {vgpr}
  .amdhsa_next_free_sgpr {sgpr}
  .amdhsa_accum_offset {accum}
  .amdhsa_group_segment_fixed_size 0
  .amdhsa_kernarg_size 96
  .amdhsa_user_sgpr_count 2
  .amdhsa_user_sgpr_kernarg_segment_ptr 1
  .amdhsa_system_sgpr_workgroup_id_x 1
.end_amdhsa_kernel
"""
def header(name):
    return f".globl {name}\n.p2align 8\n.type {name},@function\n{name}:\n"

def interleave(main, fill, key='v_mfma'):
    out = []
    nm = sum(1 for m in main if m.startswith(key))
    fi = 0; seen = 0
    for m in main:
        out.append(m)
        if m.startswith(key):
            seen += 1
            tgt = (len(fill) * seen + nm - 1) // nm
            while fi < tgt:
                out.append(fill[fi]); fi += 1
    out += fill[fi:]
    return out

MF16 = "v_mfma_f32_16x16x32_bf16"
MF32 = "v_mfma_f32_32x32x16_bf16"

K1_LDS_F = 131072
K1_LDS_HELP = 147456
K1_LDS = 163840

def gen_k1():
    a = Asm(); a.stamps = STAMPS
    CS = lambda t, cs, k: 64 + ((t*2 + cs)*4 + k)*4
    G = lambda hi, rho, tile: 128 + ((hi*2 + rho)*2 + tile)*4
    FB = lambda s, tile: 160 + (s*6 + tile)*4
    XB = lambda s, hi, rho: 160 + (s*6 + 2 + hi*2 + rho)*4
    SM = lambda rho: 208 + rho*4
    SQ = lambda rho: 216 + rho*4
    ONES = 224
    a(f"""
    s_cmp_ge_u32 s2, 256
    s_cbranch_scc1 K1_done
    s_load_dwordx2 s[4:5], s[0:1], 0
    s_load_dwordx2 s[6:7], s[0:1], 88
    s_load_dwordx4 s[8:11], s[0:1], 48
    s_load_dwordx2 s[12:13], s[0:1], 64
    v_lshrrev_b32 v1, 6, v0
    v_and_b32 v2, 63, v0
    v_readfirstlane_b32 s14, v1
    v_and_b32 v3, 15, v2
    v_lshrrev_b32 v4, 4, v2
    v_lshlrev_b32 v13, 4, v2         ; lane*16
    s_and_b32 s15, s2, 7
    s_lshl_b32 s15, s15, 1
    s_bfe_u32 s16, s2, 0x10003
    s_or_b32 s15, s15, s16           ; s2 index
    s_lshr_b32 s16, s2, 4            ; eb
    s_cmp_ge_u32 s14, 4
    s_cbranch_scc1 K1_helper
    """)
    a.stamp(0); a.stamp(14)
    a(f"""
    v_lshrrev_b32 v5, 2, v2
    v_lshlrev_b32 v5, 17, v5
    s_lshl_b32 s17, s14, 15
    s_lshl_b32 s18, s15, 10
    s_add_u32 s18, s18, s17
    v_add_u32 v5, s18, v5
    v_sub_u32 v6, 0, v4
    v_xor_b32 v6, v6, v2
    v_and_b32 v6, 3, v6
    v_lshl_add_u32 v7, v6, 4, v5
    s_and_b32 s46, s16, 7            ; rot
    """)
    for b in range(8):
        a(f"""
        s_add_u32 s47, s46, {b}
        s_and_b32 s47, s47, 7
        s_lshl_b32 s47, s47, 6
        v_add_u32 v{240+b}, s47, v7
        """)
    a("""
    s_waitcnt lgkmcnt(0)
    s_add_u32 s48, s4, 0x4000
    s_addc_u32 s49, s5, 0
    """)
    xi = []
    for k in range(8):
        for hi in range(2):
            for rho in range(2):
                kk = k + 8*hi
                tag = f" ;@tag=x{k}" if (hi == 1 and rho == 1) else ""
                xi.append([f"s_add_u32 m0, s17, {(rho*16+kk)*1024 - 512*hi}",
                           f"global_load_lds_dwordx4 v{240+k}, {'s[48:49]' if rho else 's[4:5]'} offset:{512*hi}{tag}"])
    for it in xi[:8]: a(it)
    a.stamp(1)
    fg = L(f"""
    s_mov_b32 s20, 0x41c80000
    s_lshl_b32 s21, s16, 4
    s_add_u32 s21, s21, 1
    v_add_u32 v9, s21, v3
    v_cvt_f32_u32 v10, v9
    v_mul_f32 v10, {hx(-1.0/512)}, v10
    v_lshlrev_b32 v11, 31, v9
    v_or_b32 v56, 1.0, v11
    s_lshl_b32 s21, s14, 1
    s_add_u32 s21, s21, s46
    s_add_u32 s50, s21, 1
    s_and_b32 s21, s21, 7
    s_and_b32 s50, s50, 7
    s_lshl_b32 s21, s21, 5
    s_lshl_b32 s50, s50, 5
    v_lshlrev_b32 v12, 3, v4
    v_add_u32 v62, s50, v12
    v_add_u32 v12, s21, v12
    v_cvt_f32_u32 v12, v12
    v_cvt_f32_u32 v62, v62
    v_mul_f32 v12, v10, v12
    v_mul_f32 v62, v10, v62
    s_lshl_b32 s21, s14, 12
    s_add_u32 s21, s21, {K1_LDS_F}
    v_add_u32 v14, s21, v13
    """)
    fg.append("""s_cmp_eq_u32 s16, 15
    s_cselect_b32 s22, 0x80008000, 0
    s_cselect_b32 s23, 0x80008000, 0
    s_cselect_b32 s18, 0x8000, 0
    s_cmp_eq_u32 s14, 0
    s_cselect_b32 s18, s18, 0
    s_mov_b32 s19, 0""")
    fg += L("""
    v_mov_b32 v15, 0x3f80
    v_cndmask_b32 v57, v56, 0, s[22:23]
    v_cndmask_b32 v58, 0, 1.0, s[22:23]
    """)
    for kk in range(2):
        if kk == 1: fg.append("v_mov_b32 v12, v62")
        for j in range(8):
            fg.append(f"v_cos_f32 v{16+j}, v12")
            fg.append(f"v_sin_f32 v{24+j}, v12")
            if j < 7: fg.append("v_add_f32 v12, v10, v12")
        o = 32 + kk*8
        for jj in range(4):
            fg.append(f"v_cvt_pk_bf16_f32 v{o+jj}, v{16+2*jj}, v{17+2*jj}")
            fg.append(f"v_cvt_pk_bf16_f32 v{o+4+jj}, v{24+2*jj}, v{25+2*jj}")
        if kk == 1: fg.append(f"v_cndmask_b32 v{o+4}, v{o+4}, v15, s[18:19]")
        fg.append(f"ds_write_b128 v14, {vr(o,4)} offset:{kk*2048}")
        fg.append(f"ds_write_b128 v14, {vr(o+4,4)} offset:{kk*2048+1024}")
    ad = L(f"""
    v_lshrrev_b32 v5, 2, v3
    v_sub_u32 v5, 0, v5
    v_and_b32 v5, 3, v5
    v_xor_b32 v6, v5, v4
    v_lshlrev_b32 v6, 4, v6
    v_lshl_add_u32 v6, v3, 6, v6
    v_add_u32 v6, s17, v6
    v_add_u32 v61, {K1_LDS_F}, v13
    """)
    for r in range(4): ad.append(f"v_mov_b32 v{ONES+r}, 0x3f803f80")
    a(weave(fg + ad, xi[8:16]))
    a("s_waitcnt lgkmcnt(0)")
    a.stamp(2)
    a("s_barrier")
    cs = L(f"""
    s_lshl_b32 s21, s14, 4
    v_add_u32 v9, s21, v3
    v_cvt_f32_u32 v10, v9
    v_mul_f32 v10, {hx(1.0/128)}, v10
    v_mul_f32 v11, {hx(8.0)}, v10
    v_lshlrev_b32 v12, 5, v4
    v_cvt_f32_u32 v12, v12
    v_mul_f32 v12, v10, v12
    v_mov_b32 v15, 0x80008000
    """)
    for k in range(4):
        for hh in range(2):
            cs.append("v_mov_b32 v14, v12")
            for r in range(4):
                j = hh*4 + r
                cs.append(f"v_cos_f32 v{16+j}, v14")
                cs.append(f"v_sin_f32 v{24+j}, v14")
                if r < 3: cs.append("v_add_f32 v14, v11, v14")
            cs.append("v_add_f32 v12, v10, v12")
        for jj in range(4):
            cs.append(f"v_cvt_pk_bf16_f32 v{CS(0,0,k)+jj}, v{16+2*jj}, v{17+2*jj}")
            cs.append(f"v_cvt_pk_bf16_f32 v{CS(0,1,k)+jj}, v{24+2*jj}, v{25+2*jj}")
        for c_ in range(2):
            for jj in range(2):
                cs.append(f"v_mov_b32 v{CS(1,c_,k)+jj}, v{CS(0,c_,k)+jj}")
                cs.append(f"v_xor_b32 v{CS(1,c_,k)+2+jj}, v15, v{CS(0,c_,k)+2+jj}")
    cs.append("v_mul_u32_u24 v16, 80, v4")
    cs.append(f"""s_sub_u32 s21, 23, s16
    s_cmp_lt_u32 s16, 8
    s_cselect_b32 s21, s16, s21
    s_cselect_b32 s24, 16, 0
    s_add_u32 s50, s21, 1
    s_and_b32 s50, s50, 15
    s_sub_u32 s51, s21, s46
    s_and_b32 s51, s51, 7
    s_and_b32 s21, s21, 8
    s_add_u32 s21, s21, s51
    s_lshl_b32 s21, s21, 10
    s_sub_u32 s51, s50, s46
    s_and_b32 s51, s51, 7
    s_and_b32 s50, s50, 8
    s_add_u32 s50, s50, s51
    s_lshl_b32 s50, s50, 10
    s_mov_b32 s52, 0
    s_mov_b32 s53, 0xffff0000""")
    cs += L(f"""
    v_add_u32 v25, s21, v6
    v_add_u32 v26, 1, v4
    v_and_b32 v26, 3, v26
    v_xor_b32 v26, v26, v5
    v_lshlrev_b32 v26, 4, v26
    v_lshl_add_u32 v26, v3, 6, v26
    v_mov_b32 v27, s21
    v_mov_b32 v28, s50
    v_cndmask_b32 v27, v27, v28, s[52:53]
    v_add3_u32 v26, v26, v27, s17
    """)
    cs += L(f"""
    s_lshl_b32 s21, s14, 5
    s_add_u32 s21, s21, s15
    s_lshl_b32 s26, s21, 14
    s_lshl_b32 s27, s46, 11
    s_add_u32 s26, s26, s27
    s_lshr_b32 s27, s16, 3
    s_lshl_b32 s27, s27, 10
    s_add_u32 s26, s26, s27
    s_add_u32 s26, s26, {WS_XP}
    v_add_u32 v28, s26, v13
    v_add_u32 v29, 0x40000, v28
    v_mov_b32 v30, s24
    v_lshlrev_b32 v31, 14, v9
    s_lshl_b32 s26, s16, 10
    s_lshl_b32 s27, s15, 6
    s_add_u32 s26, s26, s27
    v_add_u32 v31, s26, v31
    v_lshl_add_u32 v31, v4, 4, v31
    v_add_u32 v17, 0x100000, v31
    v_add_u32 v18, s17, v13
    v_add_u32 v19, 0x10000, v13
    s_mov_b32 s25, {hx(1.0/512)}
    v_mov_b32 v27, {hx(1e-5)}
    """)
    def reads(k):
        s = k & 1
        o = [f"@waitv x{k}",
             f"ds_read_b128 {vr(FB(s,0),4)}, v61 offset:{(k*2)*1024}",
             f"ds_read_b128 {vr(FB(s,1),4)}, v61 offset:{(k*2+1)*1024}"]
        for hi in range(2):
            for rho in range(2):
                o.append(f"ds_read_b128 {vr(XB(s,hi,rho),4)}, v6 offset:{(rho*16 + k + 8*hi)*1024}")
        return o
    for it in xi[16:20]: a(it)
    a(reads(0))
    ncs = len(cs); per = (ncs + 6) // 7
    for k in range(8):
        seq = []
        if k < 7:
            seq += reads(k+1); seq.append("s_waitcnt lgkmcnt(6)")
        else:
            seq += L(f"""
            ds_read_b128 v[32:35], v25
            ds_read_b32 v36, v26
            ds_read_b128 v[40:43], v25 offset:16384
            ds_read_b32 v44, v26 offset:16384
            s_waitcnt lgkmcnt(4)
            """)
        s = k & 1
        if k == 0:
            seq.append(f"v_lshlrev_b32 v59, 16, v{XB(0,0,0)}")
            seq.append(f"v_lshlrev_b32 v60, 16, v{XB(0,0,1)}")
        for hi in range(2):
            for rho in range(2):
                first = (k == 0 and hi == 0)
                x = vr(XB(s,hi,rho),4)
                seq.append(f"{MF16} {vr(SQ(rho),4)}, {x}, {x}, {'0' if first else vr(SQ(rho),4)}")
                seq.append(f"{MF16} {vr(SM(rho),4)}, {x}, {vr(ONES,4)}, {'0' if first else vr(SM(rho),4)}")
        for hi in range(2):
            for rho in range(2):
                for tile in range(2):
                    c = "0" if k == 0 else vr(G(hi,rho,tile),4)
                    seq.append(f"{MF16} {vr(G(hi,rho,tile),4)}, {vr(XB(s,hi,rho),4)}, {vr(FB(s,tile),4)}, {c}")
        fill = cs[k*per:(k+1)*per] if k < 7 else []
        if k < 3:
            fill = weave(fill, xi[20+4*k:24+4*k])
        a(interleave(seq, fill))
    a.stamp(3)
    for rho in range(2):
        for r in range(4):
            a(f"ds_bpermute_b32 v{160+rho*4+r}, v16, v{SQ(rho)+r} offset:{4*r}")
    a("s_waitcnt lgkmcnt(8)")
    for rho in range(2):
        b = 32 + rho*8
        for k in range(4):
            a(f"v_alignbit_b32 v{48+rho*4+k}, v{b+k+1}, v{b+k}, v30")
        a(f"global_store_dwordx4 v{28+rho}, {vr(48+rho*4,4)}, s[6:7]")
    for rho in range(2):
        for r in range(4):
            a(f"v_mul_f32 v{SM(rho)+r}, s25, v{SM(rho)+r}")
    for rho in range(2):
        for tile in range(2):
            for r in range(4):
                a(f"v_fma_f32 v{G(0,rho,tile)+r}, v{G(1,rho,tile)+r}, v{56+tile}, v{G(0,rho,tile)+r}")
    for rho in range(2):
        for r in range(4):
            a(f"v_fma_f32 v{G(0,rho,1)+r}, -v{SM(rho)+r}, v58, v{G(0,rho,1)+r}")
    a("s_waitcnt lgkmcnt(0)")
    for rho in range(2):
        for r in range(4):
            q_ = 160+rho*4+r
            a(f"v_fma_f32 v{q_}, v{q_}, s25, v27")
            a(f"v_fma_f32 v{q_}, -v{SM(rho)+r}, v{SM(rho)+r}, v{q_}")
            a(f"v_rsq_f32 v{q_}, v{q_}")
    for rho in range(2):
        for tile in range(2):
            for r in range(4):
                a(f"v_mul_f32 v{G(0,rho,tile)+r}, v{G(0,rho,tile)+r}, v{160+rho*4+r}")
    for tile in range(2):
        for rho in range(2):
            a(f"v_cvt_pk_bf16_f32 v{184+tile*4+rho*2}, v{G(0,rho,tile)}, v{G(0,rho,tile)+1}")
            a(f"v_cvt_pk_bf16_f32 v{184+tile*4+rho*2+1}, v{G(0,rho,tile)+2}, v{G(0,rho,tile)+3}")
    a(f"""
    ds_write_b128 v18, v[184:187]
    ds_write_b128 v18, v[188:191] offset:1024
    s_cmp_lg_u32 s16, 0
    s_cbranch_scc1 K1_nomx
    @cond_begin
    s_lshl_b32 s26, s21, 6
    s_add_u32 s26, s26, {WS_MX}
    v_lshl_add_u32 v20, v4, 4, s26
    v_lshl_add_u32 v21, v3, 2, s26
    s_mov_b64 s[28:29], exec
    s_mov_b32 exec_lo, 0x00010001
    s_mov_b32 exec_hi, 0x00010001
    global_store_dwordx4 v20, {vr(SM(0),4)}, s[6:7]
    global_store_dwordx4 v20, {vr(SM(1),4)}, s[6:7] offset:1024
    s_mov_b64 exec, 0xffff
    v_add_u32 v21, {WS_X0 - WS_MX}, v21
    global_store_dword v21, v59, s[6:7]
    global_store_dword v21, v60, s[6:7] offset:1024
    s_mov_b64 exec, s[28:29]
    @cond_end
    K1_nomx:
    s_waitcnt lgkmcnt(0)
    """)
    a.stamp(4)
    a("s_barrier")
    a.stamp(5)
    AR = lambda k: 192 + k*4
    AI = lambda k: 160 + k*4
    NR = lambda k: 232 + k*4
    for k in range(4):
        b = 13 if k < 2 else 19
        a(f"ds_read_b128 {vr(AR(k),4)}, v{b} offset:{(k&1)*32768}")
        a(f"ds_read_b128 {vr(AI(k),4)}, v{b} offset:{(k&1)*32768 + 1024}")
    VA = lambda t, c: 128 + (t*2 + c)*4
    for k in range(4):
        a(f"s_waitcnt lgkmcnt({6-2*k})")
        for jj in range(4):
            a(f"v_xor_b32 v{NR(k)+jj}, v15, v{AR(k)+jj}")
        for t in range(2):
            c0 = "0" if k == 0 else vr(VA(t,0),4)
            c1 = "0" if k == 0 else vr(VA(t,1),4)
            a(f"{MF16} {vr(VA(t,0),4)}, {vr(AR(k),4)}, {vr(CS(t,0,k),4)}, {c0}")
            a(f"{MF16} {vr(VA(t,1),4)}, {vr(AI(k),4)}, {vr(CS(t,0,k),4)}, {c1}")
        for t in range(2):
            a(f"{MF16} {vr(VA(t,0),4)}, {vr(AI(k),4)}, {vr(CS(t,1,k),4)}, {vr(VA(t,0),4)}")
            a(f"{MF16} {vr(VA(t,1),4)}, {vr(NR(k),4)}, {vr(CS(t,1,k),4)}, {vr(VA(t,1),4)}")
    for t in range(2):
        o = 32 + t*4
        a(f"v_cvt_pk_bf16_f32 v{o}, v{VA(t,0)}, v{VA(t,0)+1}")
        a(f"v_cvt_pk_bf16_f32 v{o+1}, v{VA(t,0)+2}, v{VA(t,0)+3}")
        a(f"v_cvt_pk_bf16_f32 v{o+2}, v{VA(t,1)}, v{VA(t,1)+1}")
        a(f"v_cvt_pk_bf16_f32 v{o+3}, v{VA(t,1)+2}, v{VA(t,1)+3}")
        a(f"global_store_dwordx4 v{31 if t == 0 else 17}, {vr(o,4)}, s[6:7]")
    a.stamp(6)
    if STAMPS: a("s_waitcnt vmcnt(0)")
    a.stamp(7); a.stamp(15)
    a.dump_stamps(WS_ST)
    a("s_endpgm")
    a("K1_helper:")
    a("s_mov_b32 s45, s14")
    a.stamp(0); a.stamp(14)
    a(f"""
    s_barrier
    s_sub_u32 s14, s14, 4
    s_lshl_b32 s17, s2, 2
    s_add_u32 s17, s17, s14
    s_lshl_b32 s24, s14, 12
    s_add_u32 s24, s24, {K1_LDS_HELP}
    v_add_u32 v14, s24, v13
    v_lshrrev_b32 v5, 2, v3
    v_and_b32 v6, 3, v3
    v_lshlrev_b32 v6, 3, v6
    v_lshrrev_b32 v7, 1, v4
    v_lshl_add_u32 v7, v7, 3, v5
    v_lshl_add_u32 v7, v7, 6, v6
    v_and_b32 v8, 1, v4
    v_lshl_add_u32 v7, v8, 11, v7
    v_add_u32 v7, s24, v7
    v_lshrrev_b32 v9, 1, v4
    v_lshlrev_b32 v9, 4, v9
    v_lshl_add_u32 v9, v8, 2, v9
    v_add_u32 v9, v9, v5
    v_lshl_add_u32 v9, v9, 7, v6
    v_add_u32 v9, s24, v9
    v_lshrrev_b32 v10, 3, v2
    v_and_b32 v11, 7, v2
    v_lshlrev_b32 v11, 4, v11
    v_lshl_add_u32 v10, v10, 10, v11
    s_waitcnt lgkmcnt(0)
    s_cmp_ge_u32 s17, 8
    s_cbranch_scc1 K1_nofl
    @cond_begin
    s_lshl_b32 s26, s17, 10
    s_add_u32 s26, s26, {WS_FL}
    v_add_u32 v12, s26, v13
    v_mov_b32 v16, 0
    v_mov_b32 v17, 0
    v_mov_b32 v18, 0
    v_mov_b32 v19, 0
    global_store_dwordx4 v12, v[16:19], s[6:7]
    s_nop 1
    @cond_end
    K1_nofl:
    """)
    def down_load(sreg, rb, sd):
        a(f"""
        s_lshr_b32 s26, {sreg}, 3
        s_and_b32 s27, {sreg}, 7
        s_lshr_b32 s28, s26, 1
        s_mul_i32 s28, s28, 7
        s_and_b32 s29, s26, 1
        s_lshl_b32 s29, s29, 1
        s_add_u32 s28, s28, s29          ; case A
        s_sub_u32 s29, s26, 32
        s_mul_i32 s29, s29, 7
        s_add_u32 s29, s29, 4            ; case B
        s_cmp_lt_u32 s26, 32
        s_cselect_b32 s28, s28, s29
        s_sub_u32 s29, s26, 48
        s_mul_i32 s29, s29, 14
        s_add_u32 s29, s29, 6            ; case C
        s_cmp_lt_u32 s26, 48
        s_cselect_b32 s28, s28, s29      ; tA
        s_cselect_b32 s29, 1, 7
        s_lshl_b32 s28, s28, 14
        s_lshl_b32 s29, s29, 14
        s_sub_u32 s29, s29, 0x2000
        s_lshl_b32 s35, s27, 7
        s_add_u32 s28, s28, s35
        v_add_u32 v12, s28, v10
        s_mul_i32 s28, s27, 224
        s_add_u32 s28, s28, s26
        s_lshl_b32 s28, s28, 10
        s_add_u32 s{sd}, s28, {WS_WD}
        """)
        for ins in range(4):
            a(f"global_load_dwordx4 {vr(rb+4*ins,4)}, v12, s[12:13]")
            if ins == 1: a("v_add_u32 v12, s29, v12")
            elif ins < 3: a("v_add_u32 v12, 0x2000, v12")
    def down_proc(rb, sd):
        for ins in range(4):
            a(f"ds_write_b128 v14, {vr(rb+4*ins,4)} offset:{ins*1024}")
        a(f"v_add_u32 v12, s{sd}, v13")
        a("s_waitcnt lgkmcnt(0)")
        for ct in range(4):
            a(f"ds_read_b64_tr_b16 v[{48+ct*4}:{49+ct*4}], v9 offset:{ct*32}")
            a(f"ds_read_b64_tr_b16 v[{50+ct*4}:{51+ct*4}], v9 offset:{ct*32 + 1024}")
        for ct in range(4):
            a(f"s_waitcnt lgkmcnt({6-2*ct})")
            a(f"global_store_dwordx4 v12, {vr(48+ct*4,4)}, s[6:7]")
            if ct < 3: a(f"v_add_u32 v12, {56*1024}, v12")
    a("""
    s_cmp_ge_u32 s17, 896
    s_cbranch_scc1 K1_hA_down
    """)
    a.cond_begin()
    a(f"""
    s_and_b32 s26, s17, 15
    s_lshr_b32 s27, s17, 4
    s_and_b32 s28, s26, 7
    s_lshl_b32 s28, s28, 5
    s_add_u32 s29, s28, 1
    s_sub_u32 s28, 511, s28
    s_cmp_lt_u32 s26, 8
    s_cselect_b32 s30, s29, s28
    s_cselect_b32 s31, 1, -1
    s_cselect_b32 s32, -1, 256
    s_lshl_b32 s33, s27, 6
    s_mov_b32 s34, 3584
    s_lshl_b32 s28, s27, 5
    s_add_u32 s28, s28, s26
    s_lshl_b32 s28, s28, 11
    s_add_u32 s40, s28, {WS_WUP}
    v_lshrrev_b32 v11, 2, v2
    v_and_b32 v15, 3, v2
    v_lshlrev_b32 v15, 4, v15
    """)
    for ins in range(2):
        a(f"""
        v_add_u32 v12, {16*ins}, v11
        v_mul_lo_u32 v12, v12, s31
        v_add_u32 v12, s30, v12
        v_cmp_ne_u32 vcc, s32, v12
        v_cndmask_b32 v12, 0, v12, vcc
        v_mul_lo_u32 v12, v12, s34
        v_add3_u32 v12, v12, s33, v15
        global_load_dwordx4 {vr(16+4*ins,4)}, v12, s[8:9]
        global_load_dwordx4 {vr(24+4*ins,4)}, v12, s[10:11]
        """)
    a("s_branch K1_hA_go")
    a.cond_end()
    a("K1_hA_down:")
    a.cond_begin()
    a("s_sub_u32 s25, s17, 896")
    down_load("s25", 16, 40)
    a.cond_end()
    a("K1_hA_go:")
    a("""
    s_cmp_ge_u32 s17, 320
    s_cbranch_scc1 K1_hB_skip
    """)
    a.cond_begin()
    a("s_add_u32 s25, s17, 128")
    down_load("s25", 32, 41)
    a.cond_end()
    a("K1_hB_skip:")
    a.stamp(1)
    a("s_waitcnt vmcnt(0)")
    a.stamp(2)
    a("""
    s_cmp_ge_u32 s17, 896
    s_cbranch_scc1 K1_hA_down2
    """)
    a.cond_begin()
    for ins in range(4):
        a(f"ds_write_b128 v14, {vr(16+4*ins,4)} offset:{ins*1024}")
    a("v_add_u32 v12, s40, v13")
    a("s_waitcnt lgkmcnt(0)")
    idx = 0
    for Pp in range(2):
        for aa in range(2):
            a(f"ds_read_b64_tr_b16 v[{48+idx*4}:{49+idx*4}], v7 offset:{aa*256 + Pp*32}")
            a(f"ds_read_b64_tr_b16 v[{50+idx*4}:{51+idx*4}], v7 offset:{aa*256 + Pp*32 + 1024}")
            idx += 1
    idx = 0
    for Pp in range(2):
        for aa in range(2):
            a(f"s_waitcnt lgkmcnt({6-2*idx})")
            a(f"global_store_dwordx4 v12, {vr(48+idx*4,4)}, s[6:7] offset:{aa*1024}")
            idx += 1
        if Pp == 0: a("v_add_u32 v12, 0x8000, v12")
    a("s_branch K1_hA_go2")
    a.cond_end()
    a("K1_hA_down2:")
    a.cond_begin()
    down_proc(16, 40)
    a.cond_end()
    a("K1_hA_go2:")
    a("""
    s_cmp_ge_u32 s17, 320
    s_cbranch_scc1 K1_hend
    s_nop 1
    """)
    a.cond_begin()
    down_proc(32, 41)
    a.cond_end()
    a("K1_hend:")
    a.stamp(3)
    if STAMPS: a("s_waitcnt vmcnt(0)")
    for k in range(4, 8): a.stamp(k)
    a.stamp(15)
    a.dump_stamps(WS_ST, wave="s45")
    a("K1_done:")
    a("s_endpgm")
    return a.finalize()

K2_LDS = 163840
REG = 40960


def arrive(name, off):
    return f"""s_lshl_b32 s22, s15, 9
    s_lshl_b32 s23, s16, 4
    s_add_u32 s22, s22, s23
    s_lshl_b32 s23, s14, 2
    s_add_u32 s22, s22, s23
    s_add_u32 s22, s22, {WS_FL + off}
    v_mov_b32 v27, s22
    v_mov_b32 v28, 1
    s_mov_b64 s[36:37], exec
    s_mov_b64 exec, 1
    global_store_dword v27, v28, s[6:7] sc1
    s_mov_b64 exec, s[36:37]"""
def poll_issue(name, off):
    return f"""s_lshl_b32 s22, s15, 9
    s_add_u32 s22, s22, {WS_FL + off}
    v_lshl_add_u32 v30, v2, 2, s22
    global_load_dword v29, v30, s[6:7] sc1 ;@tag=fl{name}"""
def poll_check(name, off):
    return [f"@waitv fl{name}", f"""v_cmp_eq_u32 vcc, 1, v29
    s_cmp_eq_u64 vcc, exec
    s_cbranch_scc1 KD_ready{name}
    @cond_begin
    s_mov_b32 s23, 0
    KD_poll{name}:
    global_load_dword v29, v30, s[6:7] sc1
    s_waitcnt vmcnt(0)
    v_cmp_eq_u32 vcc, 1, v29
    s_add_u32 s23, s23, 1
    s_cmp_eq_u64 vcc, exec
    s_cbranch_scc1 KD_ready{name}
    s_cmp_lt_u32 s23, 0x40000
    s_cbranch_scc1 KD_poll{name}
    @cond_end
    KD_ready{name}:"""]

KD_STG = 32768
def phaseD_setup(WD3):
    SEL = lambda x: 208 + x*4
    o = []
    o.append(f"""s_and_b32 s22, s16, 1
    s_lshl_b32 s22, s22, 1
    s_lshl_b32 s23, s15, 2
    s_add_u32 s46, s22, s23
    s_sub_u32 s47, 128, s46
    s_cmp_eq_u32 s46, 0
    s_cselect_b32 s47, 64, s47
    s_add_u32 s48, s46, 1
    s_sub_u32 s49, 128, s48
    s_cmp_eq_u32 s14, 1
    s_cselect_b32 s50, s47, s46
    s_cmp_eq_u32 s14, 2
    s_cselect_b32 s50, s48, s50
    s_cmp_eq_u32 s14, 3
    s_cselect_b32 s50, s49, s50
    s_mul_i32 s22, s50, 57344
    s_add_u32 s22, s22, {WS_HH}
    v_add_u32 v7, s22, v5
    s_lshl_b32 s51, s14, 13
    s_add_u32 s24, s6, 4096
    s_addc_u32 s25, s7, 0""")
    o.append(f"""s_lshr_b32 s30, s61, 1
    s_lshl_b32 s31, s61, 4
    s_sub_u32 s32, 496, s31
    s_lshr_b32 s32, s32, 5
    s_add_u32 s32, s32, 8
    s_cmp_lt_u32 s61, 16
    s_cselect_b32 s30, s30, s32
    s_sub_u32 s33, s30, 1
    s_cmp_eq_u32 s61, 0
    s_cselect_b32 s33, 15, s33
    s_cmp_eq_u32 s61, 16
    s_cselect_b32 s33, 7, s33
    s_max_i32 s33, s33, 0
    s_and_b32 s34, s61, 1
    s_cmp_gt_u32 s61, 16
    s_cselect_b32 s34, 1, s34
    s_lshl_b32 s52, s30, 10
    s_add_u32 s52, s52, {WS_HC}
    v_add_u32 v14, s52, v5
    s_lshl_b32 s52, s33, 10
    s_add_u32 s52, s52, {WS_HC}
    v_add_u32 v15, s52, v5""")
    o += L(f"""
    v_lshlrev_b32 v6, 2, v3
    v_add_u32 v6, {WS_MT}, v6
    v_lshlrev_b32 v9, 17, v3
    s_lshl_b32 s22, s61, 5
    v_add_u32 v9, s22, v9
    v_lshl_add_u32 v9, v4, 3, v9
    v_add_u32 v16, s31, v3
    v_mov_b32 v23, 0x3f80
    v_add_u32 v12, {2*KD_STG}, v5
    v_add_u32 v13, {4*KD_STG}, v5
    """)
    for x, sk in ((0, 30), (1, 33)):
        o.append(f"""s_and_b32 s52, s{sk}, 7
        s_lshl_b32 s52, s52, 5
        s_sub_u32 s56, -1, s52
        s_sub_u32 s57, 511, s52
        s_cmp_lt_u32 s{sk}, 8
        s_cselect_b32 s56, s56, s57
        s_cselect_b32 s57, 1, -1
        s_cmp_eq_u32 s{sk}, 15
        s_cselect_b32 s58, 0, -1
        s_cselect_b32 s59, 256, -1""")
        o += L(f"""
        v_mul_lo_u32 v17, v16, s57
        v_add_u32 v17, s56, v17
        v_cmp_eq_u32 vcc, s59, v16
        v_cndmask_b32 v17, v17, -1, vcc
        v_cmp_eq_u32 vcc, s58, v16
        v_cndmask_b32 v17, v17, 31, vcc
        """)
        if x == 1:
            o.append("""s_cmp_eq_u32 s34, 1
            s_cselect_b32 s52, -1, 0
            v_or_b32 v17, s52, v17""")
        o += L(f"""
        v_bfe_u32 v18, v17, 2, 2
        v_cmp_eq_u32 vcc, v18, v4
        v_cndmask_b32 v17, -1, v17, vcc
        v_lshrrev_b32 v18, 4, v17
        v_lshlrev_b32 v18, 1, v18
        v_bfe_u32 v19, v17, 1, 1
        v_add_u32 v18, v18, v19
        v_and_b32 v19, 1, v17
        v_lshlrev_b32 v19, 4, v19
        v_lshlrev_b32 v19, v19, v23
        """)
        for jj in range(4):
            o.append(f"v_cmp_eq_u32 vcc, {jj}, v18")
            o.append(f"v_cndmask_b32 v{SEL(x)+jj}, 0, v19, vcc")
    return o

def phaseD(a, ep6, wd_rest, WD3):
    HB = lambda s: 128 + s*4
    ACC = lambda k: 160 + k*4
    HC = lambda k, x: 176 + (k*2 + x)*4
    SEL = lambda x: 208 + x*4
    MT = 216
    su = phaseD_setup(WD3)
    def items(sg):
        buf = (sg % 5)*KD_STG
        l = []
        for k in range(8):
            tag = f" ;@tag=s{sg}" if k == 7 else ""
            x = []
            if k in (0, 4): x.append(f"s_add_u32 m0, s51, {buf + (k & 4)*1024}")
            x.append(f"global_load_lds_dwordx4 v7, {'s[6:7]' if k < 4 else 's[24:25]'} offset:{(k&3)*1024} sc1{tag}")
            if k == 7: x.append("v_add_u32 v7, 0x2000, v7")
            l.append(["\n".join(x)])
        return l
    a(poll_issue("A", 0))
    a(weave(ep6, wd_rest))
    a(su[:2])
    a(poll_check("A", 0))
    a("s_barrier")
    a.stamp(8)
    a(weave(su[2:], items(0) + items(1) + items(2) + items(3)))
    a("@waitv hh6")
    a(arrive("B", 256))
    a.stamp(9)
    hcl = []
    for k in range(4):
        hcl.append([f"s_lshl_b32 s22, s{46+k}, 14\nv_add_u32 v17, s22, v14\nglobal_load_dwordx4 {vr(HC(k,0),4)}, v17, s[6:7] sc1"])
        hcl.append([f"v_add_u32 v17, s22, v15\nglobal_load_dwordx4 {vr(HC(k,1),4)}, v17, s[6:7] sc1"])
        hcl.append([f"s_lshl_b32 s22, s{46+k}, 6\nv_add_u32 v17, s22, v6\nglobal_load_dword v{MT+k}, v17, s[6:7] sc1"])
    def rd(slot, sg, k, tile):
        b = sg % 5
        base = (5, 5, 12, 12, 13)[b]
        off = (b & 1)*KD_STG if b < 4 else 0
        return f"ds_read_b128 {vr(HB(slot),4)}, v{base} offset:{off + tile*8192 + k*1024}"
    for sg in range(7):
        a(f"@waitv s{sg}")
        if sg == 2: a(poll_check("B", 256))
        a("s_barrier")
        if sg == 1: a(poll_issue("B", 256))
        if sg in (0, 4): a.stamp(10 + sg//4)
        seq = [(k, t) for k in range(8) for t in range(4)]
        main = [rd(x & 7, sg, *seq[x]) for x in range(6)]
        for x, (k, t) in enumerate(seq):
            if x + 6 < 32:
                main.append(rd((x+6) & 7, sg, *seq[x+6])); main.append("s_waitcnt lgkmcnt(6)")
            else:
                main.append(f"s_waitcnt lgkmcnt({31-x})")
            c = "0" if (sg == 0 and k == 0) else vr(ACC(t),4)
            main.append(f"{MF16} {vr(ACC(t),4)}, {ar(WD3(sg*8+k),4)}, {vr(HB(x&7),4)}, {c}")
        fill = []
        if sg == 0: fill += hcl
        if sg == 2: fill += items(4) + items(5) + items(6)
        a(interleave(main, fill))
        if sg == 4:
            for x in range(2):
                for t in range(4):
                    a(f"{MF16} {vr(ACC(t),4)}, {vr(SEL(x),4)}, {vr(HC(t,x),4)}, {vr(ACC(t),4)}")
    a.stamp(12)
    for k in range(4):
        a(f"s_lshl_b32 s22, s{46+k}, 10")
        a(f"v_add_u32 v{220+k}, s22, v9")
        for r in range(4):
            a(f"v_add_f32 v{ACC(k)+r}, v{MT+k}, v{ACC(k)+r}")
        a(f"v_cvt_pk_bf16_f32 v{224+2*k}, v{ACC(k)}, v{ACC(k)+1}")
        a(f"v_cvt_pk_bf16_f32 v{225+2*k}, v{ACC(k)+2}, v{ACC(k)+3}")
        a(f"global_store_dwordx2 v{220+k}, v[{224+2*k}:{225+2*k}], s[8:9]")

def gen_k2():
    a = Asm(); a.stamps = STAMPS
    H = lambda rho, k: 128 + (rho*16 + k)*4
    XF = lambda rho, k: (rho*16 + k)*4
    T = lambda rho, d: 32 + (rho*2 + d)*4
    SEL = lambda d, tb: 48 + (d*2 + tb)*4
    NEGM = lambda rho: 64 + rho*4
    ACC = lambda s, tb: 72 + (s*2 + tb)*4
    TP = lambda rho, d: 104 + (rho*2 + d)*4
    VA = lambda s, tb: 128 + (s*2 + tb)*4
    WF = lambda s: 160 + s*4
    VW = [8, 9, 25, 26]
    SC = "sc1" if FUSE else ""
    def WD3(k):
        return 4*k if k < 32 else (128 + 4*(k-32) if k < 40 else 192 + 4*(k-40))
    a(f"""
    s_cmp_ge_u32 s2, 256
    s_cbranch_scc1 K2_done
    s_load_dwordx2 s[6:7], s[0:1], 88
    s_load_dwordx4 s[8:11], s[0:1], 72
    v_lshrrev_b32 v1, 6, v0
    v_and_b32 v2, 63, v0
    v_readfirstlane_b32 s14, v1
    v_and_b32 v3, 15, v2
    v_lshrrev_b32 v4, 4, v2
    v_lshlrev_b32 v5, 4, v2
    s_and_b32 s15, s2, 3
    s_lshl_b32 s15, s15, 2
    s_bfe_u32 s16, s2, 0x20003
    s_add_u32 s15, s15, s16          ; j
    s_bfe_u32 s16, s2, 0x10002
    s_lshl_b32 s16, s16, 3
    s_lshr_b32 s17, s2, 5
    s_add_u32 s16, s16, s17          ; n
    s_lshl_b32 s17, s15, 2
    s_add_u32 s17, s17, s14          ; a0
    s_sub_u32 s18, 128, s17
    s_cmp_eq_u32 s17, 0
    s_cselect_b32 s18, 64, s18       ; a1
    s_cselect_b32 s19, 0, 16384
    s_cselect_b32 s20, 16384, 0
    s_mul_i32 s21, s14, {REG}
    s_lshl_b32 s22, s17, 14
    s_lshl_b32 s23, s18, 14
    v_add_u32 v6, s22, v5
    v_add_u32 v7, s23, v5
    v_add_u32 v12, {WS_XP}, v6
    v_add_u32 v13, {WS_XP}, v7
    s_lshl_b32 s22, s17, 6
    s_lshl_b32 s23, s18, 6
    s_add_u32 s22, s22, {WS_MX}
    s_add_u32 s23, s23, {WS_MX}
    v_lshl_add_u32 v14, v3, 2, s22
    v_lshl_add_u32 v15, v3, 2, s23
    s_cmp_ge_u32 s16, 7
    s_cselect_b32 s53, 7, 0
    s_sub_u32 s53, s16, s53
    s_cmp_ge_u32 s53, 7
    s_cselect_b32 s22, 7, 0
    s_sub_u32 s53, s53, s22
    s_cmp_ge_u32 s15, 7
    s_cselect_b32 s54, 7, 0
    s_sub_u32 s54, s15, s54
    s_cmp_ge_u32 s54, 7
    s_cselect_b32 s22, 7, 0
    s_sub_u32 s54, s54, s22
    """)
    if not ROT2: a("s_mov_b32 s53, 0")
    if not ROTP: a("s_mov_b32 s54, 0")
    for i in range(7):
        a(f"""
        s_add_u32 s{46+i}, s53, {i}
        s_cmp_ge_u32 s{46+i}, 7
        s_cselect_b32 s22, 7, 0
        s_sub_u32 s{46+i}, s{46+i}, s22
        s_lshl_b32 s{46+i}, s{46+i}, 11
        """)
    a("""
    s_waitcnt lgkmcnt(0)
    s_add_u32 s26, s6, 8192
    s_addc_u32 s27, s7, 0
    s_add_u32 s28, s6, 12288
    s_addc_u32 s29, s7, 0
    """)
    a.stamp(0); a.stamp(14)
    for sel in range(2):
        a(f"s_add_u32 m0, s21, {sel*16384 + 12288}")
        a(f"global_load_lds_dwordx4 v{6+sel}, s[28:29] offset:3072")
    a("""
    global_load_dword v16, v14, s[6:7]
    global_load_dword v18, v15, s[6:7]
    global_load_dword v17, v14, s[26:27]
    global_load_dword v19, v15, s[26:27] ;@tag=first
    """)
    pair_items = []
    for i in range(8):
        it = []
        if i < 7:
            for sel in range(2):
                for tb in range(2):
                    x = []
                    if tb == 0: x.append(f"v_add_u32 v{252+sel}, s{46+i}, v{6+sel}")
                    x += [f"s_add_u32 m0, s21, {sel*16384 + 2*i*1024}",
                          f"global_load_lds_dwordx4 v{252+sel}, s[6:7] offset:{tb*1024}"]
                    it.append(x)
            for rho in range(2):
                for d in range(2):
                    x = []
                    if d == 0: x.append(f"v_add_u32 v{254+rho}, s{46+i}, v{12+rho}")
                    tag = f" ;@tag=p{i}" if (d == 1 and rho == 1) else ""
                    x.append(f"global_load_dwordx4 {ar(XF(rho,i+8*d),4)}, v{254+rho}, s[6:7] offset:{d*1024}{tag}")
                    it.append(x)
        else:
            for sel in range(2):
                it.append([f"s_add_u32 m0, s21, {sel*16384 + 12288}", f"global_load_lds_dwordx4 v{6+sel}, s[28:29] offset:2048"])
            for rho in range(2):
                for d in range(2):
                    tag = f" ;@tag=p{i}" if (d == 1 and rho == 1) else ""
                    it.append([f"global_load_dwordx4 {ar(XF(rho,i+8*d),4)}, v{12+rho}, s[28:29] offset:{2048+d*1024}{tag}"])
        pair_items.append(it)
    for it in pair_items[0]: a(it)
    QB = [4, 0, 2, 1, 3, 4, 0]
    def wdma_items(p):
        l = []
        for k in range(4):
            for aa in range(2):
                tag = f" ;@tag=w{p}" if (k == 3 and aa == 1) else ""
                x = [f"s_add_u32 m0, s21, {QB[p]*8192 + 2*k*1024}",
                     f"global_load_lds_dwordx4 v{VW[k]}, s[6:7] offset:{aa*1024}{tag}"]
                if aa == 1:
                    if k == 0:
                        x.append(f"s_cmp_eq_u32 s54, {6-p}\ns_cselect_b32 s55, -6, 1\ns_lshl_b32 s55, s55, 15")
                    x.append(f"v_add_u32 v{VW[k]}, s55, v{VW[k]}")
                l.append(x)
        return l
    a.stamp(1)
    su = L(f"""
    v_mov_b32 v127, 0x3f80
    v_lshlrev_b32 v8, 7, v3
    v_add_u32 v9, s18, v8
    v_add_u32 v8, s17, v8
    s_mov_b32 s32, 0xffff0000
    s_mov_b32 s33, 0xffff0000
    v_lshlrev_b32 v25, 2, v4
    v_cvt_f32_u32 v25, v25
    v_mov_b32 v26, 0x80008000
    """)
    for rho in range(2):
        su += L(f"""
        v_cvt_f32_u32 v27, v{8+rho}
        v_mul_f32 v27, {hx(1.0/2048)}, v27
        v_mul_f32 v28, v27, v25
        """)
        for r in range(4):
            su.append(f"v_cos_f32 v{72+r}, v28")
            su.append(f"v_sin_f32 v{76+r}, v28")
            if r < 3: su.append("v_add_f32 v28, v27, v28")
        for r in range(8): su.append(f"v_mul_f32 v{80+r}, 0.5, v{72+r}")
        su += L(f"""
        v_cvt_pk_bf16_f32 v88, v72, v73
        v_cvt_pk_bf16_f32 v89, v74, v75
        v_cvt_pk_bf16_f32 v90, v76, v77
        v_cvt_pk_bf16_f32 v91, v78, v79
        v_cvt_pk_bf16_f32 v92, v80, v81
        v_cvt_pk_bf16_f32 v93, v82, v83
        v_cvt_pk_bf16_f32 v94, v84, v85
        v_cvt_pk_bf16_f32 v95, v86, v87
        v_xor_b32 v96, v26, v90
        v_xor_b32 v97, v26, v91
        v_xor_b32 v98, v26, v94
        v_xor_b32 v99, v26, v95
        """)
        for dst, c0, c1 in ((TP(rho,0), 98, 92), (TP(rho,1), 94, 92), (T(rho,0), 88, 90), (T(rho,1), 88, 96)):
            for k in range(2):
                su.append(f"v_cndmask_b32 v{dst+k}, v{c0+k}, v{c1+k}, s[32:33]")
                su.append(f"v_cndmask_b32 v{dst+2+k}, v{c1+k}, v{c0+k}, s[32:33]")
    su += L(f"""
    v_lshrrev_b32 v27, 2, v3
    v_lshl_add_u32 v27, v4, 2, v27
    v_lshlrev_b32 v27, 6, v27
    v_and_b32 v28, 3, v3
    v_lshl_add_u32 v27, v28, 4, v27
    v_and_b32 v28, 1, v4
    v_lshl_add_u32 v27, v28, 3, v27
    v_add_u32 v120, s21, v27
    v_xor_b32 v121, 8, v120
    v_add_u32 v122, s19, v120
    v_add_u32 v123, s19, v121
    v_add_u32 v124, s20, v120
    v_add_u32 v125, s20, v121
    v_add_u32 v27, 48, v3
    v_lshlrev_b32 v126, 2, v27
    """)
    a(weave(su, pair_items[1] + pair_items[2]))
    def trread(dst, rho, d, g_):
        if d == 0: b0, b1, off = 120, 121, rho*16384 + g_*1024
        else: b0, b1, off = 122+2*rho, 123+2*rho, g_*1024
        return [f"ds_read_b64_tr_b16 {ar(dst,2)}, v{b0} offset:{off}", f"ds_read_b64_tr_b16 {ar(dst+2,2)}, v{b1} offset:{off}"]
    a.stamp(2)
    a("@waitv first")
    for rho in range(2):
        a(trread(VA(2+rho,0), rho, 0, 15)); a(trread(VA(2+rho,1), rho, 1, 15))
    se = L(f"""
    v_lshlrev_b32 v27, 3, v4
    v_sub_u32 v28, v3, v27
    v_sub_u32 v29, 0, v3
    v_sub_u32 v29, v29, v27
    """)
    for (d, tb, src, add) in ((0,0,28,0), (0,1,28,16), (1,0,29,31), (1,1,29,15)):
        se += L(f"""
        v_add_u32 v30, {add}, v{src}
        v_and_b32 v31, 1, v30
        v_lshlrev_b32 v31, 4, v31
        v_lshlrev_b32 v31, v31, v127
        v_lshrrev_b32 v30, 1, v30
        """)
        for jj in range(4):
            se.append(f"v_cmp_eq_u32 s[{56+2*(jj&1)}:{57+2*(jj&1)}], {jj}, v30\nv_cmp_eq_u32 vcc, {jj}, v30" if False else f"v_cmp_eq_u32 s[{56+2*(jj&1)}:{57+2*(jj&1)}], {jj}, v30")
            if jj & 1:
                se.append(f"v_cndmask_b32 v{SEL(d,tb)+jj-1}, 0, v31, s[56:57]")
                se.append(f"v_cndmask_b32 v{SEL(d,tb)+jj}, 0, v31, s[58:59]")
    a(se[:20])
    a("s_waitcnt lgkmcnt(0)")
    for rho in range(2):
        a(f"{MF16} {vr(ACC(2+rho,0),4)}, {ar(VA(2+rho,0),4)}, {vr(TP(rho,0),4)}, 0")
    for rho in range(2):
        a(f"{MF16} {vr(ACC(2+rho,0),4)}, {ar(VA(2+rho,1),4)}, {vr(TP(rho,1),4)}, {vr(ACC(2+rho,0),4)}")
    a(se[20:38])
    for rho in range(2):
        a(f"ds_bpermute_b32 v{22+rho}, v126, v{ACC(2+rho,0)+3}")
    a(se[38:])
    a(f"""
    s_mul_i32 s42, s16, 7
    s_add_u32 s30, s42, s54
    s_lshl_b32 s30, s30, 15
    s_add_u32 s30, s30, {WS_WUP}
    """)
    for k in range(4):
        a(f"""
        s_lshl_b32 s22, s14, 2
        s_add_u32 s22, s22, {k}
        s_and_b32 s23, s22, 7
        s_add_u32 s31, s23, s53
        s_cmp_ge_u32 s31, 7
        s_cselect_b32 s55, 7, 0
        s_sub_u32 s31, s31, s55
        s_cmp_eq_u32 s23, 7
        s_cselect_b32 s31, 7, s31
        s_and_b32 s22, s22, 8
        s_add_u32 s31, s31, s22
        s_lshl_b32 s31, s31, 11
        s_add_u32 s31, s31, s30
        v_add_u32 v{VW[k]}, s31, v5
        """)
    a(f"""
    s_and_b32 s22, s16, 7
    s_sub_u32 s23, s22, s53
    s_add_u32 s31, s23, 7
    s_cmp_lt_i32 s23, 0
    s_cselect_b32 s23, s31, s23
    s_cmp_eq_u32 s22, 7
    s_cselect_b32 s23, 7, s23
    s_and_b32 s22, s16, 8
    s_add_u32 s60, s23, s22
    s_lshl_b32 s22, s16, 10
    s_add_u32 s22, s22, {WS_HC}
    v_mov_b32 v27, s17
    v_mov_b32 v28, s18
    v_cndmask_b32 v27, v27, v28, s[32:33]
    v_lshrrev_b32 v28, 1, v4
    v_lshlrev_b32 v10, 14, v27
    v_lshl_add_u32 v10, v28, 9, v10
    v_lshl_add_u32 v10, v3, 4, v10
    v_add_u32 v10, s22, v10
    s_mov_b32 s36, 57344
    v_mul_lo_u32 v11, v27, s36
    v_lshl_add_u32 v11, v28, 8, v11
    v_lshl_add_u32 v11, v3, 4, v11
    s_mov_b32 s34, 0
    s_mov_b32 s35, 0xffff0000
    s_waitcnt lgkmcnt(0)
    """)
    for rho in range(2):
        a(f"v_add_f32 v{16+2*rho}, v{16+2*rho}, v{22+rho}")
        for r in range(4):
            a(f"v_sub_f32 v{NEGM(rho)+r}, 0, v{16+2*rho}")
    for r in range(20, 24): a(f"v_mov_b32 v{r}, 0")
    mt_store = f"""s_cmp_eq_u32 s16, 0
    s_cbranch_scc0 K2_nomt
    @cond_begin
    v_add_u32 v14, {WS_MT - WS_MX}, v14
    v_add_u32 v15, {WS_MT - WS_MX}, v15
    s_mov_b64 s[36:37], exec
    s_mov_b64 exec, 0xffff
    global_store_dword v14, v16, s[6:7] {SC}
    global_store_dword v15, v18, s[6:7] {SC}
    s_mov_b64 exec, s[36:37]
    @cond_end
    K2_nomt:"""
    groups = [(i, d) for i in range(8) for d in range(2)]
    def reads(gi):
        i, d = groups[gi]
        o = []
        if d == 0: o.append(f"@waitv p{i}")
        for rho in range(2):
            s = (gi & 1)*2 + rho
            o += trread(VA(s, 0), rho, d, 2*i) + trread(VA(s, 1), rho, d, 2*i+1)
        return o
    def mm(gi):
        i, d = groups[gi]
        kap = i + 8*d
        o = []
        for rho in range(2):
            s = (gi & 1)*2 + rho
            for tb in range(2):
                o.append(f"{MF16} {vr(ACC(s,tb),4)}, {ar(VA(s,tb),4)}, {vr(T(rho,d),4)}, {vr(NEGM(rho),4)}")
        for rho in range(2):
            s = (gi & 1)*2 + rho
            for tb in range(2):
                o.append(f"{MF16} {vr(ACC(s,tb),4)}, {vr(SEL(d,tb),4)}, {ar(XF(rho,kap),4)}, {vr(ACC(s,tb),4)}")
        return o
    def post(gi):
        i, d = groups[gi]
        kap = i + 8*d
        o = []
        for rho in range(2):
            s = (gi & 1)*2 + rho
            h = H(rho, kap)
            for tb in range(2):
                o.append(f"v_cvt_pk_bf16_f32 v{h+2*tb}, v{ACC(s,tb)}, v{ACC(s,tb)+1}")
                o.append(f"v_cvt_pk_bf16_f32 v{h+2*tb+1}, v{ACC(s,tb)+2}, v{ACC(s,tb)+3}")
        h0 = H(0, kap); h = H(1, kap)
        for k in range(4): o.append(f"v_permlane16_swap_b32 v{h0+k}, v{h+k}")
        if DOTS_IN_C:
            for k in range(4):
                o.append(f"v_dot2c_f32_bf16 v{20+(k&1)}, v{h0+k}, v{h0+k}")
                o.append(f"v_dot2c_f32_bf16 v{22+(k&1)}, v{h+k}, v{h+k}")
        o.append(f"""s_cmp_eq_u32 s60, {kap}
        s_cbranch_scc0 K2_nh{kap}
        @cond_begin
        global_store_dwordx4 v10, {vr(h0,4)}, s[6:7] {SC}
        global_store_dwordx4 v10, {vr(h,4)}, s[6:7] offset:256 {SC}
        @cond_end
        K2_nh{kap}:""")
        return o
    def fix(rho):
        F = ACC(rho, 1) + 3; M = ACC(2+rho, 1) + 3
        return L(f"""
        v_add_f32 v27, v{F}, v{M}
        v_mul_f32 v27, 0.5, v27
        v_sub_f32 v28, v{17+2*rho}, v{16+2*rho}
        v_cndmask_b32 v{F}, v{F}, v27, s[34:35]
        v_cndmask_b32 v{M}, v{M}, v28, s[34:35]
        """)
    a.stamp(3)
    a(reads(0))
    extra = {0: pair_items[3] + pair_items[4][:4], 1: pair_items[4][4:] + pair_items[5], 2: pair_items[6], 3: pair_items[7],
             4: [], 5: wdma_items(0), 6: [], 7: wdma_items(1)}
    for i in range(8):
        seq = []
        for gi in (2*i, 2*i+1):
            if gi + 1 < 16:
                seq += reads(gi+1); seq.append("s_waitcnt lgkmcnt(8)")
            else: seq.append("s_waitcnt lgkmcnt(0)")
            m_ = mm(gi)
            fill = post(gi-1) if 1 <= gi <= 14 else []
            seq += m_[:2] + interleave(m_[2:], fill)
        if i == 0: seq.append(mt_store)
        a(weave(seq, extra[i]))
    a(fix(0)); a(fix(1))
    a(post(14)); a(post(15))
    a.stamp(4)
    for k in range(4): a(f"v_add_u32 v{32+k}, {k*REG}, v5")
    wd_items = []
    if FUSE:
        a(f"""
        s_lshr_b32 s22, s16, 1
        s_lshl_b32 s22, s22, 2
        s_add_u32 s61, s22, s14          ; nu
        s_mul_i32 s22, s61, {56*1024}
        s_add_u32 s22, s22, {WS_WD}
        v_add_u32 v24, s22, v5
        """)
        for k in range(56):
            x = f"global_load_dwordx4 {ar(WD3(k),4)}, v24, s[6:7] offset:{(k&3)*1024}"
            if k == 55: x += " ;@tag=wd"
            if (k & 3) == 3: x += "\nv_add_u32 v24, 0x1000, v24"
            wd_items.append([x])
    dots = []
    for kap in range(16):
        for k in range(4):
            dots.append(f"v_dot2c_f32_bf16 v{20+(k&1)}, v{H(0,kap)+k}, v{H(0,kap)+k}")
            dots.append(f"v_dot2c_f32_bf16 v{22+(k&1)}, v{H(1,kap)+k}, v{H(1,kap)+k}")
    stats = L(f"""
    v_add_f32 v20, v20, v21
    v_add_f32 v22, v22, v23
    v_add_f32 v20, v20, v22
    v_mov_b32 v21, v20
    v_permlane32_swap_b32 v20, v21
    v_add_f32 v20, v20, v21
    s_mov_b32 s38, {hx(1.0/512)}
    v_mov_b32 v27, {hx(1e-5)}
    v_fma_f32 v20, v20, s38, v27
    v_rsq_f32 v20, v20
    v_mul_f32 v21, {hx(-math.log2(math.e))}, v20
    """)
    MACC = lambda st: 72 + st*16
    def wread(p, phi):
        return f"ds_read_b128 {ar(WF(phi & 7),4)}, v{32 + (phi>>3)} offset:{QB[p]*8192 + (phi&7)*1024}"
    def epilogue(p):
        st = p & 1
        if p < 4:   off = f"s_lshl_b32 s44, s16, 11\ns_add_u32 s44, s44, {WS_HH + (p>>1)*1024 + (p&1)*512}"
        elif p < 6: off = f"s_lshl_b32 s44, s16, 10\ns_add_u32 s44, s44, {WS_HH + 32*1024 + (p&1)*512}"
        else:       off = f"s_lshl_b32 s44, s16, 9\ns_add_u32 s44, s44, {WS_HH + 48*1024}"
        f = [off + "\ns_add_u32 s40, s6, s44\ns_addc_u32 s41, s7, 0"]
        m = MACC(st)
        for r in range(8): f.append(f"v_mul_f32 v{40+r}, v21, v{m+r}")
        for r in range(8):
            f.append(f"v_exp_f32 v{40+r}, v{40+r}")
            f.append(f"v_mul_f32 v{48+r}, v20, v{m+8+r}")
        for r in range(8): f.append(f"v_add_f32 v{40+r}, 1.0, v{40+r}")
        for r in range(8): f.append(f"v_rcp_f32 v{40+r}, v{40+r}")
        for r in range(8): f.append(f"v_mul_f32 v{40+r}, v{40+r}, v{48+r}")
        for r in range(4): f.append(f"v_cvt_pk_bf16_f32 v{56+r}, v{40+2*r}, v{41+2*r}")
        f.append(f"global_store_dwordx4 v11, v[56:59], s[40:41] {SC} ;@tag=hh{p}")
        return f
    PF = 6
    bar = {0: "w0", 1: "w1", 2: "w2,w3", 4: "w4,w5", 6: "w6"}
    for p in range(7):
        if p in bar:
            a(f"@waitv {bar[p]}" + (",hh3" if (FUSE and p == 6) else ""))
            if FUSE and p == 6: a(arrive("A", 0))
            a("s_barrier")
            if p < 2: a.stamp(5+p)
            main = [wread(p, x) for x in range(PF)]
        else:
            main = []
        st = p & 1
        nxt_ok = (p+1 < 7) and (p+1 not in bar)
        for phi in range(32):
            kap, aa = phi >> 1, phi & 1
            if phi + PF < 32:
                main.append(wread(p, phi+PF)); main.append(f"s_waitcnt lgkmcnt({PF})")
            elif nxt_ok:
                main.append(wread(p+1, phi+PF-32)); main.append(f"s_waitcnt lgkmcnt({PF})")
            else:
                main.append(f"s_waitcnt lgkmcnt({31-phi})")
            c = "0" if phi == 0 else vr(MACC(st),16)
            main.append(f"{MF32} {vr(MACC(st),16)}, {ar(WF(phi&7),4)}, {vr(H(aa,kap),4)}, {c}")
        dm = []
        if p == 0: dm = wdma_items(2) + wdma_items(3)
        if p == 1: dm = wdma_items(4)
        if p == 2: dm = wdma_items(5)
        if p == 4: dm = wdma_items(6)
        dm = [[ "\n".join(x) ] for x in dm]
        if FUSE:
            mine = wd_items[p*WD_IN_MAIN:(p+1)*WD_IN_MAIN]
            dm = [[y] for y in weave([x[0] for x in dm], mine)] if dm else mine
        if DOTS_IN_C: dots = []
        if p == 0: body = dots[:96] + (stats if DOTS_IN_C else [])
        elif p == 1: body = dots[96:] + ([] if DOTS_IN_C else stats) + epilogue(0)
        else: body = epilogue(p-1)
        a(interleave(main, weave(body, dm)))
    a.stamp(7)
    if not FUSE:
        a(epilogue(6))
    else:
        phaseD(a, epilogue(6), wd_items[7*WD_IN_MAIN:], WD3)
    if STAMPS: a("s_waitcnt vmcnt(0)")
    a.stamp(13); a.stamp(15)
    a.dump_stamps(WS_ST + (1 << 20))
    a("K2_done:")
    a("s_endpgm")
    return a.finalize()

K3_STG = 28672
K3_LDS = 5*K3_STG
def gen_k3():
    a = Asm(); a.stamps = STAMPS
    WD = lambda k3: k3*4
    HB = lambda s: 64 + s*4
    ACC = lambda k: 32 + k*4
    HC = lambda k, x: 96 + (k*2 + x)*4
    SEL = lambda x: 48 + x*4
    a(f"""
    s_cmp_ge_u32 s2, 256
    s_cbranch_scc1 K3_done
    s_load_dwordx2 s[4:5], s[0:1], 72
    s_load_dwordx2 s[6:7], s[0:1], 88
    v_lshrrev_b32 v1, 6, v0
    v_and_b32 v2, 63, v0
    v_readfirstlane_b32 s14, v1
    v_and_b32 v3, 15, v2
    v_lshrrev_b32 v4, 4, v2
    v_lshlrev_b32 v5, 4, v2
    s_and_b32 s15, s2, 7
    s_lshl_b32 s15, s15, 2
    s_bfe_u32 s16, s2, 0x20003
    s_add_u32 s15, s15, s16
    s_lshr_b32 s16, s2, 5
    s_lshl_b32 s17, s16, 2
    s_add_u32 s17, s17, s14          ; nu
    s_lshl_b32 s18, s15, 2           ; tt0
    s_add_u32 s19, s18, s14
    s_mul_i32 s20, s17, {56*1024}
    s_add_u32 s20, s20, {WS_WD}
    v_add_u32 v6, s20, v5
    s_mul_i32 s20, s19, 57344
    s_add_u32 s20, s20, {WS_HH}
    v_add_u32 v7, s20, v5
    s_mul_i32 s21, s14, 7168
    s_add_u32 s46, s15, s16
    s_and_b32 s46, s46, {7 if ROT3 else 0}            ; rot
    s_mul_i32 s20, s46, 7168
    v_add_u32 v6, s20, v6
    v_add_u32 v7, s20, v7
    s_waitcnt lgkmcnt(0)
    s_add_u32 s24, s6, 4096
    s_addc_u32 s25, s7, 0
    """)
    a.stamp(0); a.stamp(14)
    def items(sg):
        buf = (sg % 5)*K3_STG
        l = []
        for k in range(7):
            x = [f"s_add_u32 m0, s21, {buf + (k & 4)*1024}",
                 f"global_load_lds_dwordx4 v7, {'s[6:7]' if k < 4 else 's[24:25]'} offset:{(k&3)*1024}"]
            if k == 6:
                x.append(f"s_cmp_eq_u32 s46, {7-sg}\ns_cselect_b32 s47, -7, 1\ns_mul_i32 s47, s47, 7168\nv_add_u32 v7, s47, v7")
            l.append(x)
            tag = f" ;@tag=s{sg}" if k == 6 else ""
            x = [f"global_load_dwordx4 {ar(WD(sg*7+k),4)}, v6, {'s[6:7]' if k < 4 else 's[24:25]'} offset:{(k&3)*1024}{tag}"]
            if k == 6: x.append("v_add_u32 v6, s47, v6")
            l.append(x)
        return l
    for it in items(0): a(it)
    su = L(f"""
    v_lshlrev_b32 v8, 7, v3
    v_add_u32 v8, s18, v8
    v_lshlrev_b32 v9, 10, v8
    s_lshl_b32 s20, s17, 5
    v_add_u32 v9, s20, v9
    v_lshl_add_u32 v9, v4, 3, v9
    s_lshl_b32 s20, s18, 6
    s_add_u32 s20, s20, {WS_MT}
    v_lshl_add_u32 v11, v3, 2, s20
    """)
    su.append(f"""s_lshr_b32 s30, s17, 1
    s_lshl_b32 s31, s17, 4
    s_sub_u32 s32, 496, s31
    s_lshr_b32 s32, s32, 5
    s_add_u32 s32, s32, 8
    s_cmp_lt_u32 s17, 16
    s_cselect_b32 s30, s30, s32
    s_sub_u32 s33, s30, 1
    s_cmp_eq_u32 s17, 0
    s_cselect_b32 s33, 15, s33
    s_cmp_eq_u32 s17, 16
    s_cselect_b32 s33, 7, s33
    s_max_i32 s33, s33, 0
    s_and_b32 s34, s17, 1
    s_cmp_gt_u32 s17, 16
    s_cselect_b32 s34, 1, s34
    s_lshl_b32 s35, s18, 14
    s_add_u32 s35, s35, {WS_HC}
    s_lshl_b32 s36, s30, 10
    s_add_u32 s36, s36, s35
    v_add_u32 v14, s36, v5
    s_lshl_b32 s36, s33, 10
    s_add_u32 s36, s36, s35
    v_add_u32 v15, s36, v5""")
    su += L(f"""
    v_add_u32 v16, s31, v3
    v_mov_b32 v23, 0x3f80
    v_add_u32 v12, {2*K3_STG}, v5
    v_add_u32 v13, {4*K3_STG}, v5
    """)
    for x, sk in ((0, 30), (1, 33)):
        su.append(f"""s_and_b32 s36, s{sk}, 7
        s_lshl_b32 s36, s36, 5
        s_sub_u32 s37, -1, s36
        s_sub_u32 s38, 511, s36
        s_cmp_lt_u32 s{sk}, 8
        s_cselect_b32 s37, s37, s38
        s_cselect_b32 s38, 1, -1
        s_cmp_eq_u32 s{sk}, 15
        s_cselect_b32 s39, 0, -1
        s_cselect_b32 s40, 256, -1""")
        su += L(f"""
        v_mul_lo_u32 v17, v16, s38
        v_add_u32 v17, s37, v17
        v_cmp_eq_u32 vcc, s40, v16
        v_cndmask_b32 v17, v17, -1, vcc
        v_cmp_eq_u32 vcc, s39, v16
        v_cndmask_b32 v17, v17, 31, vcc
        """)
        if x == 1:
            su.append("""s_cmp_eq_u32 s34, 1
            s_cselect_b32 s36, -1, 0
            v_or_b32 v17, s36, v17""")
        su += L(f"""
        v_bfe_u32 v18, v17, 2, 2
        v_cmp_eq_u32 vcc, v18, v4
        v_cndmask_b32 v17, -1, v17, vcc
        v_lshrrev_b32 v18, 4, v17
        v_lshlrev_b32 v18, 1, v18
        v_bfe_u32 v19, v17, 1, 1
        v_add_u32 v18, v18, v19
        v_and_b32 v19, 1, v17
        v_lshlrev_b32 v19, 4, v19
        v_lshlrev_b32 v19, v19, v23
        """)
        for jj in range(4):
            su.append(f"v_cmp_eq_u32 vcc, {jj}, v18")
            su.append(f"v_cndmask_b32 v{SEL(x)+jj}, 0, v19, vcc")
    a(weave(su, items(1) + items(2)))
    hcl = []
    for k in range(4):
        hcl.append([f"global_load_dwordx4 {vr(HC(k,0),4)}, v14, s[6:7]", "v_add_u32 v14, 0x4000, v14"])
        hcl.append([f"global_load_dwordx4 {vr(HC(k,1),4)}, v15, s[6:7]", "v_add_u32 v15, 0x4000, v15"])
        hcl.append([f"global_load_dword v{24+k}, v11, s[6:7] offset:{64*k}"])
    a.stamp(1)
    def rd(slot, sg, k, tile):
        b = sg % 5
        base = (5, 5, 12, 12, 13)[b]
        off = (b & 1)*K3_STG if b < 4 else 0
        return f"ds_read_b128 {vr(HB(slot),4)}, v{base} offset:{off + tile*7168 + k*1024}"
    for sg in range(8):
        a(f"@waitv s{sg}")
        a("s_barrier")
        a.stamp(2+sg)
        seq = [(k, t) for k in range(7) for t in range(4)]
        main = [rd(x & 7, sg, *seq[x]) for x in range(6)]
        for x, (k, t) in enumerate(seq):
            if x + 6 < 28:
                main.append(rd((x+6) & 7, sg, *seq[x+6])); main.append("s_waitcnt lgkmcnt(6)")
            else:
                main.append(f"s_waitcnt lgkmcnt({27-x})")
            c = "0" if (sg == 0 and k == 0) else vr(ACC(t),4)
            main.append(f"{MF16} {vr(ACC(t),4)}, {ar(WD(sg*7+k),4)}, {vr(HB(x&7),4)}, {c}")
        fill = []
        if sg + 3 < 8: fill += items(sg+3)
        if sg == 4: fill += hcl
        a(interleave(main, fill))
        if sg == 7:
            a("s_waitcnt vmcnt(0)")
            for x in range(2):
                for t in range(4):
                    a(f"{MF16} {vr(ACC(t),4)}, {vr(SEL(x),4)}, {vr(HC(t,x),4)}, {vr(ACC(t),4)}")
    a.stamp(10)
    for k in range(4):
        for r in range(4):
            a(f"v_add_f32 v{ACC(k)+r}, v{24+k}, v{ACC(k)+r}")
        a(f"v_cvt_pk_bf16_f32 v{56+2*k}, v{ACC(k)}, v{ACC(k)+1}")
        a(f"v_cvt_pk_bf16_f32 v{57+2*k}, v{ACC(k)+2}, v{ACC(k)+3}")
        a(f"global_store_dwordx2 v9, v[{56+2*k}:{57+2*k}], s[4:5] offset:{1024*k}")
    if STAMPS: a("s_waitcnt vmcnt(0)")
    a.stamp(11); a.stamp(15)
    a.dump_stamps(WS_ST + (2 << 20))
    a("K3_done:")
    a("s_endpgm")
    return a.finalize()

def build_all():
    out = []
    hdr = open("sequential_preLN__spectral_fnet__glu_gated_glu__prompt.s.ref").read().split("\n")
    out += [l for l in hdr if l.startswith(";") and "@launch" not in l]
    out.append(f"; @launch kernel=k1_kernel grid=(256,1,1) block=(512,1,1) lds={K1_LDS}")
    out.append(f"; @launch kernel=k2_kernel grid=(256,1,1) block=(256,1,1) lds={K2_LDS}")
    if not FUSE: out.append(f"; @launch kernel=k3_kernel grid=(256,1,1) block=(256,1,1) lds={K3_LDS}")
    out.append('.amdgcn_target "amdgcn-amd-amdhsa--gfx950"')
    out.append(".text")
    out.append(header("k1_kernel") + gen_k1())
    out.append(header("k2_kernel") + gen_k2())
    if not FUSE: out.append(header("k3_kernel") + gen_k3())
    out.append('.section .rodata,"a"')
    for k in (kd("k1_kernel", 256, 256), kd("k2_kernel", 512, 256)) + (() if FUSE else (kd("k3_kernel", 128+224, 128),)):
        out.append(".p2align 6\n" + k)
    return "\n".join(out) + "\n"

if __name__ == "__main__":
    for x in sys.argv[2:]:
        if x == "stamps": STAMPS = True
        elif "=" in x:
            k_, v_ = x.split("="); globals()[k_] = int(v_)
    open(sys.argv[1] if len(sys.argv) > 1 else "v5.s", "w").write(build_all())
```

```python
import sys, math, struct
from asmlib import Asm, vr, ar, sr, weave, L

WS_V   = 0
WS_MX  = 2 << 20
WS_X0  = (2 << 20) + 8192
WS_MT  = (2 << 20) + (64 << 10)
WS_FL  = (2 << 20) + (128 << 10)
WS_XP  = 3 << 20
WS_HC  = 5 << 20
WS_WUP = 8 << 20
WS_WD  = 12 << 20
WS_HH  = 16 << 20
WS_ST  = 32 << 20
STAMPS = False
ROT2 = False
ROTP = False
ROT3 = False
DOTS_IN_C = True
FUSE = True
WD_IN_MAIN = 8
K1SC = 0
GRAM = 1
EARLY_SU = 1
HSLEEP = 0

def f2u(f): return struct.unpack('<I', struct.pack('<f', f))[0]
def hx(f): return "0x%08x" % f2u(f)
def kd(name, vgpr, accum, sgpr=100):
    return f"""
.amdhsa_kernel {name}
  .amdhsa_next_free_vgpr {vgpr}
  .amdhsa_next_free_sgpr {sgpr}
  .amdhsa_accum_offset {accum}
  .amdhsa_group_segment_fixed_size 0
  .amdhsa_kernarg_size 96
  .amdhsa_user_sgpr_count 2
  .amdhsa_user_sgpr_kernarg_segment_ptr 1
  .amdhsa_system_sgpr_workgroup_id_x 1
.end_amdhsa_kernel
"""
def header(name):
    return f".globl {name}\n.p2align 8\n.type {name},@function\n{name}:\n"

def interleave(main, fill, key='v_mfma'):
    out = []
    nm = sum(1 for m in main if m.startswith(key))
    fi = 0; seen = 0
    for m in main:
        out.append(m)
        if m.startswith(key):
            seen += 1
            tgt = (len(fill) * seen + nm - 1) // nm
            while fi < tgt:
                out.append(fill[fi]); fi += 1
    out += fill[fi:]
    return out

MF16 = "v_mfma_f32_16x16x32_bf16"
MF32 = "v_mfma_f32_32x32x16_bf16"

K1_LDS_F = 131072
K1_LDS_HELP = 147456
K1_LDS = 163840

def gen_k1():
    a = Asm(); a.stamps = STAMPS
    CS = lambda t, cs, k: 64 + ((t*2 + cs)*4 + k)*4
    G = lambda hi, rho, tile: 128 + ((hi*2 + rho)*2 + tile)*4
    FB = lambda s, tile: 160 + (s*6 + tile)*4
    XB = lambda s, hi, rho: 160 + (s*6 + 2 + hi*2 + rho)*4
    SM = lambda rho: 208 + rho*4
    SQ = lambda rho: 216 + rho*4
    ONES = 224
    a(f"""
    s_cmp_ge_u32 s2, 256
    s_cbranch_scc1 K1_done
    s_load_dwordx2 s[4:5], s[0:1], 0
    s_load_dwordx2 s[6:7], s[0:1], 88
    s_load_dwordx4 s[8:11], s[0:1], 48
    s_load_dwordx2 s[12:13], s[0:1], 64
    v_lshrrev_b32 v1, 6, v0
    v_and_b32 v2, 63, v0
    v_readfirstlane_b32 s14, v1
    v_and_b32 v3, 15, v2
    v_lshrrev_b32 v4, 4, v2
    v_lshlrev_b32 v13, 4, v2         ; lane*16
    s_and_b32 s15, s2, 7
    s_lshl_b32 s15, s15, 1
    s_bfe_u32 s16, s2, 0x10003
    s_or_b32 s15, s15, s16           ; s2 index
    s_lshr_b32 s16, s2, 4            ; eb
    s_cmp_ge_u32 s14, 4
    s_cbranch_scc1 K1_helper
    """)
    a.stamp(0); a.stamp(14)
    a(f"""
    v_lshrrev_b32 v5, 2, v2
    v_lshlrev_b32 v5, 17, v5
    s_lshl_b32 s17, s14, 15
    s_lshl_b32 s18, s15, 10
    s_add_u32 s18, s18, s17
    v_add_u32 v5, s18, v5
    v_sub_u32 v6, 0, v4
    v_xor_b32 v6, v6, v2
    v_and_b32 v6, 3, v6
    v_lshl_add_u32 v7, v6, 4, v5
    s_and_b32 s46, s16, 7            ; rot
    """)
    for b in range(8):
        a(f"""
        s_add_u32 s47, s46, {b}
        s_and_b32 s47, s47, 7
        s_lshl_b32 s47, s47, 6
        v_add_u32 v{240+b}, s47, v7
        """)
    a("""
    s_waitcnt lgkmcnt(0)
    s_add_u32 s48, s4, 0x4000
    s_addc_u32 s49, s5, 0
    """)
    xi = []
    for k in range(8):
        for hi in range(2):
            for rho in range(2):
                kk = k + 8*hi
                tag = f" ;@tag=x{k}" if (hi == 1 and rho == 1) else ""
                xi.append([f"s_add_u32 m0, s17, {(rho*16+kk)*1024 - 512*hi}",
                           f"global_load_lds_dwordx4 v{240+k}, {'s[48:49]' if rho else 's[4:5]'} offset:{512*hi}{tag}"])
    for it in xi[:8]: a(it)
    a.stamp(1)
    fg = L(f"""
    s_mov_b32 s20, 0x41c80000
    s_lshl_b32 s21, s16, 4
    s_add_u32 s21, s21, 1
    v_add_u32 v9, s21, v3
    v_cvt_f32_u32 v10, v9
    v_mul_f32 v10, {hx(-1.0/512)}, v10
    v_lshlrev_b32 v11, 31, v9
    v_or_b32 v56, 1.0, v11
    s_lshl_b32 s21, s14, 1
    s_add_u32 s21, s21, s46
    s_add_u32 s50, s21, 1
    s_and_b32 s21, s21, 7
    s_and_b32 s50, s50, 7
    s_lshl_b32 s21, s21, 5
    s_lshl_b32 s50, s50, 5
    v_lshlrev_b32 v12, 3, v4
    v_add_u32 v62, s50, v12
    v_add_u32 v12, s21, v12
    v_cvt_f32_u32 v12, v12
    v_cvt_f32_u32 v62, v62
    v_mul_f32 v12, v10, v12
    v_mul_f32 v62, v10, v62
    s_lshl_b32 s21, s14, 12
    s_add_u32 s21, s21, {K1_LDS_F}
    v_add_u32 v14, s21, v13
    """)
    fg.append("""s_cmp_eq_u32 s16, 15
    s_cselect_b32 s22, 0x80008000, 0
    s_cselect_b32 s23, 0x80008000, 0
    s_cselect_b32 s18, 0x8000, 0
    s_cmp_eq_u32 s14, 0
    s_cselect_b32 s18, s18, 0
    s_mov_b32 s19, 0""")
    fg += L("""
    v_mov_b32 v15, 0x3f80
    v_cndmask_b32 v57, v56, 0, s[22:23]
    v_cndmask_b32 v58, 0, 1.0, s[22:23]
    """)
    for kk in range(2):
        if kk == 1: fg.append("v_mov_b32 v12, v62")
        for j in range(8):
            fg.append(f"v_cos_f32 v{16+j}, v12")
            fg.append(f"v_sin_f32 v{24+j}, v12")
            if j < 7: fg.append("v_add_f32 v12, v10, v12")
        o = 32 + kk*8
        for jj in range(4):
            fg.append(f"v_cvt_pk_bf16_f32 v{o+jj}, v{16+2*jj}, v{17+2*jj}")
            fg.append(f"v_cvt_pk_bf16_f32 v{o+4+jj}, v{24+2*jj}, v{25+2*jj}")
        if kk == 1: fg.append(f"v_cndmask_b32 v{o+4}, v{o+4}, v15, s[18:19]")
        fg.append(f"ds_write_b128 v14, {vr(o,4)} offset:{kk*2048}")
        fg.append(f"ds_write_b128 v14, {vr(o+4,4)} offset:{kk*2048+1024}")
    ad = L(f"""
    v_lshrrev_b32 v5, 2, v3
    v_sub_u32 v5, 0, v5
    v_and_b32 v5, 3, v5
    v_xor_b32 v6, v5, v4
    v_lshlrev_b32 v6, 4, v6
    v_lshl_add_u32 v6, v3, 6, v6
    v_add_u32 v6, s17, v6
    v_add_u32 v61, {K1_LDS_F}, v13
    """)
    for r in range(4): ad.append(f"v_mov_b32 v{ONES+r}, 0x3f803f80")
    a(weave(fg + ad, xi[8:16]))
    a("s_waitcnt lgkmcnt(0)")
    a.stamp(2)
    a("s_barrier")
    cs = L(f"""
    s_lshl_b32 s21, s14, 4
    v_add_u32 v9, s21, v3
    v_cvt_f32_u32 v10, v9
    v_mul_f32 v10, {hx(1.0/128)}, v10
    v_mul_f32 v11, {hx(8.0)}, v10
    v_lshlrev_b32 v12, 5, v4
    v_cvt_f32_u32 v12, v12
    v_mul_f32 v12, v10, v12
    v_mov_b32 v15, 0x80008000
    """)
    for k in range(4):
        for hh in range(2):
            cs.append("v_mov_b32 v14, v12")
            for r in range(4):
                j = hh*4 + r
                cs.append(f"v_cos_f32 v{16+j}, v14")
                cs.append(f"v_sin_f32 v{24+j}, v14")
                if r < 3: cs.append("v_add_f32 v14, v11, v14")
            cs.append("v_add_f32 v12, v10, v12")
        for jj in range(4):
            cs.append(f"v_cvt_pk_bf16_f32 v{CS(0,0,k)+jj}, v{16+2*jj}, v{17+2*jj}")
            cs.append(f"v_cvt_pk_bf16_f32 v{CS(0,1,k)+jj}, v{24+2*jj}, v{25+2*jj}")
        for c_ in range(2):
            for jj in range(2):
                cs.append(f"v_mov_b32 v{CS(1,c_,k)+jj}, v{CS(0,c_,k)+jj}")
                cs.append(f"v_xor_b32 v{CS(1,c_,k)+2+jj}, v15, v{CS(0,c_,k)+2+jj}")
    cs.append("v_mul_u32_u24 v16, 80, v4")
    cs.append(f"""s_sub_u32 s21, 23, s16
    s_cmp_lt_u32 s16, 8
    s_cselect_b32 s21, s16, s21
    s_cselect_b32 s24, 16, 0
    s_add_u32 s50, s21, 1
    s_and_b32 s50, s50, 15
    s_sub_u32 s51, s21, s46
    s_and_b32 s51, s51, 7
    s_and_b32 s21, s21, 8
    s_add_u32 s21, s21, s51
    s_lshl_b32 s21, s21, 10
    s_sub_u32 s51, s50, s46
    s_and_b32 s51, s51, 7
    s_and_b32 s50, s50, 8
    s_add_u32 s50, s50, s51
    s_lshl_b32 s50, s50, 10
    s_mov_b32 s52, 0
    s_mov_b32 s53, 0xffff0000""")
    cs += L(f"""
    v_add_u32 v25, s21, v6
    v_add_u32 v26, 1, v4
    v_and_b32 v26, 3, v26
    v_xor_b32 v26, v26, v5
    v_lshlrev_b32 v26, 4, v26
    v_lshl_add_u32 v26, v3, 6, v26
    v_mov_b32 v27, s21
    v_mov_b32 v28, s50
    v_cndmask_b32 v27, v27, v28, s[52:53]
    v_add3_u32 v26, v26, v27, s17
    """)
    cs += L(f"""
    s_lshl_b32 s21, s14, 5
    s_add_u32 s21, s21, s15
    s_lshl_b32 s26, s21, 14
    s_lshl_b32 s27, s46, 11
    s_add_u32 s26, s26, s27
    s_lshr_b32 s27, s16, 3
    s_lshl_b32 s27, s27, 10
    s_add_u32 s26, s26, s27
    s_add_u32 s26, s26, {WS_XP}
    v_add_u32 v28, s26, v13
    v_add_u32 v29, 0x40000, v28
    v_mov_b32 v30, s24
    v_lshlrev_b32 v31, 14, v9
    s_lshl_b32 s26, s16, 10
    s_lshl_b32 s27, s15, 6
    s_add_u32 s26, s26, s27
    v_add_u32 v31, s26, v31
    v_lshl_add_u32 v31, v4, 4, v31
    v_add_u32 v17, 0x100000, v31
    v_add_u32 v18, s17, v13
    v_add_u32 v19, 0x10000, v13
    s_mov_b32 s25, {hx(1.0/512)}
    v_mov_b32 v27, {hx(1e-5)}
    """)
    def reads(k):
        s = k & 1
        o = [f"@waitv x{k}",
             f"ds_read_b128 {vr(FB(s,0),4)}, v61 offset:{(k*2)*1024}",
             f"ds_read_b128 {vr(FB(s,1),4)}, v61 offset:{(k*2+1)*1024}"]
        for hi in range(2):
            for rho in range(2):
                o.append(f"ds_read_b128 {vr(XB(s,hi,rho),4)}, v6 offset:{(rho*16 + k + 8*hi)*1024}")
        return o
    for it in xi[16:20]: a(it)
    a(reads(0))
    ncs = len(cs); per = (ncs + 6) // 7
    for k in range(8):
        seq = []
        if k < 7:
            seq += reads(k+1); seq.append("s_waitcnt lgkmcnt(6)")
        else:
            seq += L(f"""
            ds_read_b128 v[32:35], v25
            ds_read_b32 v36, v26
            ds_read_b128 v[40:43], v25 offset:16384
            ds_read_b32 v44, v26 offset:16384
            s_waitcnt lgkmcnt(4)
            """)
        s = k & 1
        if k == 0:
            seq.append(f"v_lshlrev_b32 v59, 16, v{XB(0,0,0)}")
            seq.append(f"v_lshlrev_b32 v60, 16, v{XB(0,0,1)}")
        for hi in range(2):
            for rho in range(2):
                first = (k == 0 and hi == 0)
                x = vr(XB(s,hi,rho),4)
                seq.append(f"{MF16} {vr(SQ(rho),4)}, {x}, {x}, {'0' if first else vr(SQ(rho),4)}")
                seq.append(f"{MF16} {vr(SM(rho),4)}, {x}, {vr(ONES,4)}, {'0' if first else vr(SM(rho),4)}")
        for hi in range(2):
            for rho in range(2):
                for tile in range(2):
                    c = "0" if k == 0 else vr(G(hi,rho,tile),4)
                    seq.append(f"{MF16} {vr(G(hi,rho,tile),4)}, {vr(XB(s,hi,rho),4)}, {vr(FB(s,tile),4)}, {c}")
        fill = cs[k*per:(k+1)*per] if k < 7 else []
        if k < 3:
            fill = weave(fill, xi[20+4*k:24+4*k])
        a(interleave(seq, fill))
    a.stamp(3)
    for rho in range(2):
        for r in range(4):
            a(f"ds_bpermute_b32 v{160+rho*4+r}, v16, v{SQ(rho)+r} offset:{4*r}")
    a("s_waitcnt lgkmcnt(8)")
    for rho in range(2):
        b = 32 + rho*8
        for k in range(4):
            a(f"v_alignbit_b32 v{48+rho*4+k}, v{b+k+1}, v{b+k}, v30")
        a(f"global_store_dwordx4 v{28+rho}, {vr(48+rho*4,4)}, s[6:7]")
    for rho in range(2):
        for r in range(4):
            a(f"v_mul_f32 v{SM(rho)+r}, s25, v{SM(rho)+r}")
    for rho in range(2):
        for tile in range(2):
            for r in range(4):
                a(f"v_fma_f32 v{G(0,rho,tile)+r}, v{G(1,rho,tile)+r}, v{56+tile}, v{G(0,rho,tile)+r}")
    for rho in range(2):
        for r in range(4):
            a(f"v_fma_f32 v{G(0,rho,1)+r}, -v{SM(rho)+r}, v58, v{G(0,rho,1)+r}")
    a("s_waitcnt lgkmcnt(0)")
    for rho in range(2):
        for r in range(4):
            q_ = 160+rho*4+r
            a(f"v_fma_f32 v{q_}, v{q_}, s25, v27")
            a(f"v_fma_f32 v{q_}, -v{SM(rho)+r}, v{SM(rho)+r}, v{q_}")
            a(f"v_rsq_f32 v{q_}, v{q_}")
    for rho in range(2):
        for tile in range(2):
            for r in range(4):
                a(f"v_mul_f32 v{G(0,rho,tile)+r}, v{G(0,rho,tile)+r}, v{160+rho*4+r}")
    for tile in range(2):
        for rho in range(2):
            a(f"v_cvt_pk_bf16_f32 v{184+tile*4+rho*2}, v{G(0,rho,tile)}, v{G(0,rho,tile)+1}")
            a(f"v_cvt_pk_bf16_f32 v{184+tile*4+rho*2+1}, v{G(0,rho,tile)+2}, v{G(0,rho,tile)+3}")
    a(f"""
    ds_write_b128 v18, v[184:187]
    ds_write_b128 v18, v[188:191] offset:1024
    s_cmp_lg_u32 s16, 0
    s_cbranch_scc1 K1_nomx
    @cond_begin
    s_lshl_b32 s26, s21, 6
    s_add_u32 s26, s26, {WS_MX}
    v_lshl_add_u32 v20, v4, 4, s26
    v_lshl_add_u32 v21, v3, 2, s26
    s_mov_b64 s[28:29], exec
    s_mov_b32 exec_lo, 0x00010001
    s_mov_b32 exec_hi, 0x00010001
    global_store_dwordx4 v20, {vr(SM(0),4)}, s[6:7]
    global_store_dwordx4 v20, {vr(SM(1),4)}, s[6:7] offset:1024
    s_mov_b64 exec, 0xffff
    v_add_u32 v21, {WS_X0 - WS_MX}, v21
    global_store_dword v21, v59, s[6:7]
    global_store_dword v21, v60, s[6:7] offset:1024
    s_mov_b64 exec, s[28:29]
    @cond_end
    K1_nomx:
    s_waitcnt lgkmcnt(0)
    """)
    a.stamp(4)
    a("s_barrier")
    a.stamp(5)
    AR = lambda k: 192 + k*4
    AI = lambda k: 160 + k*4
    NR = lambda k: 232 + k*4
    for k in range(4):
        b = 13 if k < 2 else 19
        a(f"ds_read_b128 {vr(AR(k),4)}, v{b} offset:{(k&1)*32768}")
        a(f"ds_read_b128 {vr(AI(k),4)}, v{b} offset:{(k&1)*32768 + 1024}")
    VA = lambda t, c: 128 + (t*2 + c)*4
    for k in range(4):
        a(f"s_waitcnt lgkmcnt({6-2*k})")
        for jj in range(4):
            a(f"v_xor_b32 v{NR(k)+jj}, v15, v{AR(k)+jj}")
        for t in range(2):
            c0 = "0" if k == 0 else vr(VA(t,0),4)
            c1 = "0" if k == 0 else vr(VA(t,1),4)
            a(f"{MF16} {vr(VA(t,0),4)}, {vr(AR(k),4)}, {vr(CS(t,0,k),4)}, {c0}")
            a(f"{MF16} {vr(VA(t,1),4)}, {vr(AI(k),4)}, {vr(CS(t,0,k),4)}, {c1}")
        for t in range(2):
            a(f"{MF16} {vr(VA(t,0),4)}, {vr(AI(k),4)}, {vr(CS(t,1,k),4)}, {vr(VA(t,0),4)}")
            a(f"{MF16} {vr(VA(t,1),4)}, {vr(NR(k),4)}, {vr(CS(t,1,k),4)}, {vr(VA(t,1),4)}")
    for t in range(2):
        o = 32 + t*4
        a(f"v_cvt_pk_bf16_f32 v{o}, v{VA(t,0)}, v{VA(t,0)+1}")
        a(f"v_cvt_pk_bf16_f32 v{o+1}, v{VA(t,0)+2}, v{VA(t,0)+3}")
        a(f"v_cvt_pk_bf16_f32 v{o+2}, v{VA(t,1)}, v{VA(t,1)+1}")
        a(f"v_cvt_pk_bf16_f32 v{o+3}, v{VA(t,1)+2}, v{VA(t,1)+3}")
        a(f"global_store_dwordx4 v{31 if t == 0 else 17}, {vr(o,4)}, s[6:7]")
    a.stamp(6)
    if STAMPS: a("s_waitcnt vmcnt(0)")
    a.stamp(7); a.stamp(15)
    a.dump_stamps(WS_ST)
    a("s_endpgm")
    a("K1_helper:")
    a("s_mov_b32 s45, s14")
    a.stamp(0); a.stamp(14)
    a("s_barrier")
    for _ in range(HSLEEP): a("s_sleep 16")
    a(f"""
    s_sub_u32 s14, s14, 4
    s_lshl_b32 s17, s2, 2
    s_add_u32 s17, s17, s14
    s_lshl_b32 s24, s14, 12
    s_add_u32 s24, s24, {K1_LDS_HELP}
    v_add_u32 v14, s24, v13
    v_lshrrev_b32 v5, 2, v3
    v_and_b32 v6, 3, v3
    v_lshlrev_b32 v6, 3, v6
    v_lshrrev_b32 v7, 1, v4
    v_lshl_add_u32 v7, v7, 3, v5
    v_lshl_add_u32 v7, v7, 6, v6
    v_and_b32 v8, 1, v4
    v_lshl_add_u32 v7, v8, 11, v7
    v_add_u32 v7, s24, v7
    v_lshrrev_b32 v9, 1, v4
    v_lshlrev_b32 v9, 4, v9
    v_lshl_add_u32 v9, v8, 2, v9
    v_add_u32 v9, v9, v5
    v_lshl_add_u32 v9, v9, 7, v6
    v_add_u32 v9, s24, v9
    v_lshrrev_b32 v10, 3, v2
    v_and_b32 v11, 7, v2
    v_lshlrev_b32 v11, 4, v11
    v_lshl_add_u32 v10, v10, 10, v11
    s_waitcnt lgkmcnt(0)
    s_cmp_ge_u32 s17, 16
    s_cbranch_scc1 K1_nofl
    @cond_begin
    s_lshl_b32 s26, s17, 10
    s_add_u32 s26, s26, {WS_FL}
    v_add_u32 v12, s26, v13
    v_mov_b32 v16, 0
    v_mov_b32 v17, 0
    v_mov_b32 v18, 0
    v_mov_b32 v19, 0
    global_store_dwordx4 v12, v[16:19], s[6:7]
    s_nop 1
    @cond_end
    K1_nofl:
    """)
    def down_load(sreg, rb, sd):
        a(f"""
        s_lshr_b32 s26, {sreg}, 3
        s_and_b32 s27, {sreg}, 7
        s_and_b32 s28, s26, 15
        s_mul_i32 s28, s28, 7
        s_lshr_b32 s29, s26, 4
        s_lshl_b32 s29, s29, 1
        s_add_u32 s28, s28, s29
        s_sub_u32 s29, s26, 48
        s_mul_i32 s29, s29, 14
        s_add_u32 s29, s29, 6            ; case C
        s_cmp_lt_u32 s26, 48
        s_cselect_b32 s28, s28, s29      ; tA
        s_cselect_b32 s29, 1, 7
        s_lshl_b32 s28, s28, 14
        s_lshl_b32 s29, s29, 14
        s_sub_u32 s29, s29, 0x2000
        s_lshl_b32 s35, s27, 7
        s_add_u32 s28, s28, s35
        v_add_u32 v12, s28, v10
        s_mul_i32 s28, s27, 224
        s_add_u32 s28, s28, s26
        s_lshl_b32 s28, s28, 10
        s_add_u32 s{sd}, s28, {WS_WD}
        """)
        for ins in range(4):
            a(f"global_load_dwordx4 {vr(rb+4*ins,4)}, v12, s[12:13]")
            if ins == 1: a("v_add_u32 v12, s29, v12")
            elif ins < 3: a("v_add_u32 v12, 0x2000, v12")
    def down_proc(rb, sd):
        for ins in range(4):
            a(f"ds_write_b128 v14, {vr(rb+4*ins,4)} offset:{ins*1024}")
        a(f"v_add_u32 v12, s{sd}, v13")
        a("s_waitcnt lgkmcnt(0)")
        for ct in range(4):
            a(f"ds_read_b64_tr_b16 v[{48+ct*4}:{49+ct*4}], v9 offset:{ct*32}")
            a(f"ds_read_b64_tr_b16 v[{50+ct*4}:{51+ct*4}], v9 offset:{ct*32 + 1024}")
        for ct in range(4):
            a(f"s_waitcnt lgkmcnt({6-2*ct})")
            a(f"global_store_dwordx4 v12, {vr(48+ct*4,4)}, s[6:7]")
            if ct < 3: a(f"v_add_u32 v12, {56*1024}, v12")
    a("""
    s_cmp_ge_u32 s17, 896
    s_cbranch_scc1 K1_hA_down
    """)
    a.cond_begin()
    a(f"""
    s_and_b32 s26, s17, 15
    s_lshr_b32 s27, s17, 4
    s_and_b32 s28, s26, 7
    s_lshl_b32 s28, s28, 5
    s_add_u32 s29, s28, 1
    s_sub_u32 s28, 511, s28
    s_cmp_lt_u32 s26, 8
    s_cselect_b32 s30, s29, s28
    s_cselect_b32 s31, 1, -1
    s_cselect_b32 s32, -1, 256
    s_lshl_b32 s33, s27, 6
    s_mov_b32 s34, 3584
    s_lshl_b32 s28, s27, 5
    s_add_u32 s28, s28, s26
    s_lshl_b32 s28, s28, 11
    s_add_u32 s40, s28, {WS_WUP}
    v_lshrrev_b32 v11, 2, v2
    v_and_b32 v15, 3, v2
    v_lshlrev_b32 v15, 4, v15
    """)
    for ins in range(2):
        a(f"""
        v_add_u32 v12, {16*ins}, v11
        v_mul_lo_u32 v12, v12, s31
        v_add_u32 v12, s30, v12
        v_cmp_ne_u32 vcc, s32, v12
        v_cndmask_b32 v12, 0, v12, vcc
        v_mul_lo_u32 v12, v12, s34
        v_add3_u32 v12, v12, s33, v15
        global_load_dwordx4 {vr(16+4*ins,4)}, v12, s[8:9]
        global_load_dwordx4 {vr(24+4*ins,4)}, v12, s[10:11]
        """)
    a("s_branch K1_hA_go")
    a.cond_end()
    a("K1_hA_down:")
    a.cond_begin()
    a("s_sub_u32 s25, s17, 896")
    down_load("s25", 16, 40)
    a.cond_end()
    a("K1_hA_go:")
    a("""
    s_cmp_ge_u32 s17, 320
    s_cbranch_scc1 K1_hB_skip
    """)
    a.cond_begin()
    a("s_add_u32 s25, s17, 128")
    down_load("s25", 32, 41)
    a.cond_end()
    a("K1_hB_skip:")
    a.stamp(1)
    a("s_waitcnt vmcnt(0)")
    a.stamp(2)
    a("""
    s_cmp_ge_u32 s17, 896
    s_cbranch_scc1 K1_hA_down2
    """)
    a.cond_begin()
    for ins in range(4):
        a(f"ds_write_b128 v14, {vr(16+4*ins,4)} offset:{ins*1024}")
    a("v_add_u32 v12, s40, v13")
    a("s_waitcnt lgkmcnt(0)")
    idx = 0
    for Pp in range(2):
        for aa in range(2):
            a(f"ds_read_b64_tr_b16 v[{48+idx*4}:{49+idx*4}], v7 offset:{aa*256 + Pp*32}")
            a(f"ds_read_b64_tr_b16 v[{50+idx*4}:{51+idx*4}], v7 offset:{aa*256 + Pp*32 + 1024}")
            idx += 1
    idx = 0
    for Pp in range(2):
        for aa in range(2):
            a(f"s_waitcnt lgkmcnt({6-2*idx})")
            a(f"global_store_dwordx4 v12, {vr(48+idx*4,4)}, s[6:7] offset:{aa*1024}")
            idx += 1
        if Pp == 0: a("v_add_u32 v12, 0x8000, v12")
    a("s_branch K1_hA_go2")
    a.cond_end()
    a("K1_hA_down2:")
    a.cond_begin()
    down_proc(16, 40)
    a.cond_end()
    a("K1_hA_go2:")
    a("""
    s_cmp_ge_u32 s17, 320
    s_cbranch_scc1 K1_hend
    s_nop 1
    """)
    a.cond_begin()
    down_proc(32, 41)
    a.cond_end()
    a("K1_hend:")
    a.stamp(3)
    if STAMPS: a("s_waitcnt vmcnt(0)")
    for k in range(4, 8): a.stamp(k)
    a.stamp(15)
    a.dump_stamps(WS_ST, wave="s45")
    a("K1_done:")
    a("s_endpgm")
    txt = a.finalize()
    if K1SC:
        out = []
        inh = False
        for l in txt.split("\n"):
            if l.startswith("K1_helper:"): inh = True
            if inh and l.strip().startswith("global_store") and "sc1" not in l:
                l = l.split(";")[0].rstrip() + (" sc1" if K1SC == 1 else " nt" if K1SC == 2 else " sc0 sc1")
            out.append(l)
        txt = "\n".join(out)
    return txt

K2_LDS = 163840
REG = 40960


def arrive(name, off):
    return f"""s_lshl_b32 s22, s15, 10
    s_lshl_b32 s23, s16, 4
    s_add_u32 s22, s22, s23
    s_lshl_b32 s23, s14, 2
    s_add_u32 s22, s22, s23
    s_add_u32 s22, s22, {WS_FL + off}
    v_mov_b32 v27, s22
    v_mov_b32 v28, 1
    s_mov_b64 s[36:37], exec
    s_mov_b64 exec, 1
    global_store_dword v27, v28, s[6:7] sc1
    s_mov_b64 exec, s[36:37]"""
def poll_issue(name, off):
    return f"""s_lshl_b32 s22, s15, 10
    s_add_u32 s22, s22, {WS_FL + off}
    v_lshl_add_u32 v30, v2, 2, s22
    global_load_dword v29, v30, s[6:7] sc1 ;@tag=fl{name}"""
def poll_check(name, off):
    return [f"@waitv fl{name}", f"""v_cmp_eq_u32 vcc, 1, v29
    s_cmp_eq_u64 vcc, exec
    s_cbranch_scc1 KD_ready{name}
    @cond_begin
    s_mov_b32 s23, 0
    KD_poll{name}:
    global_load_dword v29, v30, s[6:7] sc1
    s_waitcnt vmcnt(0)
    v_cmp_eq_u32 vcc, 1, v29
    s_add_u32 s23, s23, 1
    s_cmp_eq_u64 vcc, exec
    s_cbranch_scc1 KD_ready{name}
    s_cmp_lt_u32 s23, 0x4000
    s_cbranch_scc1 KD_poll{name}
    @cond_end
    KD_ready{name}:"""]

KD_STG = 32768
def phaseD_setup(WD3):
    SEL = lambda x: 104 + x*4
    o = []
    o.append(f"""s_and_b32 s22, s16, 1
    s_lshl_b32 s22, s22, 1
    s_lshl_b32 s23, s15, 2
    s_add_u32 s46, s22, s23
    s_sub_u32 s47, 128, s46
    s_cmp_eq_u32 s46, 0
    s_cselect_b32 s47, 64, s47
    s_add_u32 s48, s46, 1
    s_sub_u32 s49, 128, s48
    s_cmp_eq_u32 s14, 1
    s_cselect_b32 s50, s47, s46
    s_cmp_eq_u32 s14, 2
    s_cselect_b32 s50, s48, s50
    s_cmp_eq_u32 s14, 3
    s_cselect_b32 s50, s49, s50
    s_mul_i32 s22, s50, 57344
    s_add_u32 s22, s22, {WS_HH}
    v_add_u32 v7, s22, v5
    s_add_u32 s24, s6, 4096
    s_addc_u32 s25, s7, 0""")
    o.append(f"""s_lshr_b32 s30, s61, 1
    s_lshl_b32 s31, s61, 4
    s_sub_u32 s32, 496, s31
    s_lshr_b32 s32, s32, 5
    s_add_u32 s32, s32, 8
    s_cmp_lt_u32 s61, 16
    s_cselect_b32 s30, s30, s32
    s_sub_u32 s33, s30, 1
    s_cmp_eq_u32 s61, 0
    s_cselect_b32 s33, 15, s33
    s_cmp_eq_u32 s61, 16
    s_cselect_b32 s33, 7, s33
    s_max_i32 s33, s33, 0
    s_and_b32 s34, s61, 1
    s_cmp_gt_u32 s61, 16
    s_cselect_b32 s34, 1, s34
    s_lshl_b32 s52, s30, 10
    s_add_u32 s52, s52, {WS_HC}
    v_add_u32 v14, s52, v5
    s_lshl_b32 s52, s33, 10
    s_add_u32 s52, s52, {WS_HC}
    v_add_u32 v15, s52, v5""")
    o += L(f"""
    v_lshlrev_b32 v6, 2, v3
    v_add_u32 v6, {WS_MT}, v6
    v_lshlrev_b32 v12, 17, v3
    v_mov_b32 v13, s61
    v_lshl_add_u32 v12, v13, 5, v12
    v_lshl_add_u32 v12, v4, 3, v12
    v_add_u32 v16, s31, v3
    v_mov_b32 v23, 0x3f80
    """)
    for x, sk in ((0, 30), (1, 33)):
        o.append(f"""s_and_b32 s52, s{sk}, 7
        s_lshl_b32 s52, s52, 5
        s_sub_u32 s56, -1, s52
        s_sub_u32 s57, 511, s52
        s_cmp_lt_u32 s{sk}, 8
        s_cselect_b32 s56, s56, s57
        s_cselect_b32 s57, 1, -1
        s_cmp_eq_u32 s{sk}, 15
        s_cselect_b32 s58, 0, -1
        s_cselect_b32 s59, 256, -1""")
        o += L(f"""
        v_mul_lo_u32 v17, v16, s57
        v_add_u32 v17, s56, v17
        v_cmp_eq_u32 vcc, s59, v16
        v_cndmask_b32 v17, v17, -1, vcc
        v_cmp_eq_u32 vcc, s58, v16
        v_cndmask_b32 v17, v17, 31, vcc
        """)
        if x == 1:
            o.append("""s_cmp_eq_u32 s34, 1
            s_cselect_b32 s52, -1, 0
            v_or_b32 v17, s52, v17""")
        o += L(f"""
        v_bfe_u32 v18, v17, 2, 2
        v_cmp_eq_u32 vcc, v18, v4
        v_cndmask_b32 v17, -1, v17, vcc
        v_lshrrev_b32 v18, 4, v17
        v_lshlrev_b32 v18, 1, v18
        v_bfe_u32 v19, v17, 1, 1
        v_add_u32 v18, v18, v19
        v_and_b32 v19, 1, v17
        v_lshlrev_b32 v19, 4, v19
        v_lshlrev_b32 v19, v19, v23
        """)
        for jj in range(4):
            o.append(f"v_cmp_eq_u32 vcc, {jj}, v18")
            o.append(f"v_cndmask_b32 v{SEL(x)+jj}, 0, v19, vcc")
    return o

QD = [2, 1, 3, 4, 0, 2, 1]
def d_items(sg):
    l = []
    for k in range(8):
        tag = f" ;@tag=s{sg}" if k == 7 else ""
        x = []
        x.append(f"s_add_u32 m0, s21, {QD[sg]*8192 + (k & 4)*1024}")
        x.append(f"global_load_lds_dwordx4 v7, {'s[6:7]' if k < 4 else 's[24:25]'} offset:{(k&3)*1024} sc1{tag}")
        if k == 7: x.append("v_add_u32 v7, 0x2000, v7")
        l.append("\n".join(x))
    return l

def phaseD(a, ep6, wd_rest, WD3, su):
    HB = lambda s: 128 + s*4
    ACC = lambda k: 160 + k*4
    HC = lambda k, x: 176 + (k*2 + x)*4
    SEL = lambda x: 104 + x*4
    MT = 216
    a(weave(ep6, wd_rest))
    a(poll_check("B", 256))
    a(weave(su, [[x] for x in d_items(2) + d_items(3)]) if su else d_items(2) + d_items(3))
    a("@waitv hh5")
    a(arrive("C", 512))
    a.stamp(8)
    hcl = []
    for k in range(4):
        hcl.append(f"s_lshl_b32 s22, s{46+k}, 14\nv_add_u32 v17, s22, v14\nglobal_load_dwordx4 {vr(HC(k,0),4)}, v17, s[6:7] sc1\nv_add_u32 v17, s22, v15\nglobal_load_dwordx4 {vr(HC(k,1),4)}, v17, s[6:7] sc1")
        hcl.append(f"s_lshl_b32 s22, s{46+k}, 6\nv_add_u32 v17, s22, v6\nglobal_load_dword v{MT+k}, v17, s[6:7] sc1")
    def rd(slot, sg, k, tile):
        return f"ds_read_b128 {vr(HB(slot),4)}, v{32+tile} offset:{QD[sg]*8192 + k*1024}"
    for sg in range(7):
        a(f"@waitv s{sg}" + (",wd" if sg == 0 else ""))
        a("s_barrier")
        if sg in (0, 2, 4): a.stamp(9 + sg//2)
        seq = [(k, t) for k in range(8) for t in range(4)]
        main = [rd(x & 7, sg, *seq[x]) for x in range(6)]
        for x, (k, t) in enumerate(seq):
            if x + 6 < 32:
                main.append(rd((x+6) & 7, sg, *seq[x+6])); main.append("s_waitcnt lgkmcnt(6)")
            else:
                main.append(f"s_waitcnt lgkmcnt({31-x})")
            c = "0" if (sg == 0 and k == 0) else vr(ACC(t),4)
            main.append(f"{MF16} {vr(ACC(t),4)}, {ar(WD3(sg*8+k),4)}, {vr(HB(x&7),4)}, {c}")
        fill = []
        if sg == 0: fill = hcl + ["@waitv hh6", arrive("D", 768), poll_issue("C", 512)]
        if sg == 1: fill = ["s_nop 0"]*12 + poll_check("C", 512) + d_items(4) + d_items(5)[:4]
        if sg == 2: fill = d_items(5)[4:] + [poll_issue("D", 768)]
        if sg == 3: fill = ["s_nop 0"]*8 + poll_check("D", 768) + d_items(6)
        a(interleave(main, fill))
        if sg == 4:
            for x in range(2):
                for t in range(4):
                    a(f"{MF16} {vr(ACC(t),4)}, {vr(SEL(x),4)}, {vr(HC(t,x),4)}, {vr(ACC(t),4)}")
    a.stamp(12)
    for k in range(4):
        a(f"s_lshl_b32 s22, s{46+k}, 10")
        a(f"v_add_u32 v{220+k}, s22, v12")
        for r in range(4):
            a(f"v_add_f32 v{ACC(k)+r}, v{MT+k}, v{ACC(k)+r}")
        a(f"v_cvt_pk_bf16_f32 v{224+2*k}, v{ACC(k)}, v{ACC(k)+1}")
        a(f"v_cvt_pk_bf16_f32 v{225+2*k}, v{ACC(k)+2}, v{ACC(k)+3}")
        a(f"global_store_dwordx2 v{220+k}, v[{224+2*k}:{225+2*k}], s[8:9]")

def gen_k2():
    a = Asm(); a.stamps = STAMPS
    H = lambda rho, k: 128 + (rho*16 + k)*4
    XF = lambda rho, k: (rho*16 + k)*4
    T = lambda rho, d: 32 + (rho*2 + d)*4
    SEL = lambda d, tb: 48 + (d*2 + tb)*4
    NEGM = lambda rho: 64 + rho*4
    ACC = lambda s, tb: 72 + (s*2 + tb)*4
    TP = lambda rho, d: 104 + (rho*2 + d)*4
    VA = lambda s, tb: 128 + (s*2 + tb)*4
    WF = lambda s: 160 + s*4
    VW = [8, 9, 25, 26]
    SC = "sc1" if FUSE else ""
    def WD3(k):
        return 4*k if k < 32 else (128 + 4*(k-32) if k < 40 else 192 + 4*(k-40))
    a(f"""
    s_cmp_ge_u32 s2, 256
    s_cbranch_scc1 K2_done
    s_load_dwordx2 s[6:7], s[0:1], 88
    s_load_dwordx4 s[8:11], s[0:1], 72
    v_lshrrev_b32 v1, 6, v0
    v_and_b32 v2, 63, v0
    v_readfirstlane_b32 s14, v1
    v_and_b32 v3, 15, v2
    v_lshrrev_b32 v4, 4, v2
    v_lshlrev_b32 v5, 4, v2
    s_and_b32 s15, s2, 3
    s_lshl_b32 s15, s15, 2
    s_bfe_u32 s16, s2, 0x20003
    s_add_u32 s15, s15, s16          ; j
    s_bfe_u32 s16, s2, 0x10002
    s_lshl_b32 s16, s16, 3
    s_lshr_b32 s17, s2, 5
    s_add_u32 s16, s16, s17          ; n
    s_lshl_b32 s17, s15, 2
    s_add_u32 s17, s17, s14          ; a0
    s_sub_u32 s18, 128, s17
    s_cmp_eq_u32 s17, 0
    s_cselect_b32 s18, 64, s18       ; a1
    s_cselect_b32 s19, 0, 16384
    s_cselect_b32 s20, 16384, 0
    s_mul_i32 s21, s14, {REG}
    s_lshl_b32 s22, s17, 14
    s_lshl_b32 s23, s18, 14
    v_add_u32 v6, s22, v5
    v_add_u32 v7, s23, v5
    v_add_u32 v12, {WS_XP}, v6
    v_add_u32 v13, {WS_XP}, v7
    s_lshl_b32 s22, s17, 6
    s_lshl_b32 s23, s18, 6
    s_add_u32 s22, s22, {WS_MX}
    s_add_u32 s23, s23, {WS_MX}
    v_lshl_add_u32 v14, v3, 2, s22
    v_lshl_add_u32 v15, v3, 2, s23
    s_cmp_ge_u32 s16, 7
    s_cselect_b32 s53, 7, 0
    s_sub_u32 s53, s16, s53
    s_cmp_ge_u32 s53, 7
    s_cselect_b32 s22, 7, 0
    s_sub_u32 s53, s53, s22
    s_cmp_ge_u32 s15, 7
    s_cselect_b32 s54, 7, 0
    s_sub_u32 s54, s15, s54
    s_cmp_ge_u32 s54, 7
    s_cselect_b32 s22, 7, 0
    s_sub_u32 s54, s54, s22
    """)
    if not ROT2: a("s_mov_b32 s53, 0")
    if not ROTP: a("s_mov_b32 s54, 0")
    for i in range(7):
        a(f"""
        s_add_u32 s{46+i}, s53, {i}
        s_cmp_ge_u32 s{46+i}, 7
        s_cselect_b32 s22, 7, 0
        s_sub_u32 s{46+i}, s{46+i}, s22
        s_lshl_b32 s{46+i}, s{46+i}, 11
        """)
    a("""
    s_waitcnt lgkmcnt(0)
    s_add_u32 s26, s6, 8192
    s_addc_u32 s27, s7, 0
    s_add_u32 s28, s6, 12288
    s_addc_u32 s29, s7, 0
    """)
    a.stamp(0); a.stamp(14)
    for sel in range(2):
        a(f"s_add_u32 m0, s21, {sel*16384 + 12288}")
        a(f"global_load_lds_dwordx4 v{6+sel}, s[28:29] offset:3072")
    a("""
    global_load_dword v16, v14, s[6:7]
    global_load_dword v18, v15, s[6:7]
    global_load_dword v17, v14, s[26:27]
    global_load_dword v19, v15, s[26:27] ;@tag=first
    """)
    pair_items = []
    for i in range(8):
        it = []
        if i < 7:
            for sel in range(2):
                for tb in range(2):
                    x = []
                    if tb == 0: x.append(f"v_add_u32 v{252+sel}, s{46+i}, v{6+sel}")
                    x += [f"s_add_u32 m0, s21, {sel*16384 + 2*i*1024}",
                          f"global_load_lds_dwordx4 v{252+sel}, s[6:7] offset:{tb*1024}"]
                    it.append(x)
            for rho in range(2):
                for d in range(2):
                    x = []
                    if d == 0: x.append(f"v_add_u32 v{254+rho}, s{46+i}, v{12+rho}")
                    tag = f" ;@tag=p{i}" if (d == 1 and rho == 1) else ""
                    x.append(f"global_load_dwordx4 {ar(XF(rho,i+8*d),4)}, v{254+rho}, s[6:7] offset:{d*1024}{tag}")
                    it.append(x)
        else:
            for sel in range(2):
                it.append([f"s_add_u32 m0, s21, {sel*16384 + 12288}", f"global_load_lds_dwordx4 v{6+sel}, s[28:29] offset:2048"])
            for rho in range(2):
                for d in range(2):
                    tag = f" ;@tag=p{i}" if (d == 1 and rho == 1) else ""
                    it.append([f"global_load_dwordx4 {ar(XF(rho,i+8*d),4)}, v{12+rho}, s[28:29] offset:{2048+d*1024}{tag}"])
        pair_items.append(it)
    for it in pair_items[0]: a(it)
    QB = [4, 0, 2, 1, 3, 4, 0]
    def wdma_items(p):
        l = []
        for k in range(4):
            for aa in range(2):
                tag = f" ;@tag=w{p}" if (k == 3 and aa == 1) else ""
                x = [f"s_add_u32 m0, s21, {QB[p]*8192 + 2*k*1024}",
                     f"global_load_lds_dwordx4 v{VW[k]}, s[6:7] offset:{aa*1024}{tag}"]
                if aa == 1:
                    if k == 0:
                        x.append(f"s_cmp_eq_u32 s54, {6-p}\ns_cselect_b32 s55, -6, 1\ns_lshl_b32 s55, s55, 15")
                    x.append(f"v_add_u32 v{VW[k]}, s55, v{VW[k]}")
                l.append(x)
        return l
    a.stamp(1)
    su = L(f"""
    v_mov_b32 v127, 0x3f80
    v_lshlrev_b32 v8, 7, v3
    v_add_u32 v9, s18, v8
    v_add_u32 v8, s17, v8
    s_mov_b32 s32, 0xffff0000
    s_mov_b32 s33, 0xffff0000
    v_lshlrev_b32 v25, 2, v4
    v_cvt_f32_u32 v25, v25
    v_mov_b32 v26, 0x80008000
    """)
    for rho in range(2):
        su += L(f"""
        v_cvt_f32_u32 v27, v{8+rho}
        v_mul_f32 v27, {hx(1.0/2048)}, v27
        v_mul_f32 v28, v27, v25
        """)
        for r in range(4):
            su.append(f"v_cos_f32 v{72+r}, v28")
            su.append(f"v_sin_f32 v{76+r}, v28")
            if r < 3: su.append("v_add_f32 v28, v27, v28")
        for r in range(8): su.append(f"v_mul_f32 v{80+r}, 0.5, v{72+r}")
        su += L(f"""
        v_cvt_pk_bf16_f32 v88, v72, v73
        v_cvt_pk_bf16_f32 v89, v74, v75
        v_cvt_pk_bf16_f32 v90, v76, v77
        v_cvt_pk_bf16_f32 v91, v78, v79
        v_cvt_pk_bf16_f32 v92, v80, v81
        v_cvt_pk_bf16_f32 v93, v82, v83
        v_cvt_pk_bf16_f32 v94, v84, v85
        v_cvt_pk_bf16_f32 v95, v86, v87
        v_xor_b32 v96, v26, v90
        v_xor_b32 v97, v26, v91
        v_xor_b32 v98, v26, v94
        v_xor_b32 v99, v26, v95
        """)
        for dst, c0, c1 in ((TP(rho,0), 98, 92), (TP(rho,1), 94, 92), (T(rho,0), 88, 90), (T(rho,1), 88, 96)):
            for k in range(2):
                su.append(f"v_cndmask_b32 v{dst+k}, v{c0+k}, v{c1+k}, s[32:33]")
                su.append(f"v_cndmask_b32 v{dst+2+k}, v{c1+k}, v{c0+k}, s[32:33]")
    su += L(f"""
    v_lshrrev_b32 v27, 2, v3
    v_lshl_add_u32 v27, v4, 2, v27
    v_lshlrev_b32 v27, 6, v27
    v_and_b32 v28, 3, v3
    v_lshl_add_u32 v27, v28, 4, v27
    v_and_b32 v28, 1, v4
    v_lshl_add_u32 v27, v28, 3, v27
    v_add_u32 v120, s21, v27
    v_xor_b32 v121, 8, v120
    v_add_u32 v122, s19, v120
    v_add_u32 v123, s19, v121
    v_add_u32 v124, s20, v120
    v_add_u32 v125, s20, v121
    v_add_u32 v27, 48, v3
    v_lshlrev_b32 v126, 2, v27
    """)
    a(weave(su, pair_items[1] + pair_items[2]))
    def trread(dst, rho, d, g_):
        if d == 0: b0, b1, off = 120, 121, rho*16384 + g_*1024
        else: b0, b1, off = 122+2*rho, 123+2*rho, g_*1024
        return [f"ds_read_b64_tr_b16 {ar(dst,2)}, v{b0} offset:{off}", f"ds_read_b64_tr_b16 {ar(dst+2,2)}, v{b1} offset:{off}"]
    a.stamp(2)
    a("@waitv first")
    for rho in range(2):
        a(trread(VA(2+rho,0), rho, 0, 15)); a(trread(VA(2+rho,1), rho, 1, 15))
    se = L(f"""
    v_lshlrev_b32 v27, 3, v4
    v_sub_u32 v28, v3, v27
    v_sub_u32 v29, 0, v3
    v_sub_u32 v29, v29, v27
    """)
    for (d, tb, src, add) in ((0,0,28,0), (0,1,28,16), (1,0,29,31), (1,1,29,15)):
        se += L(f"""
        v_add_u32 v30, {add}, v{src}
        v_and_b32 v31, 1, v30
        v_lshlrev_b32 v31, 4, v31
        v_lshlrev_b32 v31, v31, v127
        v_lshrrev_b32 v30, 1, v30
        """)
        for jj in range(4):
            se.append(f"v_cmp_eq_u32 s[{56+2*(jj&1)}:{57+2*(jj&1)}], {jj}, v30\nv_cmp_eq_u32 vcc, {jj}, v30" if False else f"v_cmp_eq_u32 s[{56+2*(jj&1)}:{57+2*(jj&1)}], {jj}, v30")
            if jj & 1:
                se.append(f"v_cndmask_b32 v{SEL(d,tb)+jj-1}, 0, v31, s[56:57]")
                se.append(f"v_cndmask_b32 v{SEL(d,tb)+jj}, 0, v31, s[58:59]")
    a(se[:20])
    a("s_waitcnt lgkmcnt(0)")
    for rho in range(2):
        a(f"{MF16} {vr(ACC(2+rho,0),4)}, {ar(VA(2+rho,0),4)}, {vr(TP(rho,0),4)}, 0")
    for rho in range(2):
        a(f"{MF16} {vr(ACC(2+rho,0),4)}, {ar(VA(2+rho,1),4)}, {vr(TP(rho,1),4)}, {vr(ACC(2+rho,0),4)}")
    a(se[20:38])
    for rho in range(2):
        a(f"ds_bpermute_b32 v{22+rho}, v126, v{ACC(2+rho,0)+3}")
    a(se[38:])
    a(f"""
    s_mul_i32 s42, s16, 7
    s_add_u32 s30, s42, s54
    s_lshl_b32 s30, s30, 15
    s_add_u32 s30, s30, {WS_WUP}
    """)
    for k in range(4):
        a(f"""
        s_lshl_b32 s22, s14, 2
        s_add_u32 s22, s22, {k}
        s_and_b32 s23, s22, 7
        s_add_u32 s31, s23, s53
        s_cmp_ge_u32 s31, 7
        s_cselect_b32 s55, 7, 0
        s_sub_u32 s31, s31, s55
        s_cmp_eq_u32 s23, 7
        s_cselect_b32 s31, 7, s31
        s_and_b32 s22, s22, 8
        s_add_u32 s31, s31, s22
        s_lshl_b32 s31, s31, 11
        s_add_u32 s31, s31, s30
        v_add_u32 v{VW[k]}, s31, v5
        """)
    a(f"""
    s_and_b32 s22, s16, 7
    s_sub_u32 s23, s22, s53
    s_add_u32 s31, s23, 7
    s_cmp_lt_i32 s23, 0
    s_cselect_b32 s23, s31, s23
    s_cmp_eq_u32 s22, 7
    s_cselect_b32 s23, 7, s23
    s_and_b32 s22, s16, 8
    s_add_u32 s60, s23, s22
    s_lshl_b32 s22, s16, 10
    s_add_u32 s22, s22, {WS_HC}
    v_mov_b32 v27, s17
    v_mov_b32 v28, s18
    v_cndmask_b32 v27, v27, v28, s[32:33]
    v_lshrrev_b32 v28, 1, v4
    v_lshlrev_b32 v10, 14, v27
    v_lshl_add_u32 v10, v28, 9, v10
    v_lshl_add_u32 v10, v3, 4, v10
    v_add_u32 v10, s22, v10
    s_mov_b32 s36, 57344
    v_mul_lo_u32 v11, v27, s36
    v_lshl_add_u32 v11, v28, 8, v11
    v_lshl_add_u32 v11, v3, 4, v11
    s_mov_b32 s34, 0
    s_mov_b32 s35, 0xffff0000
    s_waitcnt lgkmcnt(0)
    """)
    for rho in range(2):
        a(f"v_add_f32 v{16+2*rho}, v{16+2*rho}, v{22+rho}")
        for r in range(4):
            a(f"v_sub_f32 v{NEGM(rho)+r}, 0, v{16+2*rho}")
    for r in range(20, 24): a(f"v_mov_b32 v{r}, 0")
    mt_store = f"""s_cmp_eq_u32 s16, 0
    s_cbranch_scc0 K2_nomt
    @cond_begin
    v_add_u32 v14, {WS_MT - WS_MX}, v14
    v_add_u32 v15, {WS_MT - WS_MX}, v15
    s_mov_b64 s[36:37], exec
    s_mov_b64 exec, 0xffff
    global_store_dword v14, v16, s[6:7] {SC}
    global_store_dword v15, v18, s[6:7] {SC}
    s_mov_b64 exec, s[36:37]
    @cond_end
    K2_nomt:"""
    groups = [(i, d) for i in range(8) for d in range(2)]
    def reads(gi):
        i, d = groups[gi]
        o = []
        if d == 0: o.append(f"@waitv p{i}")
        for rho in range(2):
            s = (gi & 1)*2 + rho
            o += trread(VA(s, 0), rho, d, 2*i) + trread(VA(s, 1), rho, d, 2*i+1)
        return o
    def mm(gi):
        i, d = groups[gi]
        kap = i + 8*d
        o = []
        for rho in range(2):
            s = (gi & 1)*2 + rho
            for tb in range(2):
                o.append(f"{MF16} {vr(ACC(s,tb),4)}, {ar(VA(s,tb),4)}, {vr(T(rho,d),4)}, {vr(NEGM(rho),4)}")
        for rho in range(2):
            s = (gi & 1)*2 + rho
            for tb in range(2):
                o.append(f"{MF16} {vr(ACC(s,tb),4)}, {vr(SEL(d,tb),4)}, {ar(XF(rho,kap),4)}, {vr(ACC(s,tb),4)}")
        return o
    def post(gi):
        i, d = groups[gi]
        kap = i + 8*d
        o = []
        for rho in range(2):
            s = (gi & 1)*2 + rho
            h = H(rho, kap)
            for tb in range(2):
                o.append(f"v_cvt_pk_bf16_f32 v{h+2*tb}, v{ACC(s,tb)}, v{ACC(s,tb)+1}")
                o.append(f"v_cvt_pk_bf16_f32 v{h+2*tb+1}, v{ACC(s,tb)+2}, v{ACC(s,tb)+3}")
        h0 = H(0, kap); h = H(1, kap)
        if GRAM:
            for rho in range(2):
                hh_ = vr(H(rho, kap), 4); gacc = vr(112+4*rho, 4)
                o.append(f"{MF16} {gacc}, {hh_}, {hh_}, {'0' if gi == 0 else gacc} ")
        for k in range(4): o.append(f"v_permlane16_swap_b32 v{h0+k}, v{h+k}")
        if DOTS_IN_C and not GRAM:
            for k in range(4):
                o.append(f"v_dot2c_f32_bf16 v{20+(k&1)}, v{h0+k}, v{h0+k}")
                o.append(f"v_dot2c_f32_bf16 v{22+(k&1)}, v{h+k}, v{h+k}")
        o.append(f"""s_cmp_eq_u32 s60, {kap}
        s_cbranch_scc0 K2_nh{kap}
        @cond_begin
        global_store_dwordx4 v10, {vr(h0,4)}, s[6:7] {SC}
        global_store_dwordx4 v10, {vr(h,4)}, s[6:7] offset:256 {SC}
        @cond_end
        K2_nh{kap}:""")
        return o
    def fix(rho):
        F = ACC(rho, 1) + 3; M = ACC(2+rho, 1) + 3
        return L(f"""
        v_add_f32 v27, v{F}, v{M}
        v_mul_f32 v27, 0.5, v27
        v_sub_f32 v28, v{17+2*rho}, v{16+2*rho}
        v_cndmask_b32 v{F}, v{F}, v27, s[34:35]
        v_cndmask_b32 v{M}, v{M}, v28, s[34:35]
        """)
    a.stamp(3)
    a(reads(0))
    extra = {0: pair_items[3] + pair_items[4][:4], 1: pair_items[4][4:] + pair_items[5], 2: pair_items[6], 3: pair_items[7],
             4: [], 5: wdma_items(0), 6: [], 7: wdma_items(1)}
    for i in range(8):
        seq = []
        for gi in (2*i, 2*i+1):
            if gi + 1 < 16:
                seq += reads(gi+1); seq.append("s_waitcnt lgkmcnt(8)")
            else: seq.append("s_waitcnt lgkmcnt(0)")
            m_ = mm(gi)
            fill = post(gi-1) if 1 <= gi <= 14 else []
            seq += m_[:2] + interleave(m_[2:], fill)
        if i == 0: seq.append(mt_store)
        a(weave(seq, extra[i]))
    a(fix(0)); a(fix(1))
    a(post(14)); a(post(15))
    a.stamp(4)
    for k in range(4): a(f"v_add_u32 v{32+k}, {k*REG}, v5")
    wd_items = []
    if FUSE:
        a(f"""
        s_lshr_b32 s22, s16, 1
        s_lshl_b32 s22, s22, 2
        s_add_u32 s61, s22, s14          ; nu
        s_mul_i32 s22, s61, {56*1024}
        s_add_u32 s22, s22, {WS_WD}
        v_add_u32 v24, s22, v5
        """)
        for k in range(56):
            x = f"global_load_dwordx4 {ar(WD3(k),4)}, v24, s[6:7] offset:{(k&3)*1024}"
            if k == 55: x += " ;@tag=wd"
            if (k & 3) == 3: x += "\nv_add_u32 v24, 0x1000, v24"
            wd_items.append([x])
    dsu = phaseD_setup(WD3)
    dots = []
    for kap in range(16):
        for k in range(4):
            dots.append(f"v_dot2c_f32_bf16 v{20+(k&1)}, v{H(0,kap)+k}, v{H(0,kap)+k}")
            dots.append(f"v_dot2c_f32_bf16 v{22+(k&1)}, v{H(1,kap)+k}, v{H(1,kap)+k}")
    if GRAM:
        stats = L(f"""
        v_and_b32 v27, 3, v3
        v_cmp_eq_u32 s[56:57], 1, v27
        v_cmp_eq_u32 s[58:59], 2, v27
        v_cmp_eq_u32 vcc, 3, v27
        v_cndmask_b32 v20, v112, v113, s[56:57]
        v_cndmask_b32 v22, v116, v117, s[56:57]
        v_cndmask_b32 v20, v20, v114, s[58:59]
        v_cndmask_b32 v22, v22, v118, s[58:59]
        v_cndmask_b32 v20, v20, v115, vcc
        v_cndmask_b32 v22, v22, v119, vcc
        v_lshrrev_b32 v27, 2, v3
        v_lshl_add_u32 v27, v27, 4, v3
        v_lshlrev_b32 v27, 2, v27
        ds_bpermute_b32 v21, v27, v20
        ds_bpermute_b32 v23, v27, v22
        s_mov_b32 s38, {hx(1.0/512)}
        v_mov_b32 v27, {hx(1e-5)}
        s_waitcnt lgkmcnt(0)
        v_cndmask_b32 v20, v21, v23, s[32:33]
        v_fma_f32 v20, v20, s38, v27
        v_rsq_f32 v20, v20
        v_mul_f32 v21, {hx(-math.log2(math.e))}, v20
        """)
        a(stats); stats = []
    else:
        stats = L(f"""
        v_add_f32 v20, v20, v21
        v_add_f32 v22, v22, v23
        v_add_f32 v20, v20, v22
        v_mov_b32 v21, v20
        v_permlane32_swap_b32 v20, v21
        v_add_f32 v20, v20, v21
        s_mov_b32 s38, {hx(1.0/512)}
        v_mov_b32 v27, {hx(1e-5)}
        v_fma_f32 v20, v20, s38, v27
        v_rsq_f32 v20, v20
        v_mul_f32 v21, {hx(-math.log2(math.e))}, v20
        """)
    MACC = lambda st: 72 + st*16
    def wread(p, phi):
        return f"ds_read_b128 {ar(WF(phi & 7),4)}, v{32 + (phi>>3)} offset:{QB[p]*8192 + (phi&7)*1024}"
    def epilogue(p):
        st = p & 1
        if p < 6: off = f"s_lshl_b32 s44, s16, 10\ns_add_u32 s44, s44, {WS_HH + (p>>1)*16*1024 + (p&1)*512}"
        else:     off = f"s_lshl_b32 s44, s16, 9\ns_add_u32 s44, s44, {WS_HH + 48*1024}"
        f = [off + "\ns_add_u32 s40, s6, s44\ns_addc_u32 s41, s7, 0"]
        m = MACC(st)
        for r in range(8): f.append(f"v_mul_f32 v{40+r}, v21, v{m+r}")
        for r in range(8):
            f.append(f"v_exp_f32 v{40+r}, v{40+r}")
            f.append(f"v_mul_f32 v{48+r}, v20, v{m+8+r}")
        for r in range(8): f.append(f"v_add_f32 v{40+r}, 1.0, v{40+r}")
        for r in range(8): f.append(f"v_rcp_f32 v{40+r}, v{40+r}")
        for r in range(8): f.append(f"v_mul_f32 v{40+r}, v{40+r}, v{48+r}")
        for r in range(4): f.append(f"v_cvt_pk_bf16_f32 v{56+r}, v{40+2*r}, v{41+2*r}")
        f.append(f"global_store_dwordx4 v11, v[56:59], s[40:41] {SC} ;@tag=hh{p}")
        return f
    PF = 6
    bar = {0: "w0", 1: "w1", 2: "w2,w3", 4: "w4,w5", 6: "w6"}
    for p in range(7):
        if p in bar:
            a(f"@waitv {bar[p]}")
            a("s_barrier")
            if p < 2: a.stamp(5+p)
            main = [wread(p, x) for x in range(PF)]
        else:
            main = []
        st = p & 1
        nxt_ok = (p+1 < 7) and (p+1 not in bar)
        for phi in range(32):
            kap, aa = phi >> 1, phi & 1
            if phi + PF < 32:
                main.append(wread(p, phi+PF)); main.append(f"s_waitcnt lgkmcnt({PF})")
            elif nxt_ok:
                main.append(wread(p+1, phi+PF-32)); main.append(f"s_waitcnt lgkmcnt({PF})")
            else:
                main.append(f"s_waitcnt lgkmcnt({31-phi})")
            c = "0" if phi == 0 else vr(MACC(st),16)
            main.append(f"{MF32} {vr(MACC(st),16)}, {ar(WF(phi&7),4)}, {vr(H(aa,kap),4)}, {c}")
        dm = []
        if p == 0: dm = wdma_items(2) + wdma_items(3)
        if p == 1: dm = wdma_items(4)
        if p == 2: dm = wdma_items(5)
        if p == 4: dm = wdma_items(6)
        dm = [[ "\n".join(x) ] for x in dm]
        if FUSE:
            mine = wd_items[p*WD_IN_MAIN:(p+1)*WD_IN_MAIN]
            dm = [[y] for y in weave([x[0] for x in dm], mine)] if dm else mine
        if DOTS_IN_C: dots = []
        if p == 0: body = dots[:96] + (stats if DOTS_IN_C else [])
        elif p == 1: body = dots[96:] + ([] if DOTS_IN_C else stats) + epilogue(0)
        else: body = epilogue(p-1)
        fl = weave(body, dm)
        if FUSE:
            def ins(lst, frac, items):
                k = int(len(lst)*frac)
                return lst[:k] + items + lst[k:]
            if p == 0: fl = weave(dsu, [[x] for x in fl]) if EARLY_SU else [dsu[0]] + fl
            if p == 3: fl = ins(fl, 0.5, ["@waitv hh1", arrive("A", 0)])
            if p == 5:
                fl = ins(fl, 0.5, ["@waitv hh3", arrive("B", 256)])
                fl = ins(fl, 0.3, [poll_issue("A", 0)])
            if p == 6:
                fl = poll_check("A", 0) + weave(fl, [[x] for x in d_items(0) + d_items(1)]) + [poll_issue("B", 256)]
        a(interleave(main, fl))
    a.stamp(7)
    if not FUSE:
        a(epilogue(6))
    else:
        phaseD(a, epilogue(6), wd_items[7*WD_IN_MAIN:], WD3, [] if EARLY_SU else dsu[1:])
    if STAMPS: a("s_waitcnt vmcnt(0)")
    a.stamp(13); a.stamp(15)
    a.dump_stamps(WS_ST + (1 << 20))
    a("K2_done:")
    a("s_endpgm")
    return a.finalize()

K3_STG = 28672
K3_LDS = 5*K3_STG
def gen_k3():
    a = Asm(); a.stamps = STAMPS
    WD = lambda k3: k3*4
    HB = lambda s: 64 + s*4
    ACC = lambda k: 32 + k*4
    HC = lambda k, x: 96 + (k*2 + x)*4
    SEL = lambda x: 48 + x*4
    a(f"""
    s_cmp_ge_u32 s2, 256
    s_cbranch_scc1 K3_done
    s_load_dwordx2 s[4:5], s[0:1], 72
    s_load_dwordx2 s[6:7], s[0:1], 88
    v_lshrrev_b32 v1, 6, v0
    v_and_b32 v2, 63, v0
    v_readfirstlane_b32 s14, v1
    v_and_b32 v3, 15, v2
    v_lshrrev_b32 v4, 4, v2
    v_lshlrev_b32 v5, 4, v2
    s_and_b32 s15, s2, 7
    s_lshl_b32 s15, s15, 2
    s_bfe_u32 s16, s2, 0x20003
    s_add_u32 s15, s15, s16
    s_lshr_b32 s16, s2, 5
    s_lshl_b32 s17, s16, 2
    s_add_u32 s17, s17, s14          ; nu
    s_lshl_b32 s18, s15, 2           ; tt0
    s_add_u32 s19, s18, s14
    s_mul_i32 s20, s17, {56*1024}
    s_add_u32 s20, s20, {WS_WD}
    v_add_u32 v6, s20, v5
    s_mul_i32 s20, s19, 57344
    s_add_u32 s20, s20, {WS_HH}
    v_add_u32 v7, s20, v5
    s_mul_i32 s21, s14, 7168
    s_add_u32 s46, s15, s16
    s_and_b32 s46, s46, {7 if ROT3 else 0}            ; rot
    s_mul_i32 s20, s46, 7168
    v_add_u32 v6, s20, v6
    v_add_u32 v7, s20, v7
    s_waitcnt lgkmcnt(0)
    s_add_u32 s24, s6, 4096
    s_addc_u32 s25, s7, 0
    """)
    a.stamp(0); a.stamp(14)
    def items(sg):
        buf = (sg % 5)*K3_STG
        l = []
        for k in range(7):
            x = [f"s_add_u32 m0, s21, {buf + (k & 4)*1024}",
                 f"global_load_lds_dwordx4 v7, {'s[6:7]' if k < 4 else 's[24:25]'} offset:{(k&3)*1024}"]
            if k == 6:
                x.append(f"s_cmp_eq_u32 s46, {7-sg}\ns_cselect_b32 s47, -7, 1\ns_mul_i32 s47, s47, 7168\nv_add_u32 v7, s47, v7")
            l.append(x)
            tag = f" ;@tag=s{sg}" if k == 6 else ""
            x = [f"global_load_dwordx4 {ar(WD(sg*7+k),4)}, v6, {'s[6:7]' if k < 4 else 's[24:25]'} offset:{(k&3)*1024}{tag}"]
            if k == 6: x.append("v_add_u32 v6, s47, v6")
            l.append(x)
        return l
    for it in items(0): a(it)
    su = L(f"""
    v_lshlrev_b32 v8, 7, v3
    v_add_u32 v8, s18, v8
    v_lshlrev_b32 v9, 10, v8
    s_lshl_b32 s20, s17, 5
    v_add_u32 v9, s20, v9
    v_lshl_add_u32 v9, v4, 3, v9
    s_lshl_b32 s20, s18, 6
    s_add_u32 s20, s20, {WS_MT}
    v_lshl_add_u32 v11, v3, 2, s20
    """)
    su.append(f"""s_lshr_b32 s30, s17, 1
    s_lshl_b32 s31, s17, 4
    s_sub_u32 s32, 496, s31
    s_lshr_b32 s32, s32, 5
    s_add_u32 s32, s32, 8
    s_cmp_lt_u32 s17, 16
    s_cselect_b32 s30, s30, s32
    s_sub_u32 s33, s30, 1
    s_cmp_eq_u32 s17, 0
    s_cselect_b32 s33, 15, s33
    s_cmp_eq_u32 s17, 16
    s_cselect_b32 s33, 7, s33
    s_max_i32 s33, s33, 0
    s_and_b32 s34, s17, 1
    s_cmp_gt_u32 s17, 16
    s_cselect_b32 s34, 1, s34
    s_lshl_b32 s35, s18, 14
    s_add_u32 s35, s35, {WS_HC}
    s_lshl_b32 s36, s30, 10
    s_add_u32 s36, s36, s35
    v_add_u32 v14, s36, v5
    s_lshl_b32 s36, s33, 10
    s_add_u32 s36, s36, s35
    v_add_u32 v15, s36, v5""")
    su += L(f"""
    v_add_u32 v16, s31, v3
    v_mov_b32 v23, 0x3f80
    v_add_u32 v12, {2*K3_STG}, v5
    v_add_u32 v13, {4*K3_STG}, v5
    """)
    for x, sk in ((0, 30), (1, 33)):
        su.append(f"""s_and_b32 s36, s{sk}, 7
        s_lshl_b32 s36, s36, 5
        s_sub_u32 s37, -1, s36
        s_sub_u32 s38, 511, s36
        s_cmp_lt_u32 s{sk}, 8
        s_cselect_b32 s37, s37, s38
        s_cselect_b32 s38, 1, -1
        s_cmp_eq_u32 s{sk}, 15
        s_cselect_b32 s39, 0, -1
        s_cselect_b32 s40, 256, -1""")
        su += L(f"""
        v_mul_lo_u32 v17, v16, s38
        v_add_u32 v17, s37, v17
        v_cmp_eq_u32 vcc, s40, v16
        v_cndmask_b32 v17, v17, -1, vcc
        v_cmp_eq_u32 vcc, s39, v16
        v_cndmask_b32 v17, v17, 31, vcc
        """)
        if x == 1:
            su.append("""s_cmp_eq_u32 s34, 1
            s_cselect_b32 s36, -1, 0
            v_or_b32 v17, s36, v17""")
        su += L(f"""
        v_bfe_u32 v18, v17, 2, 2
        v_cmp_eq_u32 vcc, v18, v4
        v_cndmask_b32 v17, -1, v17, vcc
        v_lshrrev_b32 v18, 4, v17
        v_lshlrev_b32 v18, 1, v18
        v_bfe_u32 v19, v17, 1, 1
        v_add_u32 v18, v18, v19
        v_and_b32 v19, 1, v17
        v_lshlrev_b32 v19, 4, v19
        v_lshlrev_b32 v19, v19, v23
        """)
        for jj in range(4):
            su.append(f"v_cmp_eq_u32 vcc, {jj}, v18")
            su.append(f"v_cndmask_b32 v{SEL(x)+jj}, 0, v19, vcc")
    a(weave(su, items(1) + items(2)))
    hcl = []
    for k in range(4):
        hcl.append([f"global_load_dwordx4 {vr(HC(k,0),4)}, v14, s[6:7]", "v_add_u32 v14, 0x4000, v14"])
        hcl.append([f"global_load_dwordx4 {vr(HC(k,1),4)}, v15, s[6:7]", "v_add_u32 v15, 0x4000, v15"])
        hcl.append([f"global_load_dword v{24+k}, v11, s[6:7] offset:{64*k}"])
    a.stamp(1)
    def rd(slot, sg, k, tile):
        b = sg % 5
        base = (5, 5, 12, 12, 13)[b]
        off = (b & 1)*K3_STG if b < 4 else 0
        return f"ds_read_b128 {vr(HB(slot),4)}, v{base} offset:{off + tile*7168 + k*1024}"
    for sg in range(8):
        a(f"@waitv s{sg}")
        a("s_barrier")
        a.stamp(2+sg)
        seq = [(k, t) for k in range(7) for t in range(4)]
        main = [rd(x & 7, sg, *seq[x]) for x in range(6)]
        for x, (k, t) in enumerate(seq):
            if x + 6 < 28:
                main.append(rd((x+6) & 7, sg, *seq[x+6])); main.append("s_waitcnt lgkmcnt(6)")
            else:
                main.append(f"s_waitcnt lgkmcnt({27-x})")
            c = "0" if (sg == 0 and k == 0) else vr(ACC(t),4)
            main.append(f"{MF16} {vr(ACC(t),4)}, {ar(WD(sg*7+k),4)}, {vr(HB(x&7),4)}, {c}")
        fill = []
        if sg + 3 < 8: fill += items(sg+3)
        if sg == 4: fill += hcl
        a(interleave(main, fill))
        if sg == 7:
            a("s_waitcnt vmcnt(0)")
            for x in range(2):
                for t in range(4):
                    a(f"{MF16} {vr(ACC(t),4)}, {vr(SEL(x),4)}, {vr(HC(t,x),4)}, {vr(ACC(t),4)}")
    a.stamp(10)
    for k in range(4):
        for r in range(4):
            a(f"v_add_f32 v{ACC(k)+r}, v{24+k}, v{ACC(k)+r}")
        a(f"v_cvt_pk_bf16_f32 v{56+2*k}, v{ACC(k)}, v{ACC(k)+1}")
        a(f"v_cvt_pk_bf16_f32 v{57+2*k}, v{ACC(k)+2}, v{ACC(k)+3}")
        a(f"global_store_dwordx2 v9, v[{56+2*k}:{57+2*k}], s[4:5] offset:{1024*k}")
    if STAMPS: a("s_waitcnt vmcnt(0)")
    a.stamp(11); a.stamp(15)
    a.dump_stamps(WS_ST + (2 << 20))
    a("K3_done:")
    a("s_endpgm")
    return a.finalize()

def build_all():
    out = []
    hdr = open("sequential_preLN__spectral_fnet__glu_gated_glu__prompt.s.ref").read().split("\n")
    out += [l for l in hdr if l.startswith(";") and "@launch" not in l]
    out.append(f"; @launch kernel=k1_kernel grid=(256,1,1) block=(512,1,1) lds={K1_LDS}")
    out.append(f"; @launch kernel=k2_kernel grid=(256,1,1) block=(256,1,1) lds={K2_LDS}")
    if not FUSE: out.append(f"; @launch kernel=k3_kernel grid=(256,1,1) block=(256,1,1) lds={K3_LDS}")
    out.append('.amdgcn_target "amdgcn-amd-amdhsa--gfx950"')
    out.append(".text")
    out.append(header("k1_kernel") + gen_k1())
    out.append(header("k2_kernel") + gen_k2())
    if not FUSE: out.append(header("k3_kernel") + gen_k3())
    out.append('.section .rodata,"a"')
    for k in (kd("k1_kernel", 256, 256), kd("k2_kernel", 512, 256)) + (() if FUSE else (kd("k3_kernel", 128+224, 128),)):
        out.append(".p2align 6\n" + k)
    return "\n".join(out) + "\n"

if __name__ == "__main__":
    for x in sys.argv[2:]:
        if x == "stamps": STAMPS = True
        elif "=" in x:
            k_, v_ = x.split("="); globals()[k_] = int(v_)
    open(sys.argv[1] if len(sys.argv) > 1 else "v5.s", "w").write(build_all())
```

```python
import sys, math, struct
from asmlib import Asm, vr, ar, sr, weave, L

WS_V   = 0
WS_MX  = 2 << 20
WS_X0  = (2 << 20) + 8192
WS_MT  = (2 << 20) + (64 << 10)
WS_FL  = (2 << 20) + (128 << 10)
WS_XP  = 3 << 20
WS_HC  = 5 << 20
WS_WUP = 8 << 20
WS_WD  = 12 << 20
WS_HH  = 16 << 20
WS_ST  = 32 << 20
STAMPS = False
ROT2 = False
ROTP = False
ROT3 = False
DOTS_IN_C = True
FUSE = True
WD_IN_MAIN = 8
K1SC = 0
DBG = 0
GRAM = 1
EARLY_SU = 1
HSLEEP = 0

def f2u(f): return struct.unpack('<I', struct.pack('<f', f))[0]
def hx(f): return "0x%08x" % f2u(f)
def kd(name, vgpr, accum, sgpr=102):
    return f"""
.amdhsa_kernel {name}
  .amdhsa_next_free_vgpr {vgpr}
  .amdhsa_next_free_sgpr {sgpr}
  .amdhsa_accum_offset {accum}
  .amdhsa_group_segment_fixed_size 0
  .amdhsa_kernarg_size 96
  .amdhsa_user_sgpr_count 2
  .amdhsa_user_sgpr_kernarg_segment_ptr 1
  .amdhsa_system_sgpr_workgroup_id_x 1
.end_amdhsa_kernel
"""
def header(name):
    return f".globl {name}\n.p2align 8\n.type {name},@function\n{name}:\n"

def interleave(main, fill, key='v_mfma'):
    out = []
    nm = sum(1 for m in main if m.startswith(key))
    fi = 0; seen = 0
    for m in main:
        out.append(m)
        if m.startswith(key):
            seen += 1
            tgt = (len(fill) * seen + nm - 1) // nm
            while fi < tgt:
                out.append(fill[fi]); fi += 1
    out += fill[fi:]
    return out

MF16 = "v_mfma_f32_16x16x32_bf16"
MF32 = "v_mfma_f32_32x32x16_bf16"

K1_LDS_F = 131072
K1_LDS_HELP = 147456
K1_LDS = 163840

def gen_k1():
    a = Asm(); a.stamps = STAMPS
    CS = lambda t, cs, k: 64 + ((t*2 + cs)*4 + k)*4
    G = lambda hi, rho, tile: 128 + ((hi*2 + rho)*2 + tile)*4
    FB = lambda s, tile: 160 + (s*6 + tile)*4
    XB = lambda s, hi, rho: 160 + (s*6 + 2 + hi*2 + rho)*4
    SM = lambda rho: 208 + rho*4
    SQ = lambda rho: 216 + rho*4
    ONES = 224
    a(f"""
    s_cmp_ge_u32 s2, 256
    s_cbranch_scc1 K1_done
    s_load_dwordx2 s[4:5], s[0:1], 0
    s_load_dwordx2 s[6:7], s[0:1], 88
    s_load_dwordx4 s[8:11], s[0:1], 48
    s_load_dwordx2 s[12:13], s[0:1], 64
    v_lshrrev_b32 v1, 6, v0
    v_and_b32 v2, 63, v0
    v_readfirstlane_b32 s14, v1
    v_and_b32 v3, 15, v2
    v_lshrrev_b32 v4, 4, v2
    v_lshlrev_b32 v13, 4, v2         ; lane*16
    s_and_b32 s15, s2, 7
    s_lshl_b32 s15, s15, 1
    s_bfe_u32 s16, s2, 0x10003
    s_or_b32 s15, s15, s16           ; s2 index
    s_lshr_b32 s16, s2, 4            ; eb
    s_cmp_ge_u32 s14, 4
    s_cbranch_scc1 K1_helper
    """)
    if DBG:
        a("""
        s_memrealtime s[96:97]
        s_load_dwordx2 s[98:99], s[0:1], 80
        s_waitcnt lgkmcnt(0)
        s_and_b32 s100, s2, 0x3f
        s_cmp_lg_u32 s100, 0
        s_cbranch_scc1 DBG_k1_0
        @cond_begin
        s_lshr_b32 s100, s2, 6
        s_lshl_b32 s100, s100, 4
        s_add_u32 s100, s100, 0
        v_mov_b32 v250, s100
        v_mov_b32 v251, s96
        s_mov_b64 s[100:101], exec
        s_mov_b64 exec, 1
        global_store_dword v250, v251, s[98:99]
        s_mov_b64 exec, s[100:101]
        @cond_end
        DBG_k1_0:
        """)
    a.stamp(0); a.stamp(14)
    a(f"""
    v_lshrrev_b32 v5, 2, v2
    v_lshlrev_b32 v5, 17, v5
    s_lshl_b32 s17, s14, 15
    s_lshl_b32 s18, s15, 10
    s_add_u32 s18, s18, s17
    v_add_u32 v5, s18, v5
    v_sub_u32 v6, 0, v4
    v_xor_b32 v6, v6, v2
    v_and_b32 v6, 3, v6
    v_lshl_add_u32 v7, v6, 4, v5
    s_and_b32 s46, s16, 7            ; rot
    """)
    for b in range(8):
        a(f"""
        s_add_u32 s47, s46, {b}
        s_and_b32 s47, s47, 7
        s_lshl_b32 s47, s47, 6
        v_add_u32 v{240+b}, s47, v7
        """)
    a("""
    s_waitcnt lgkmcnt(0)
    s_add_u32 s48, s4, 0x4000
    s_addc_u32 s49, s5, 0
    """)
    xi = []
    for k in range(8):
        for hi in range(2):
            for rho in range(2):
                kk = k + 8*hi
                tag = f" ;@tag=x{k}" if (hi == 1 and rho == 1) else ""
                xi.append([f"s_add_u32 m0, s17, {(rho*16+kk)*1024 - 512*hi}",
                           f"global_load_lds_dwordx4 v{240+k}, {'s[48:49]' if rho else 's[4:5]'} offset:{512*hi}{tag}"])
    for it in xi[:8]: a(it)
    a.stamp(1)
    fg = L(f"""
    s_mov_b32 s20, 0x41c80000
    s_lshl_b32 s21, s16, 4
    s_add_u32 s21, s21, 1
    v_add_u32 v9, s21, v3
    v_cvt_f32_u32 v10, v9
    v_mul_f32 v10, {hx(-1.0/512)}, v10
    v_lshlrev_b32 v11, 31, v9
    v_or_b32 v56, 1.0, v11
    s_lshl_b32 s21, s14, 1
    s_add_u32 s21, s21, s46
    s_add_u32 s50, s21, 1
    s_and_b32 s21, s21, 7
    s_and_b32 s50, s50, 7
    s_lshl_b32 s21, s21, 5
    s_lshl_b32 s50, s50, 5
    v_lshlrev_b32 v12, 3, v4
    v_add_u32 v62, s50, v12
    v_add_u32 v12, s21, v12
    v_cvt_f32_u32 v12, v12
    v_cvt_f32_u32 v62, v62
    v_mul_f32 v12, v10, v12
    v_mul_f32 v62, v10, v62
    s_lshl_b32 s21, s14, 12
    s_add_u32 s21, s21, {K1_LDS_F}
    v_add_u32 v14, s21, v13
    """)
    fg.append("""s_cmp_eq_u32 s16, 15
    s_cselect_b32 s22, 0x80008000, 0
    s_cselect_b32 s23, 0x80008000, 0
    s_cselect_b32 s18, 0x8000, 0
    s_cmp_eq_u32 s14, 0
    s_cselect_b32 s18, s18, 0
    s_mov_b32 s19, 0""")
    fg += L("""
    v_mov_b32 v15, 0x3f80
    v_cndmask_b32 v57, v56, 0, s[22:23]
    v_cndmask_b32 v58, 0, 1.0, s[22:23]
    """)
    for kk in range(2):
        if kk == 1: fg.append("v_mov_b32 v12, v62")
        for j in range(8):
            fg.append(f"v_cos_f32 v{16+j}, v12")
            fg.append(f"v_sin_f32 v{24+j}, v12")
            if j < 7: fg.append("v_add_f32 v12, v10, v12")
        o = 32 + kk*8
        for jj in range(4):
            fg.append(f"v_cvt_pk_bf16_f32 v{o+jj}, v{16+2*jj}, v{17+2*jj}")
            fg.append(f"v_cvt_pk_bf16_f32 v{o+4+jj}, v{24+2*jj}, v{25+2*jj}")
        if kk == 1: fg.append(f"v_cndmask_b32 v{o+4}, v{o+4}, v15, s[18:19]")
        fg.append(f"ds_write_b128 v14, {vr(o,4)} offset:{kk*2048}")
        fg.append(f"ds_write_b128 v14, {vr(o+4,4)} offset:{kk*2048+1024}")
    ad = L(f"""
    v_lshrrev_b32 v5, 2, v3
    v_sub_u32 v5, 0, v5
    v_and_b32 v5, 3, v5
    v_xor_b32 v6, v5, v4
    v_lshlrev_b32 v6, 4, v6
    v_lshl_add_u32 v6, v3, 6, v6
    v_add_u32 v6, s17, v6
    v_add_u32 v61, {K1_LDS_F}, v13
    """)
    for r in range(4): ad.append(f"v_mov_b32 v{ONES+r}, 0x3f803f80")
    a(weave(fg + ad, xi[8:16]))
    a("s_waitcnt lgkmcnt(0)")
    a.stamp(2)
    a("s_barrier")
    cs = L(f"""
    s_lshl_b32 s21, s14, 4
    v_add_u32 v9, s21, v3
    v_cvt_f32_u32 v10, v9
    v_mul_f32 v10, {hx(1.0/128)}, v10
    v_mul_f32 v11, {hx(8.0)}, v10
    v_lshlrev_b32 v12, 5, v4
    v_cvt_f32_u32 v12, v12
    v_mul_f32 v12, v10, v12
    v_mov_b32 v15, 0x80008000
    """)
    for k in range(4):
        for hh in range(2):
            cs.append("v_mov_b32 v14, v12")
            for r in range(4):
                j = hh*4 + r
                cs.append(f"v_cos_f32 v{16+j}, v14")
                cs.append(f"v_sin_f32 v{24+j}, v14")
                if r < 3: cs.append("v_add_f32 v14, v11, v14")
            cs.append("v_add_f32 v12, v10, v12")
        for jj in range(4):
            cs.append(f"v_cvt_pk_bf16_f32 v{CS(0,0,k)+jj}, v{16+2*jj}, v{17+2*jj}")
            cs.append(f"v_cvt_pk_bf16_f32 v{CS(0,1,k)+jj}, v{24+2*jj}, v{25+2*jj}")
        for c_ in range(2):
            for jj in range(2):
                cs.append(f"v_mov_b32 v{CS(1,c_,k)+jj}, v{CS(0,c_,k)+jj}")
                cs.append(f"v_xor_b32 v{CS(1,c_,k)+2+jj}, v15, v{CS(0,c_,k)+2+jj}")
    cs.append("v_mul_u32_u24 v16, 80, v4")
    cs.append(f"""s_sub_u32 s21, 23, s16
    s_cmp_lt_u32 s16, 8
    s_cselect_b32 s21, s16, s21
    s_cselect_b32 s24, 16, 0
    s_add_u32 s50, s21, 1
    s_and_b32 s50, s50, 15
    s_sub_u32 s51, s21, s46
    s_and_b32 s51, s51, 7
    s_and_b32 s21, s21, 8
    s_add_u32 s21, s21, s51
    s_lshl_b32 s21, s21, 10
    s_sub_u32 s51, s50, s46
    s_and_b32 s51, s51, 7
    s_and_b32 s50, s50, 8
    s_add_u32 s50, s50, s51
    s_lshl_b32 s50, s50, 10
    s_mov_b32 s52, 0
    s_mov_b32 s53, 0xffff0000""")
    cs += L(f"""
    v_add_u32 v25, s21, v6
    v_add_u32 v26, 1, v4
    v_and_b32 v26, 3, v26
    v_xor_b32 v26, v26, v5
    v_lshlrev_b32 v26, 4, v26
    v_lshl_add_u32 v26, v3, 6, v26
    v_mov_b32 v27, s21
    v_mov_b32 v28, s50
    v_cndmask_b32 v27, v27, v28, s[52:53]
    v_add3_u32 v26, v26, v27, s17
    """)
    cs += L(f"""
    s_lshl_b32 s21, s14, 5
    s_add_u32 s21, s21, s15
    s_lshl_b32 s26, s21, 14
    s_lshl_b32 s27, s46, 11
    s_add_u32 s26, s26, s27
    s_lshr_b32 s27, s16, 3
    s_lshl_b32 s27, s27, 10
    s_add_u32 s26, s26, s27
    s_add_u32 s26, s26, {WS_XP}
    v_add_u32 v28, s26, v13
    v_add_u32 v29, 0x40000, v28
    v_mov_b32 v30, s24
    v_lshlrev_b32 v31, 14, v9
    s_lshl_b32 s26, s16, 10
    s_lshl_b32 s27, s15, 6
    s_add_u32 s26, s26, s27
    v_add_u32 v31, s26, v31
    v_lshl_add_u32 v31, v4, 4, v31
    v_add_u32 v17, 0x100000, v31
    v_add_u32 v18, s17, v13
    v_add_u32 v19, 0x10000, v13
    s_mov_b32 s25, {hx(1.0/512)}
    v_mov_b32 v27, {hx(1e-5)}
    """)
    def reads(k):
        s = k & 1
        o = [f"@waitv x{k}",
             f"ds_read_b128 {vr(FB(s,0),4)}, v61 offset:{(k*2)*1024}",
             f"ds_read_b128 {vr(FB(s,1),4)}, v61 offset:{(k*2+1)*1024}"]
        for hi in range(2):
            for rho in range(2):
                o.append(f"ds_read_b128 {vr(XB(s,hi,rho),4)}, v6 offset:{(rho*16 + k + 8*hi)*1024}")
        return o
    for it in xi[16:20]: a(it)
    a(reads(0))
    ncs = len(cs); per = (ncs + 6) // 7
    for k in range(8):
        seq = []
        if k < 7:
            seq += reads(k+1); seq.append("s_waitcnt lgkmcnt(6)")
        else:
            seq += L(f"""
            ds_read_b128 v[32:35], v25
            ds_read_b32 v36, v26
            ds_read_b128 v[40:43], v25 offset:16384
            ds_read_b32 v44, v26 offset:16384
            s_waitcnt lgkmcnt(4)
            """)
        s = k & 1
        if k == 0:
            seq.append(f"v_lshlrev_b32 v59, 16, v{XB(0,0,0)}")
            seq.append(f"v_lshlrev_b32 v60, 16, v{XB(0,0,1)}")
        for hi in range(2):
            for rho in range(2):
                first = (k == 0 and hi == 0)
                x = vr(XB(s,hi,rho),4)
                seq.append(f"{MF16} {vr(SQ(rho),4)}, {x}, {x}, {'0' if first else vr(SQ(rho),4)}")
                seq.append(f"{MF16} {vr(SM(rho),4)}, {x}, {vr(ONES,4)}, {'0' if first else vr(SM(rho),4)}")
        for hi in range(2):
            for rho in range(2):
                for tile in range(2):
                    c = "0" if k == 0 else vr(G(hi,rho,tile),4)
                    seq.append(f"{MF16} {vr(G(hi,rho,tile),4)}, {vr(XB(s,hi,rho),4)}, {vr(FB(s,tile),4)}, {c}")
        fill = cs[k*per:(k+1)*per] if k < 7 else []
        if k < 3:
            fill = weave(fill, xi[20+4*k:24+4*k])
        a(interleave(seq, fill))
    a.stamp(3)
    for rho in range(2):
        for r in range(4):
            a(f"ds_bpermute_b32 v{160+rho*4+r}, v16, v{SQ(rho)+r} offset:{4*r}")
    a("s_waitcnt lgkmcnt(8)")
    for rho in range(2):
        b = 32 + rho*8
        for k in range(4):
            a(f"v_alignbit_b32 v{48+rho*4+k}, v{b+k+1}, v{b+k}, v30")
        a(f"global_store_dwordx4 v{28+rho}, {vr(48+rho*4,4)}, s[6:7]")
    for rho in range(2):
        for r in range(4):
            a(f"v_mul_f32 v{SM(rho)+r}, s25, v{SM(rho)+r}")
    for rho in range(2):
        for tile in range(2):
            for r in range(4):
                a(f"v_fma_f32 v{G(0,rho,tile)+r}, v{G(1,rho,tile)+r}, v{56+tile}, v{G(0,rho,tile)+r}")
    for rho in range(2):
        for r in range(4):
            a(f"v_fma_f32 v{G(0,rho,1)+r}, -v{SM(rho)+r}, v58, v{G(0,rho,1)+r}")
    a("s_waitcnt lgkmcnt(0)")
    for rho in range(2):
        for r in range(4):
            q_ = 160+rho*4+r
            a(f"v_fma_f32 v{q_}, v{q_}, s25, v27")
            a(f"v_fma_f32 v{q_}, -v{SM(rho)+r}, v{SM(rho)+r}, v{q_}")
            a(f"v_rsq_f32 v{q_}, v{q_}")
    for rho in range(2):
        for tile in range(2):
            for r in range(4):
                a(f"v_mul_f32 v{G(0,rho,tile)+r}, v{G(0,rho,tile)+r}, v{160+rho*4+r}")
    for tile in range(2):
        for rho in range(2):
            a(f"v_cvt_pk_bf16_f32 v{184+tile*4+rho*2}, v{G(0,rho,tile)}, v{G(0,rho,tile)+1}")
            a(f"v_cvt_pk_bf16_f32 v{184+tile*4+rho*2+1}, v{G(0,rho,tile)+2}, v{G(0,rho,tile)+3}")
    a(f"""
    ds_write_b128 v18, v[184:187]
    ds_write_b128 v18, v[188:191] offset:1024
    s_cmp_lg_u32 s16, 0
    s_cbranch_scc1 K1_nomx
    @cond_begin
    s_lshl_b32 s26, s21, 6
    s_add_u32 s26, s26, {WS_MX}
    v_lshl_add_u32 v20, v4, 4, s26
    v_lshl_add_u32 v21, v3, 2, s26
    s_mov_b64 s[28:29], exec
    s_mov_b32 exec_lo, 0x00010001
    s_mov_b32 exec_hi, 0x00010001
    global_store_dwordx4 v20, {vr(SM(0),4)}, s[6:7]
    global_store_dwordx4 v20, {vr(SM(1),4)}, s[6:7] offset:1024
    s_mov_b64 exec, 0xffff
    v_add_u32 v21, {WS_X0 - WS_MX}, v21
    global_store_dword v21, v59, s[6:7]
    global_store_dword v21, v60, s[6:7] offset:1024
    s_mov_b64 exec, s[28:29]
    @cond_end
    K1_nomx:
    s_waitcnt lgkmcnt(0)
    """)
    a.stamp(4)
    a("s_barrier")
    a.stamp(5)
    AR = lambda k: 192 + k*4
    AI = lambda k: 160 + k*4
    NR = lambda k: 232 + k*4
    for k in range(4):
        b = 13 if k < 2 else 19
        a(f"ds_read_b128 {vr(AR(k),4)}, v{b} offset:{(k&1)*32768}")
        a(f"ds_read_b128 {vr(AI(k),4)}, v{b} offset:{(k&1)*32768 + 1024}")
    VA = lambda t, c: 128 + (t*2 + c)*4
    for k in range(4):
        a(f"s_waitcnt lgkmcnt({6-2*k})")
        for jj in range(4):
            a(f"v_xor_b32 v{NR(k)+jj}, v15, v{AR(k)+jj}")
        for t in range(2):
            c0 = "0" if k == 0 else vr(VA(t,0),4)
            c1 = "0" if k == 0 else vr(VA(t,1),4)
            a(f"{MF16} {vr(VA(t,0),4)}, {vr(AR(k),4)}, {vr(CS(t,0,k),4)}, {c0}")
            a(f"{MF16} {vr(VA(t,1),4)}, {vr(AI(k),4)}, {vr(CS(t,0,k),4)}, {c1}")
        for t in range(2):
            a(f"{MF16} {vr(VA(t,0),4)}, {vr(AI(k),4)}, {vr(CS(t,1,k),4)}, {vr(VA(t,0),4)}")
            a(f"{MF16} {vr(VA(t,1),4)}, {vr(NR(k),4)}, {vr(CS(t,1,k),4)}, {vr(VA(t,1),4)}")
    for t in range(2):
        o = 32 + t*4
        a(f"v_cvt_pk_bf16_f32 v{o}, v{VA(t,0)}, v{VA(t,0)+1}")
        a(f"v_cvt_pk_bf16_f32 v{o+1}, v{VA(t,0)+2}, v{VA(t,0)+3}")
        a(f"v_cvt_pk_bf16_f32 v{o+2}, v{VA(t,1)}, v{VA(t,1)+1}")
        a(f"v_cvt_pk_bf16_f32 v{o+3}, v{VA(t,1)+2}, v{VA(t,1)+3}")
        a(f"global_store_dwordx4 v{31 if t == 0 else 17}, {vr(o,4)}, s[6:7]")
    a.stamp(6)
    if STAMPS: a("s_waitcnt vmcnt(0)")
    if DBG: a("s_waitcnt vmcnt(0)")
    if DBG:
        a("""
        s_memrealtime s[96:97]
        s_load_dwordx2 s[98:99], s[0:1], 80
        s_waitcnt lgkmcnt(0)
        s_and_b32 s100, s2, 0x3f
        s_cmp_lg_u32 s100, 0
        s_cbranch_scc1 DBG_k1_1
        @cond_begin
        s_lshr_b32 s100, s2, 6
        s_lshl_b32 s100, s100, 4
        s_add_u32 s100, s100, 4
        v_mov_b32 v250, s100
        v_mov_b32 v251, s96
        s_mov_b64 s[100:101], exec
        s_mov_b64 exec, 1
        global_store_dword v250, v251, s[98:99]
        s_mov_b64 exec, s[100:101]
        @cond_end
        DBG_k1_1:
        """)
    a.stamp(7); a.stamp(15)
    a.dump_stamps(WS_ST)
    a("s_endpgm")
    a("K1_helper:")
    a("s_mov_b32 s45, s14")
    a.stamp(0); a.stamp(14)
    a("s_barrier")
    for _ in range(HSLEEP): a("s_sleep 16")
    a(f"""
    s_sub_u32 s14, s14, 4
    s_lshl_b32 s17, s2, 2
    s_add_u32 s17, s17, s14
    s_lshl_b32 s24, s14, 12
    s_add_u32 s24, s24, {K1_LDS_HELP}
    v_add_u32 v14, s24, v13
    v_lshrrev_b32 v5, 2, v3
    v_and_b32 v6, 3, v3
    v_lshlrev_b32 v6, 3, v6
    v_lshrrev_b32 v7, 1, v4
    v_lshl_add_u32 v7, v7, 3, v5
    v_lshl_add_u32 v7, v7, 6, v6
    v_and_b32 v8, 1, v4
    v_lshl_add_u32 v7, v8, 11, v7
    v_add_u32 v7, s24, v7
    v_lshrrev_b32 v9, 1, v4
    v_lshlrev_b32 v9, 4, v9
    v_lshl_add_u32 v9, v8, 2, v9
    v_add_u32 v9, v9, v5
    v_lshl_add_u32 v9, v9, 7, v6
    v_add_u32 v9, s24, v9
    v_lshrrev_b32 v10, 3, v2
    v_and_b32 v11, 7, v2
    v_lshlrev_b32 v11, 4, v11
    v_lshl_add_u32 v10, v10, 10, v11
    s_waitcnt lgkmcnt(0)
    s_cmp_ge_u32 s17, 16
    s_cbranch_scc1 K1_nofl
    @cond_begin
    s_lshl_b32 s26, s17, 10
    s_add_u32 s26, s26, {WS_FL}
    v_add_u32 v12, s26, v13
    v_mov_b32 v16, 0
    v_mov_b32 v17, 0
    v_mov_b32 v18, 0
    v_mov_b32 v19, 0
    global_store_dwordx4 v12, v[16:19], s[6:7]
    s_nop 1
    @cond_end
    K1_nofl:
    """)
    def down_load(sreg, rb, sd):
        a(f"""
        s_lshr_b32 s26, {sreg}, 3
        s_and_b32 s27, {sreg}, 7
        s_and_b32 s28, s26, 15
        s_mul_i32 s28, s28, 7
        s_lshr_b32 s29, s26, 4
        s_lshl_b32 s29, s29, 1
        s_add_u32 s28, s28, s29
        s_sub_u32 s29, s26, 48
        s_mul_i32 s29, s29, 14
        s_add_u32 s29, s29, 6            ; case C
        s_cmp_lt_u32 s26, 48
        s_cselect_b32 s28, s28, s29      ; tA
        s_cselect_b32 s29, 1, 7
        s_lshl_b32 s28, s28, 14
        s_lshl_b32 s29, s29, 14
        s_sub_u32 s29, s29, 0x2000
        s_lshl_b32 s35, s27, 7
        s_add_u32 s28, s28, s35
        v_add_u32 v12, s28, v10
        s_mul_i32 s28, s27, 224
        s_add_u32 s28, s28, s26
        s_lshl_b32 s28, s28, 10
        s_add_u32 s{sd}, s28, {WS_WD}
        """)
        for ins in range(4):
            a(f"global_load_dwordx4 {vr(rb+4*ins,4)}, v12, s[12:13]")
            if ins == 1: a("v_add_u32 v12, s29, v12")
            elif ins < 3: a("v_add_u32 v12, 0x2000, v12")
    def down_proc(rb, sd):
        for ins in range(4):
            a(f"ds_write_b128 v14, {vr(rb+4*ins,4)} offset:{ins*1024}")
        a(f"v_add_u32 v12, s{sd}, v13")
        a("s_waitcnt lgkmcnt(0)")
        for ct in range(4):
            a(f"ds_read_b64_tr_b16 v[{48+ct*4}:{49+ct*4}], v9 offset:{ct*32}")
            a(f"ds_read_b64_tr_b16 v[{50+ct*4}:{51+ct*4}], v9 offset:{ct*32 + 1024}")
        for ct in range(4):
            a(f"s_waitcnt lgkmcnt({6-2*ct})")
            a(f"global_store_dwordx4 v12, {vr(48+ct*4,4)}, s[6:7]")
            if ct < 3: a(f"v_add_u32 v12, {56*1024}, v12")
    a("""
    s_cmp_ge_u32 s17, 896
    s_cbranch_scc1 K1_hA_down
    """)
    a.cond_begin()
    a(f"""
    s_and_b32 s26, s17, 15
    s_lshr_b32 s27, s17, 4
    s_and_b32 s28, s26, 7
    s_lshl_b32 s28, s28, 5
    s_add_u32 s29, s28, 1
    s_sub_u32 s28, 511, s28
    s_cmp_lt_u32 s26, 8
    s_cselect_b32 s30, s29, s28
    s_cselect_b32 s31, 1, -1
    s_cselect_b32 s32, -1, 256
    s_lshl_b32 s33, s27, 6
    s_mov_b32 s34, 3584
    s_lshl_b32 s28, s27, 5
    s_add_u32 s28, s28, s26
    s_lshl_b32 s28, s28, 11
    s_add_u32 s40, s28, {WS_WUP}
    v_lshrrev_b32 v11, 2, v2
    v_and_b32 v15, 3, v2
    v_lshlrev_b32 v15, 4, v15
    """)
    for ins in range(2):
        a(f"""
        v_add_u32 v12, {16*ins}, v11
        v_mul_lo_u32 v12, v12, s31
        v_add_u32 v12, s30, v12
        v_cmp_ne_u32 vcc, s32, v12
        v_cndmask_b32 v12, 0, v12, vcc
        v_mul_lo_u32 v12, v12, s34
        v_add3_u32 v12, v12, s33, v15
        global_load_dwordx4 {vr(16+4*ins,4)}, v12, s[8:9]
        global_load_dwordx4 {vr(24+4*ins,4)}, v12, s[10:11]
        """)
    a("s_branch K1_hA_go")
    a.cond_end()
    a("K1_hA_down:")
    a.cond_begin()
    a("s_sub_u32 s25, s17, 896")
    down_load("s25", 16, 40)
    a.cond_end()
    a("K1_hA_go:")
    a("""
    s_cmp_ge_u32 s17, 320
    s_cbranch_scc1 K1_hB_skip
    """)
    a.cond_begin()
    a("s_add_u32 s25, s17, 128")
    down_load("s25", 32, 41)
    a.cond_end()
    a("K1_hB_skip:")
    a.stamp(1)
    a("s_waitcnt vmcnt(0)")
    a.stamp(2)
    a("""
    s_cmp_ge_u32 s17, 896
    s_cbranch_scc1 K1_hA_down2
    """)
    a.cond_begin()
    for ins in range(4):
        a(f"ds_write_b128 v14, {vr(16+4*ins,4)} offset:{ins*1024}")
    a("v_add_u32 v12, s40, v13")
    a("s_waitcnt lgkmcnt(0)")
    idx = 0
    for Pp in range(2):
        for aa in range(2):
            a(f"ds_read_b64_tr_b16 v[{48+idx*4}:{49+idx*4}], v7 offset:{aa*256 + Pp*32}")
            a(f"ds_read_b64_tr_b16 v[{50+idx*4}:{51+idx*4}], v7 offset:{aa*256 + Pp*32 + 1024}")
            idx += 1
    idx = 0
    for Pp in range(2):
        for aa in range(2):
            a(f"s_waitcnt lgkmcnt({6-2*idx})")
            a(f"global_store_dwordx4 v12, {vr(48+idx*4,4)}, s[6:7] offset:{aa*1024}")
            idx += 1
        if Pp == 0: a("v_add_u32 v12, 0x8000, v12")
    a("s_branch K1_hA_go2")
    a.cond_end()
    a("K1_hA_down2:")
    a.cond_begin()
    down_proc(16, 40)
    a.cond_end()
    a("K1_hA_go2:")
    a("""
    s_cmp_ge_u32 s17, 320
    s_cbranch_scc1 K1_hend
    s_nop 1
    """)
    a.cond_begin()
    down_proc(32, 41)
    a.cond_end()
    a("K1_hend:")
    a.stamp(3)
    if STAMPS: a("s_waitcnt vmcnt(0)")
    for k in range(4, 8): a.stamp(k)
    a.stamp(15)
    a.dump_stamps(WS_ST, wave="s45")
    a("K1_done:")
    a("s_endpgm")
    txt = a.finalize()
    if K1SC:
        out = []
        inh = False
        for l in txt.split("\n"):
            if l.startswith("K1_helper:"): inh = True
            if inh and l.strip().startswith("global_store") and "sc1" not in l:
                l = l.split(";")[0].rstrip() + (" sc1" if K1SC == 1 else " nt" if K1SC == 2 else " sc0 sc1")
            out.append(l)
        txt = "\n".join(out)
    return txt

K2_LDS = 163840
REG = 40960


def arrive(name, off):
    return f"""s_lshl_b32 s22, s15, 10
    s_lshl_b32 s23, s16, 4
    s_add_u32 s22, s22, s23
    s_lshl_b32 s23, s14, 2
    s_add_u32 s22, s22, s23
    s_add_u32 s22, s22, {WS_FL + off}
    v_mov_b32 v27, s22
    v_mov_b32 v28, 1
    s_mov_b64 s[36:37], exec
    s_mov_b64 exec, 1
    global_store_dword v27, v28, s[6:7] sc1
    s_mov_b64 exec, s[36:37]"""
def poll_issue(name, off):
    return f"""s_lshl_b32 s22, s15, 10
    s_add_u32 s22, s22, {WS_FL + off}
    v_lshl_add_u32 v30, v2, 2, s22
    global_load_dword v29, v30, s[6:7] sc1 ;@tag=fl{name}"""
def poll_check(name, off):
    return [f"@waitv fl{name}", f"""v_cmp_eq_u32 vcc, 1, v29
    s_cmp_eq_u64 vcc, exec
    s_cbranch_scc1 KD_ready{name}
    @cond_begin
    s_mov_b32 s23, 0
    KD_poll{name}:
    global_load_dword v29, v30, s[6:7] sc1
    s_waitcnt vmcnt(0)
    v_cmp_eq_u32 vcc, 1, v29
    s_add_u32 s23, s23, 1
    s_cmp_eq_u64 vcc, exec
    s_cbranch_scc1 KD_ready{name}
    s_cmp_lt_u32 s23, 0x4000
    s_cbranch_scc1 KD_poll{name}
    @cond_end
    KD_ready{name}:"""]

KD_STG = 32768
def phaseD_setup(WD3):
    SEL = lambda x: 104 + x*4
    o = []
    o.append(f"""s_and_b32 s22, s16, 1
    s_lshl_b32 s22, s22, 1
    s_lshl_b32 s23, s15, 2
    s_add_u32 s46, s22, s23
    s_sub_u32 s47, 128, s46
    s_cmp_eq_u32 s46, 0
    s_cselect_b32 s47, 64, s47
    s_add_u32 s48, s46, 1
    s_sub_u32 s49, 128, s48
    s_cmp_eq_u32 s14, 1
    s_cselect_b32 s50, s47, s46
    s_cmp_eq_u32 s14, 2
    s_cselect_b32 s50, s48, s50
    s_cmp_eq_u32 s14, 3
    s_cselect_b32 s50, s49, s50
    s_mul_i32 s22, s50, 57344
    s_add_u32 s22, s22, {WS_HH}
    v_add_u32 v7, s22, v5
    s_add_u32 s24, s6, 4096
    s_addc_u32 s25, s7, 0""")
    o.append(f"""s_lshr_b32 s30, s61, 1
    s_lshl_b32 s31, s61, 4
    s_sub_u32 s32, 496, s31
    s_lshr_b32 s32, s32, 5
    s_add_u32 s32, s32, 8
    s_cmp_lt_u32 s61, 16
    s_cselect_b32 s30, s30, s32
    s_sub_u32 s33, s30, 1
    s_cmp_eq_u32 s61, 0
    s_cselect_b32 s33, 15, s33
    s_cmp_eq_u32 s61, 16
    s_cselect_b32 s33, 7, s33
    s_max_i32 s33, s33, 0
    s_and_b32 s34, s61, 1
    s_cmp_gt_u32 s61, 16
    s_cselect_b32 s34, 1, s34
    s_lshl_b32 s52, s30, 10
    s_add_u32 s52, s52, {WS_HC}
    v_add_u32 v14, s52, v5
    s_lshl_b32 s52, s33, 10
    s_add_u32 s52, s52, {WS_HC}
    v_add_u32 v15, s52, v5""")
    o += L(f"""
    v_lshlrev_b32 v6, 2, v3
    v_add_u32 v6, {WS_MT}, v6
    v_lshlrev_b32 v12, 17, v3
    v_mov_b32 v13, s61
    v_lshl_add_u32 v12, v13, 5, v12
    v_lshl_add_u32 v12, v4, 3, v12
    v_add_u32 v16, s31, v3
    v_mov_b32 v23, 0x3f80
    """)
    for x, sk in ((0, 30), (1, 33)):
        o.append(f"""s_and_b32 s52, s{sk}, 7
        s_lshl_b32 s52, s52, 5
        s_sub_u32 s56, -1, s52
        s_sub_u32 s57, 511, s52
        s_cmp_lt_u32 s{sk}, 8
        s_cselect_b32 s56, s56, s57
        s_cselect_b32 s57, 1, -1
        s_cmp_eq_u32 s{sk}, 15
        s_cselect_b32 s58, 0, -1
        s_cselect_b32 s59, 256, -1""")
        o += L(f"""
        v_mul_lo_u32 v17, v16, s57
        v_add_u32 v17, s56, v17
        v_cmp_eq_u32 vcc, s59, v16
        v_cndmask_b32 v17, v17, -1, vcc
        v_cmp_eq_u32 vcc, s58, v16
        v_cndmask_b32 v17, v17, 31, vcc
        """)
        if x == 1:
            o.append("""s_cmp_eq_u32 s34, 1
            s_cselect_b32 s52, -1, 0
            v_or_b32 v17, s52, v17""")
        o += L(f"""
        v_bfe_u32 v18, v17, 2, 2
        v_cmp_eq_u32 vcc, v18, v4
        v_cndmask_b32 v17, -1, v17, vcc
        v_lshrrev_b32 v18, 4, v17
        v_lshlrev_b32 v18, 1, v18
        v_bfe_u32 v19, v17, 1, 1
        v_add_u32 v18, v18, v19
        v_and_b32 v19, 1, v17
        v_lshlrev_b32 v19, 4, v19
        v_lshlrev_b32 v19, v19, v23
        """)
        for jj in range(4):
            o.append(f"v_cmp_eq_u32 vcc, {jj}, v18")
            o.append(f"v_cndmask_b32 v{SEL(x)+jj}, 0, v19, vcc")
    return o

QD = [2, 1, 3, 4, 0, 2, 1]
def d_items(sg):
    l = []
    for k in range(8):
        tag = f" ;@tag=s{sg}" if k == 7 else ""
        x = []
        x.append(f"s_add_u32 m0, s21, {QD[sg]*8192 + (k & 4)*1024}")
        x.append(f"global_load_lds_dwordx4 v7, {'s[6:7]' if k < 4 else 's[24:25]'} offset:{(k&3)*1024} sc1{tag}")
        if k == 7: x.append("v_add_u32 v7, 0x2000, v7")
        l.append("\n".join(x))
    return l

def phaseD(a, ep6, wd_rest, WD3, su):
    HB = lambda s: 128 + s*4
    ACC = lambda k: 160 + k*4
    HC = lambda k, x: 176 + (k*2 + x)*4
    SEL = lambda x: 104 + x*4
    MT = 216
    a(weave(ep6, wd_rest))
    a(poll_check("B", 256))
    a(weave(su, [[x] for x in d_items(2) + d_items(3)]) if su else d_items(2) + d_items(3))
    a("@waitv hh5")
    a(arrive("C", 512))
    a.stamp(8)
    hcl = []
    for k in range(4):
        hcl.append(f"s_lshl_b32 s22, s{46+k}, 14\nv_add_u32 v17, s22, v14\nglobal_load_dwordx4 {vr(HC(k,0),4)}, v17, s[6:7] sc1\nv_add_u32 v17, s22, v15\nglobal_load_dwordx4 {vr(HC(k,1),4)}, v17, s[6:7] sc1")
        hcl.append(f"s_lshl_b32 s22, s{46+k}, 6\nv_add_u32 v17, s22, v6\nglobal_load_dword v{MT+k}, v17, s[6:7] sc1")
    def rd(slot, sg, k, tile):
        return f"ds_read_b128 {vr(HB(slot),4)}, v{32+tile} offset:{QD[sg]*8192 + k*1024}"
    for sg in range(7):
        a(f"@waitv s{sg}" + (",wd" if sg == 0 else ""))
        a("s_barrier")
        if sg in (0, 2, 4): a.stamp(9 + sg//2)
        seq = [(k, t) for k in range(8) for t in range(4)]
        main = [rd(x & 7, sg, *seq[x]) for x in range(6)]
        for x, (k, t) in enumerate(seq):
            if x + 6 < 32:
                main.append(rd((x+6) & 7, sg, *seq[x+6])); main.append("s_waitcnt lgkmcnt(6)")
            else:
                main.append(f"s_waitcnt lgkmcnt({31-x})")
            c = "0" if (sg == 0 and k == 0) else vr(ACC(t),4)
            main.append(f"{MF16} {vr(ACC(t),4)}, {ar(WD3(sg*8+k),4)}, {vr(HB(x&7),4)}, {c}")
        fill = []
        if sg == 0: fill = hcl + ["@waitv hh6", arrive("D", 768), poll_issue("C", 512)]
        if sg == 1: fill = ["s_nop 0"]*12 + poll_check("C", 512) + d_items(4) + d_items(5)[:4]
        if sg == 2: fill = d_items(5)[4:] + [poll_issue("D", 768)]
        if sg == 3: fill = ["s_nop 0"]*8 + poll_check("D", 768) + d_items(6)
        a(interleave(main, fill))
        if sg == 4:
            for x in range(2):
                for t in range(4):
                    a(f"{MF16} {vr(ACC(t),4)}, {vr(SEL(x),4)}, {vr(HC(t,x),4)}, {vr(ACC(t),4)}")
    a.stamp(12)
    for k in range(4):
        a(f"s_lshl_b32 s22, s{46+k}, 10")
        a(f"v_add_u32 v{220+k}, s22, v12")
        for r in range(4):
            a(f"v_add_f32 v{ACC(k)+r}, v{MT+k}, v{ACC(k)+r}")
        a(f"v_cvt_pk_bf16_f32 v{224+2*k}, v{ACC(k)}, v{ACC(k)+1}")
        a(f"v_cvt_pk_bf16_f32 v{225+2*k}, v{ACC(k)+2}, v{ACC(k)+3}")
        a(f"global_store_dwordx2 v{220+k}, v[{224+2*k}:{225+2*k}], s[8:9]")

def gen_k2():
    a = Asm(); a.stamps = STAMPS
    H = lambda rho, k: 128 + (rho*16 + k)*4
    XF = lambda rho, k: (rho*16 + k)*4
    T = lambda rho, d: 32 + (rho*2 + d)*4
    SEL = lambda d, tb: 48 + (d*2 + tb)*4
    NEGM = lambda rho: 64 + rho*4
    ACC = lambda s, tb: 72 + (s*2 + tb)*4
    TP = lambda rho, d: 104 + (rho*2 + d)*4
    VA = lambda s, tb: 128 + (s*2 + tb)*4
    WF = lambda s: 160 + s*4
    VW = [8, 9, 25, 26]
    SC = "sc1" if FUSE else ""
    def WD3(k):
        return 4*k if k < 32 else (128 + 4*(k-32) if k < 40 else 192 + 4*(k-40))
    a(f"""
    s_cmp_ge_u32 s2, 256
    s_cbranch_scc1 K2_done
    s_load_dwordx2 s[6:7], s[0:1], 88
    s_load_dwordx4 s[8:11], s[0:1], 72
    v_lshrrev_b32 v1, 6, v0
    v_and_b32 v2, 63, v0
    v_readfirstlane_b32 s14, v1
    v_and_b32 v3, 15, v2
    v_lshrrev_b32 v4, 4, v2
    v_lshlrev_b32 v5, 4, v2
    s_and_b32 s15, s2, 3
    s_lshl_b32 s15, s15, 2
    s_bfe_u32 s16, s2, 0x20003
    s_add_u32 s15, s15, s16          ; j
    s_bfe_u32 s16, s2, 0x10002
    s_lshl_b32 s16, s16, 3
    s_lshr_b32 s17, s2, 5
    s_add_u32 s16, s16, s17          ; n
    s_lshl_b32 s17, s15, 2
    s_add_u32 s17, s17, s14          ; a0
    s_sub_u32 s18, 128, s17
    s_cmp_eq_u32 s17, 0
    s_cselect_b32 s18, 64, s18       ; a1
    s_cselect_b32 s19, 0, 16384
    s_cselect_b32 s20, 16384, 0
    s_mul_i32 s21, s14, {REG}
    s_lshl_b32 s22, s17, 14
    s_lshl_b32 s23, s18, 14
    v_add_u32 v6, s22, v5
    v_add_u32 v7, s23, v5
    v_add_u32 v12, {WS_XP}, v6
    v_add_u32 v13, {WS_XP}, v7
    s_lshl_b32 s22, s17, 6
    s_lshl_b32 s23, s18, 6
    s_add_u32 s22, s22, {WS_MX}
    s_add_u32 s23, s23, {WS_MX}
    v_lshl_add_u32 v14, v3, 2, s22
    v_lshl_add_u32 v15, v3, 2, s23
    s_cmp_ge_u32 s16, 7
    s_cselect_b32 s53, 7, 0
    s_sub_u32 s53, s16, s53
    s_cmp_ge_u32 s53, 7
    s_cselect_b32 s22, 7, 0
    s_sub_u32 s53, s53, s22
    s_cmp_ge_u32 s15, 7
    s_cselect_b32 s54, 7, 0
    s_sub_u32 s54, s15, s54
    s_cmp_ge_u32 s54, 7
    s_cselect_b32 s22, 7, 0
    s_sub_u32 s54, s54, s22
    """)
    if not ROT2: a("s_mov_b32 s53, 0")
    if not ROTP: a("s_mov_b32 s54, 0")
    for i in range(7):
        a(f"""
        s_add_u32 s{46+i}, s53, {i}
        s_cmp_ge_u32 s{46+i}, 7
        s_cselect_b32 s22, 7, 0
        s_sub_u32 s{46+i}, s{46+i}, s22
        s_lshl_b32 s{46+i}, s{46+i}, 11
        """)
    a("""
    s_waitcnt lgkmcnt(0)
    s_add_u32 s26, s6, 8192
    s_addc_u32 s27, s7, 0
    s_add_u32 s28, s6, 12288
    s_addc_u32 s29, s7, 0
    """)
    if DBG:
        a("""
        s_memrealtime s[96:97]
        s_load_dwordx2 s[98:99], s[0:1], 80
        s_waitcnt lgkmcnt(0)
        s_and_b32 s100, s2, 0x3f
        s_cmp_lg_u32 s100, 0
        s_cbranch_scc1 DBG_k2_2
        @cond_begin
        s_lshr_b32 s100, s2, 6
        s_lshl_b32 s100, s100, 4
        s_add_u32 s100, s100, 8
        v_mov_b32 v250, s100
        v_mov_b32 v251, s96
        s_mov_b64 s[100:101], exec
        s_mov_b64 exec, 1
        global_store_dword v250, v251, s[98:99]
        s_mov_b64 exec, s[100:101]
        @cond_end
        DBG_k2_2:
        """)
    a.stamp(0); a.stamp(14)
    for sel in range(2):
        a(f"s_add_u32 m0, s21, {sel*16384 + 12288}")
        a(f"global_load_lds_dwordx4 v{6+sel}, s[28:29] offset:3072")
    a("""
    global_load_dword v16, v14, s[6:7]
    global_load_dword v18, v15, s[6:7]
    global_load_dword v17, v14, s[26:27]
    global_load_dword v19, v15, s[26:27] ;@tag=first
    """)
    pair_items = []
    for i in range(8):
        it = []
        if i < 7:
            for sel in range(2):
                for tb in range(2):
                    x = []
                    if tb == 0: x.append(f"v_add_u32 v{252+sel}, s{46+i}, v{6+sel}")
                    x += [f"s_add_u32 m0, s21, {sel*16384 + 2*i*1024}",
                          f"global_load_lds_dwordx4 v{252+sel}, s[6:7] offset:{tb*1024}"]
                    it.append(x)
            for rho in range(2):
                for d in range(2):
                    x = []
                    if d == 0: x.append(f"v_add_u32 v{254+rho}, s{46+i}, v{12+rho}")
                    tag = f" ;@tag=p{i}" if (d == 1 and rho == 1) else ""
                    x.append(f"global_load_dwordx4 {ar(XF(rho,i+8*d),4)}, v{254+rho}, s[6:7] offset:{d*1024}{tag}")
                    it.append(x)
        else:
            for sel in range(2):
                it.append([f"s_add_u32 m0, s21, {sel*16384 + 12288}", f"global_load_lds_dwordx4 v{6+sel}, s[28:29] offset:2048"])
            for rho in range(2):
                for d in range(2):
                    tag = f" ;@tag=p{i}" if (d == 1 and rho == 1) else ""
                    it.append([f"global_load_dwordx4 {ar(XF(rho,i+8*d),4)}, v{12+rho}, s[28:29] offset:{2048+d*1024}{tag}"])
        pair_items.append(it)
    for it in pair_items[0]: a(it)
    QB = [4, 0, 2, 1, 3, 4, 0]
    def wdma_items(p):
        l = []
        for k in range(4):
            for aa in range(2):
                tag = f" ;@tag=w{p}" if (k == 3 and aa == 1) else ""
                x = [f"s_add_u32 m0, s21, {QB[p]*8192 + 2*k*1024}",
                     f"global_load_lds_dwordx4 v{VW[k]}, s[6:7] offset:{aa*1024}{tag}"]
                if aa == 1:
                    if k == 0:
                        x.append(f"s_cmp_eq_u32 s54, {6-p}\ns_cselect_b32 s55, -6, 1\ns_lshl_b32 s55, s55, 15")
                    x.append(f"v_add_u32 v{VW[k]}, s55, v{VW[k]}")
                l.append(x)
        return l
    a.stamp(1)
    su = L(f"""
    v_mov_b32 v127, 0x3f80
    v_lshlrev_b32 v8, 7, v3
    v_add_u32 v9, s18, v8
    v_add_u32 v8, s17, v8
    s_mov_b32 s32, 0xffff0000
    s_mov_b32 s33, 0xffff0000
    v_lshlrev_b32 v25, 2, v4
    v_cvt_f32_u32 v25, v25
    v_mov_b32 v26, 0x80008000
    """)
    for rho in range(2):
        su += L(f"""
        v_cvt_f32_u32 v27, v{8+rho}
        v_mul_f32 v27, {hx(1.0/2048)}, v27
        v_mul_f32 v28, v27, v25
        """)
        for r in range(4):
            su.append(f"v_cos_f32 v{72+r}, v28")
            su.append(f"v_sin_f32 v{76+r}, v28")
            if r < 3: su.append("v_add_f32 v28, v27, v28")
        for r in range(8): su.append(f"v_mul_f32 v{80+r}, 0.5, v{72+r}")
        su += L(f"""
        v_cvt_pk_bf16_f32 v88, v72, v73
        v_cvt_pk_bf16_f32 v89, v74, v75
        v_cvt_pk_bf16_f32 v90, v76, v77
        v_cvt_pk_bf16_f32 v91, v78, v79
        v_cvt_pk_bf16_f32 v92, v80, v81
        v_cvt_pk_bf16_f32 v93, v82, v83
        v_cvt_pk_bf16_f32 v94, v84, v85
        v_cvt_pk_bf16_f32 v95, v86, v87
        v_xor_b32 v96, v26, v90
        v_xor_b32 v97, v26, v91
        v_xor_b32 v98, v26, v94
        v_xor_b32 v99, v26, v95
        """)
        for dst, c0, c1 in ((TP(rho,0), 98, 92), (TP(rho,1), 94, 92), (T(rho,0), 88, 90), (T(rho,1), 88, 96)):
            for k in range(2):
                su.append(f"v_cndmask_b32 v{dst+k}, v{c0+k}, v{c1+k}, s[32:33]")
                su.append(f"v_cndmask_b32 v{dst+2+k}, v{c1+k}, v{c0+k}, s[32:33]")
    su += L(f"""
    v_lshrrev_b32 v27, 2, v3
    v_lshl_add_u32 v27, v4, 2, v27
    v_lshlrev_b32 v27, 6, v27
    v_and_b32 v28, 3, v3
    v_lshl_add_u32 v27, v28, 4, v27
    v_and_b32 v28, 1, v4
    v_lshl_add_u32 v27, v28, 3, v27
    v_add_u32 v120, s21, v27
    v_xor_b32 v121, 8, v120
    v_add_u32 v122, s19, v120
    v_add_u32 v123, s19, v121
    v_add_u32 v124, s20, v120
    v_add_u32 v125, s20, v121
    v_add_u32 v27, 48, v3
    v_lshlrev_b32 v126, 2, v27
    """)
    a(weave(su, pair_items[1] + pair_items[2]))
    def trread(dst, rho, d, g_):
        if d == 0: b0, b1, off = 120, 121, rho*16384 + g_*1024
        else: b0, b1, off = 122+2*rho, 123+2*rho, g_*1024
        return [f"ds_read_b64_tr_b16 {ar(dst,2)}, v{b0} offset:{off}", f"ds_read_b64_tr_b16 {ar(dst+2,2)}, v{b1} offset:{off}"]
    a.stamp(2)
    a("@waitv first")
    for rho in range(2):
        a(trread(VA(2+rho,0), rho, 0, 15)); a(trread(VA(2+rho,1), rho, 1, 15))
    se = L(f"""
    v_lshlrev_b32 v27, 3, v4
    v_sub_u32 v28, v3, v27
    v_sub_u32 v29, 0, v3
    v_sub_u32 v29, v29, v27
    """)
    for (d, tb, src, add) in ((0,0,28,0), (0,1,28,16), (1,0,29,31), (1,1,29,15)):
        se += L(f"""
        v_add_u32 v30, {add}, v{src}
        v_and_b32 v31, 1, v30
        v_lshlrev_b32 v31, 4, v31
        v_lshlrev_b32 v31, v31, v127
        v_lshrrev_b32 v30, 1, v30
        """)
        for jj in range(4):
            se.append(f"v_cmp_eq_u32 s[{56+2*(jj&1)}:{57+2*(jj&1)}], {jj}, v30\nv_cmp_eq_u32 vcc, {jj}, v30" if False else f"v_cmp_eq_u32 s[{56+2*(jj&1)}:{57+2*(jj&1)}], {jj}, v30")
            if jj & 1:
                se.append(f"v_cndmask_b32 v{SEL(d,tb)+jj-1}, 0, v31, s[56:57]")
                se.append(f"v_cndmask_b32 v{SEL(d,tb)+jj}, 0, v31, s[58:59]")
    a(se[:20])
    a("s_waitcnt lgkmcnt(0)")
    for rho in range(2):
        a(f"{MF16} {vr(ACC(2+rho,0),4)}, {ar(VA(2+rho,0),4)}, {vr(TP(rho,0),4)}, 0")
    for rho in range(2):
        a(f"{MF16} {vr(ACC(2+rho,0),4)}, {ar(VA(2+rho,1),4)}, {vr(TP(rho,1),4)}, {vr(ACC(2+rho,0),4)}")
    a(se[20:38])
    for rho in range(2):
        a(f"ds_bpermute_b32 v{22+rho}, v126, v{ACC(2+rho,0)+3}")
    a(se[38:])
    a(f"""
    s_mul_i32 s42, s16, 7
    s_add_u32 s30, s42, s54
    s_lshl_b32 s30, s30, 15
    s_add_u32 s30, s30, {WS_WUP}
    """)
    for k in range(4):
        a(f"""
        s_lshl_b32 s22, s14, 2
        s_add_u32 s22, s22, {k}
        s_and_b32 s23, s22, 7
        s_add_u32 s31, s23, s53
        s_cmp_ge_u32 s31, 7
        s_cselect_b32 s55, 7, 0
        s_sub_u32 s31, s31, s55
        s_cmp_eq_u32 s23, 7
        s_cselect_b32 s31, 7, s31
        s_and_b32 s22, s22, 8
        s_add_u32 s31, s31, s22
        s_lshl_b32 s31, s31, 11
        s_add_u32 s31, s31, s30
        v_add_u32 v{VW[k]}, s31, v5
        """)
    a(f"""
    s_and_b32 s22, s16, 7
    s_sub_u32 s23, s22, s53
    s_add_u32 s31, s23, 7
    s_cmp_lt_i32 s23, 0
    s_cselect_b32 s23, s31, s23
    s_cmp_eq_u32 s22, 7
    s_cselect_b32 s23, 7, s23
    s_and_b32 s22, s16, 8
    s_add_u32 s60, s23, s22
    s_lshl_b32 s22, s16, 10
    s_add_u32 s22, s22, {WS_HC}
    v_mov_b32 v27, s17
    v_mov_b32 v28, s18
    v_cndmask_b32 v27, v27, v28, s[32:33]
    v_lshrrev_b32 v28, 1, v4
    v_lshlrev_b32 v10, 14, v27
    v_lshl_add_u32 v10, v28, 9, v10
    v_lshl_add_u32 v10, v3, 4, v10
    v_add_u32 v10, s22, v10
    s_mov_b32 s36, 57344
    v_mul_lo_u32 v11, v27, s36
    v_lshl_add_u32 v11, v28, 8, v11
    v_lshl_add_u32 v11, v3, 4, v11
    s_mov_b32 s34, 0
    s_mov_b32 s35, 0xffff0000
    s_waitcnt lgkmcnt(0)
    """)
    for rho in range(2):
        a(f"v_add_f32 v{16+2*rho}, v{16+2*rho}, v{22+rho}")
        for r in range(4):
            a(f"v_sub_f32 v{NEGM(rho)+r}, 0, v{16+2*rho}")
    for r in range(20, 24): a(f"v_mov_b32 v{r}, 0")
    mt_store = f"""s_cmp_eq_u32 s16, 0
    s_cbranch_scc0 K2_nomt
    @cond_begin
    v_add_u32 v14, {WS_MT - WS_MX}, v14
    v_add_u32 v15, {WS_MT - WS_MX}, v15
    s_mov_b64 s[36:37], exec
    s_mov_b64 exec, 0xffff
    global_store_dword v14, v16, s[6:7] {SC}
    global_store_dword v15, v18, s[6:7] {SC}
    s_mov_b64 exec, s[36:37]
    @cond_end
    K2_nomt:"""
    groups = [(i, d) for i in range(8) for d in range(2)]
    def reads(gi):
        i, d = groups[gi]
        o = []
        if d == 0: o.append(f"@waitv p{i}")
        for rho in range(2):
            s = (gi & 1)*2 + rho
            o += trread(VA(s, 0), rho, d, 2*i) + trread(VA(s, 1), rho, d, 2*i+1)
        return o
    def mm(gi):
        i, d = groups[gi]
        kap = i + 8*d
        o = []
        for rho in range(2):
            s = (gi & 1)*2 + rho
            for tb in range(2):
                o.append(f"{MF16} {vr(ACC(s,tb),4)}, {ar(VA(s,tb),4)}, {vr(T(rho,d),4)}, {vr(NEGM(rho),4)}")
        for rho in range(2):
            s = (gi & 1)*2 + rho
            for tb in range(2):
                o.append(f"{MF16} {vr(ACC(s,tb),4)}, {vr(SEL(d,tb),4)}, {ar(XF(rho,kap),4)}, {vr(ACC(s,tb),4)}")
        return o
    def post(gi):
        i, d = groups[gi]
        kap = i + 8*d
        o = []
        for rho in range(2):
            s = (gi & 1)*2 + rho
            h = H(rho, kap)
            for tb in range(2):
                o.append(f"v_cvt_pk_bf16_f32 v{h+2*tb}, v{ACC(s,tb)}, v{ACC(s,tb)+1}")
                o.append(f"v_cvt_pk_bf16_f32 v{h+2*tb+1}, v{ACC(s,tb)+2}, v{ACC(s,tb)+3}")
        h0 = H(0, kap); h = H(1, kap)
        if GRAM:
            for rho in range(2):
                hh_ = vr(H(rho, kap), 4); gacc = vr(112+4*rho, 4)
                o.append(f"{MF16} {gacc}, {hh_}, {hh_}, {'0' if gi == 0 else gacc} ")
        for k in range(4): o.append(f"v_permlane16_swap_b32 v{h0+k}, v{h+k}")
        if DOTS_IN_C and not GRAM:
            for k in range(4):
                o.append(f"v_dot2c_f32_bf16 v{20+(k&1)}, v{h0+k}, v{h0+k}")
                o.append(f"v_dot2c_f32_bf16 v{22+(k&1)}, v{h+k}, v{h+k}")
        o.append(f"""s_cmp_eq_u32 s60, {kap}
        s_cbranch_scc0 K2_nh{kap}
        @cond_begin
        global_store_dwordx4 v10, {vr(h0,4)}, s[6:7] {SC}
        global_store_dwordx4 v10, {vr(h,4)}, s[6:7] offset:256 {SC}
        @cond_end
        K2_nh{kap}:""")
        return o
    def fix(rho):
        F = ACC(rho, 1) + 3; M = ACC(2+rho, 1) + 3
        return L(f"""
        v_add_f32 v27, v{F}, v{M}
        v_mul_f32 v27, 0.5, v27
        v_sub_f32 v28, v{17+2*rho}, v{16+2*rho}
        v_cndmask_b32 v{F}, v{F}, v27, s[34:35]
        v_cndmask_b32 v{M}, v{M}, v28, s[34:35]
        """)
    a.stamp(3)
    a(reads(0))
    extra = {0: pair_items[3] + pair_items[4][:4], 1: pair_items[4][4:] + pair_items[5], 2: pair_items[6], 3: pair_items[7],
             4: [], 5: wdma_items(0), 6: [], 7: wdma_items(1)}
    for i in range(8):
        seq = []
        for gi in (2*i, 2*i+1):
            if gi + 1 < 16:
                seq += reads(gi+1); seq.append("s_waitcnt lgkmcnt(8)")
            else: seq.append("s_waitcnt lgkmcnt(0)")
            m_ = mm(gi)
            fill = post(gi-1) if 1 <= gi <= 14 else []
            seq += m_[:2] + interleave(m_[2:], fill)
        if i == 0: seq.append(mt_store)
        a(weave(seq, extra[i]))
    a(fix(0)); a(fix(1))
    a(post(14)); a(post(15))
    a.stamp(4)
    for k in range(4): a(f"v_add_u32 v{32+k}, {k*REG}, v5")
    wd_items = []
    if FUSE:
        a(f"""
        s_lshr_b32 s22, s16, 1
        s_lshl_b32 s22, s22, 2
        s_add_u32 s61, s22, s14          ; nu
        s_mul_i32 s22, s61, {56*1024}
        s_add_u32 s22, s22, {WS_WD}
        v_add_u32 v24, s22, v5
        """)
        for k in range(56):
            x = f"global_load_dwordx4 {ar(WD3(k),4)}, v24, s[6:7] offset:{(k&3)*1024}"
            if k == 55: x += " ;@tag=wd"
            if (k & 3) == 3: x += "\nv_add_u32 v24, 0x1000, v24"
            wd_items.append([x])
    dsu = phaseD_setup(WD3)
    dots = []
    for kap in range(16):
        for k in range(4):
            dots.append(f"v_dot2c_f32_bf16 v{20+(k&1)}, v{H(0,kap)+k}, v{H(0,kap)+k}")
            dots.append(f"v_dot2c_f32_bf16 v{22+(k&1)}, v{H(1,kap)+k}, v{H(1,kap)+k}")
    if GRAM:
        stats = L(f"""
        v_and_b32 v27, 3, v3
        v_cmp_eq_u32 s[56:57], 1, v27
        v_cmp_eq_u32 s[58:59], 2, v27
        v_cmp_eq_u32 vcc, 3, v27
        v_cndmask_b32 v20, v112, v113, s[56:57]
        v_cndmask_b32 v22, v116, v117, s[56:57]
        v_cndmask_b32 v20, v20, v114, s[58:59]
        v_cndmask_b32 v22, v22, v118, s[58:59]
        v_cndmask_b32 v20, v20, v115, vcc
        v_cndmask_b32 v22, v22, v119, vcc
        v_lshrrev_b32 v27, 2, v3
        v_lshl_add_u32 v27, v27, 4, v3
        v_lshlrev_b32 v27, 2, v27
        ds_bpermute_b32 v21, v27, v20
        ds_bpermute_b32 v23, v27, v22
        s_mov_b32 s38, {hx(1.0/512)}
        v_mov_b32 v27, {hx(1e-5)}
        s_waitcnt lgkmcnt(0)
        v_cndmask_b32 v20, v21, v23, s[32:33]
        v_fma_f32 v20, v20, s38, v27
        v_rsq_f32 v20, v20
        v_mul_f32 v21, {hx(-math.log2(math.e))}, v20
        """)
        a(stats); stats = []
    else:
        stats = L(f"""
        v_add_f32 v20, v20, v21
        v_add_f32 v22, v22, v23
        v_add_f32 v20, v20, v22
        v_mov_b32 v21, v20
        v_permlane32_swap_b32 v20, v21
        v_add_f32 v20, v20, v21
        s_mov_b32 s38, {hx(1.0/512)}
        v_mov_b32 v27, {hx(1e-5)}
        v_fma_f32 v20, v20, s38, v27
        v_rsq_f32 v20, v20
        v_mul_f32 v21, {hx(-math.log2(math.e))}, v20
        """)
    MACC = lambda st: 72 + st*16
    def wread(p, phi):
        return f"ds_read_b128 {ar(WF(phi & 7),4)}, v{32 + (phi>>3)} offset:{QB[p]*8192 + (phi&7)*1024}"
    def epilogue(p):
        st = p & 1
        if p < 6: off = f"s_lshl_b32 s44, s16, 10\ns_add_u32 s44, s44, {WS_HH + (p>>1)*16*1024 + (p&1)*512}"
        else:     off = f"s_lshl_b32 s44, s16, 9\ns_add_u32 s44, s44, {WS_HH + 48*1024}"
        f = [off + "\ns_add_u32 s40, s6, s44\ns_addc_u32 s41, s7, 0"]
        m = MACC(st)
        for r in range(8): f.append(f"v_mul_f32 v{40+r}, v21, v{m+r}")
        for r in range(8):
            f.append(f"v_exp_f32 v{40+r}, v{40+r}")
            f.append(f"v_mul_f32 v{48+r}, v20, v{m+8+r}")
        for r in range(8): f.append(f"v_add_f32 v{40+r}, 1.0, v{40+r}")
        for r in range(8): f.append(f"v_rcp_f32 v{40+r}, v{40+r}")
        for r in range(8): f.append(f"v_mul_f32 v{40+r}, v{40+r}, v{48+r}")
        for r in range(4): f.append(f"v_cvt_pk_bf16_f32 v{56+r}, v{40+2*r}, v{41+2*r}")
        f.append(f"global_store_dwordx4 v11, v[56:59], s[40:41] {SC} ;@tag=hh{p}")
        return f
    PF = 6
    bar = {0: "w0", 1: "w1", 2: "w2,w3", 4: "w4,w5", 6: "w6"}
    for p in range(7):
        if p in bar:
            a(f"@waitv {bar[p]}")
            a("s_barrier")
            if p < 2: a.stamp(5+p)
            main = [wread(p, x) for x in range(PF)]
        else:
            main = []
        st = p & 1
        nxt_ok = (p+1 < 7) and (p+1 not in bar)
        for phi in range(32):
            kap, aa = phi >> 1, phi & 1
            if phi + PF < 32:
                main.append(wread(p, phi+PF)); main.append(f"s_waitcnt lgkmcnt({PF})")
            elif nxt_ok:
                main.append(wread(p+1, phi+PF-32)); main.append(f"s_waitcnt lgkmcnt({PF})")
            else:
                main.append(f"s_waitcnt lgkmcnt({31-phi})")
            c = "0" if phi == 0 else vr(MACC(st),16)
            main.append(f"{MF32} {vr(MACC(st),16)}, {ar(WF(phi&7),4)}, {vr(H(aa,kap),4)}, {c}")
        dm = []
        if p == 0: dm = wdma_items(2) + wdma_items(3)
        if p == 1: dm = wdma_items(4)
        if p == 2: dm = wdma_items(5)
        if p == 4: dm = wdma_items(6)
        dm = [[ "\n".join(x) ] for x in dm]
        if FUSE:
            mine = wd_items[p*WD_IN_MAIN:(p+1)*WD_IN_MAIN]
            dm = [[y] for y in weave([x[0] for x in dm], mine)] if dm else mine
        if DOTS_IN_C: dots = []
        if p == 0: body = dots[:96] + (stats if DOTS_IN_C else [])
        elif p == 1: body = dots[96:] + ([] if DOTS_IN_C else stats) + epilogue(0)
        else: body = epilogue(p-1)
        fl = weave(body, dm)
        if FUSE:
            def ins(lst, frac, items):
                k = int(len(lst)*frac)
                return lst[:k] + items + lst[k:]
            if p == 0: fl = weave(dsu, [[x] for x in fl]) if EARLY_SU else [dsu[0]] + fl
            if p == 3: fl = ins(fl, 0.5, ["@waitv hh1", arrive("A", 0)])
            if p == 5:
                fl = ins(fl, 0.5, ["@waitv hh3", arrive("B", 256)])
                fl = ins(fl, 0.3, [poll_issue("A", 0)])
            if p == 6:
                fl = poll_check("A", 0) + weave(fl, [[x] for x in d_items(0) + d_items(1)]) + [poll_issue("B", 256)]
        a(interleave(main, fl))
    a.stamp(7)
    if not FUSE:
        a(epilogue(6))
    else:
        phaseD(a, epilogue(6), wd_items[7*WD_IN_MAIN:], WD3, [] if EARLY_SU else dsu[1:])
    if STAMPS: a("s_waitcnt vmcnt(0)")
    if DBG: a("s_waitcnt vmcnt(0)")
    if DBG:
        a("""
        s_memrealtime s[96:97]
        s_load_dwordx2 s[98:99], s[0:1], 80
        s_waitcnt lgkmcnt(0)
        s_and_b32 s100, s2, 0x3f
        s_cmp_lg_u32 s100, 0
        s_cbranch_scc1 DBG_k2_3
        @cond_begin
        s_lshr_b32 s100, s2, 6
        s_lshl_b32 s100, s100, 4
        s_add_u32 s100, s100, 12
        v_mov_b32 v250, s100
        v_mov_b32 v251, s96
        s_mov_b64 s[100:101], exec
        s_mov_b64 exec, 1
        global_store_dword v250, v251, s[98:99]
        s_mov_b64 exec, s[100:101]
        @cond_end
        DBG_k2_3:
        """)
    a.stamp(13); a.stamp(15)
    a.dump_stamps(WS_ST + (1 << 20))
    a("K2_done:")
    a("s_endpgm")
    return a.finalize()

K3_STG = 28672
K3_LDS = 5*K3_STG
def gen_k3():
    a = Asm(); a.stamps = STAMPS
    WD = lambda k3: k3*4
    HB = lambda s: 64 + s*4
    ACC = lambda k: 32 + k*4
    HC = lambda k, x: 96 + (k*2 + x)*4
    SEL = lambda x: 48 + x*4
    a(f"""
    s_cmp_ge_u32 s2, 256
    s_cbranch_scc1 K3_done
    s_load_dwordx2 s[4:5], s[0:1], 72
    s_load_dwordx2 s[6:7], s[0:1], 88
    v_lshrrev_b32 v1, 6, v0
    v_and_b32 v2, 63, v0
    v_readfirstlane_b32 s14, v1
    v_and_b32 v3, 15, v2
    v_lshrrev_b32 v4, 4, v2
    v_lshlrev_b32 v5, 4, v2
    s_and_b32 s15, s2, 7
    s_lshl_b32 s15, s15, 2
    s_bfe_u32 s16, s2, 0x20003
    s_add_u32 s15, s15, s16
    s_lshr_b32 s16, s2, 5
    s_lshl_b32 s17, s16, 2
    s_add_u32 s17, s17, s14          ; nu
    s_lshl_b32 s18, s15, 2           ; tt0
    s_add_u32 s19, s18, s14
    s_mul_i32 s20, s17, {56*1024}
    s_add_u32 s20, s20, {WS_WD}
    v_add_u32 v6, s20, v5
    s_mul_i32 s20, s19, 57344
    s_add_u32 s20, s20, {WS_HH}
    v_add_u32 v7, s20, v5
    s_mul_i32 s21, s14, 7168
    s_add_u32 s46, s15, s16
    s_and_b32 s46, s46, {7 if ROT3 else 0}            ; rot
    s_mul_i32 s20, s46, 7168
    v_add_u32 v6, s20, v6
    v_add_u32 v7, s20, v7
    s_waitcnt lgkmcnt(0)
    s_add_u32 s24, s6, 4096
    s_addc_u32 s25, s7, 0
    """)
    a.stamp(0); a.stamp(14)
    def items(sg):
        buf = (sg % 5)*K3_STG
        l = []
        for k in range(7):
            x = [f"s_add_u32 m0, s21, {buf + (k & 4)*1024}",
                 f"global_load_lds_dwordx4 v7, {'s[6:7]' if k < 4 else 's[24:25]'} offset:{(k&3)*1024}"]
            if k == 6:
                x.append(f"s_cmp_eq_u32 s46, {7-sg}\ns_cselect_b32 s47, -7, 1\ns_mul_i32 s47, s47, 7168\nv_add_u32 v7, s47, v7")
            l.append(x)
            tag = f" ;@tag=s{sg}" if k == 6 else ""
            x = [f"global_load_dwordx4 {ar(WD(sg*7+k),4)}, v6, {'s[6:7]' if k < 4 else 's[24:25]'} offset:{(k&3)*1024}{tag}"]
            if k == 6: x.append("v_add_u32 v6, s47, v6")
            l.append(x)
        return l
    for it in items(0): a(it)
    su = L(f"""
    v_lshlrev_b32 v8, 7, v3
    v_add_u32 v8, s18, v8
    v_lshlrev_b32 v9, 10, v8
    s_lshl_b32 s20, s17, 5
    v_add_u32 v9, s20, v9
    v_lshl_add_u32 v9, v4, 3, v9
    s_lshl_b32 s20, s18, 6
    s_add_u32 s20, s20, {WS_MT}
    v_lshl_add_u32 v11, v3, 2, s20
    """)
    su.append(f"""s_lshr_b32 s30, s17, 1
    s_lshl_b32 s31, s17, 4
    s_sub_u32 s32, 496, s31
    s_lshr_b32 s32, s32, 5
    s_add_u32 s32, s32, 8
    s_cmp_lt_u32 s17, 16
    s_cselect_b32 s30, s30, s32
    s_sub_u32 s33, s30, 1
    s_cmp_eq_u32 s17, 0
    s_cselect_b32 s33, 15, s33
    s_cmp_eq_u32 s17, 16
    s_cselect_b32 s33, 7, s33
    s_max_i32 s33, s33, 0
    s_and_b32 s34, s17, 1
    s_cmp_gt_u32 s17, 16
    s_cselect_b32 s34, 1, s34
    s_lshl_b32 s35, s18, 14
    s_add_u32 s35, s35, {WS_HC}
    s_lshl_b32 s36, s30, 10
    s_add_u32 s36, s36, s35
    v_add_u32 v14, s36, v5
    s_lshl_b32 s36, s33, 10
    s_add_u32 s36, s36, s35
    v_add_u32 v15, s36, v5""")
    su += L(f"""
    v_add_u32 v16, s31, v3
    v_mov_b32 v23, 0x3f80
    v_add_u32 v12, {2*K3_STG}, v5
    v_add_u32 v13, {4*K3_STG}, v5
    """)
    for x, sk in ((0, 30), (1, 33)):
        su.append(f"""s_and_b32 s36, s{sk}, 7
        s_lshl_b32 s36, s36, 5
        s_sub_u32 s37, -1, s36
        s_sub_u32 s38, 511, s36
        s_cmp_lt_u32 s{sk}, 8
        s_cselect_b32 s37, s37, s38
        s_cselect_b32 s38, 1, -1
        s_cmp_eq_u32 s{sk}, 15
        s_cselect_b32 s39, 0, -1
        s_cselect_b32 s40, 256, -1""")
        su += L(f"""
        v_mul_lo_u32 v17, v16, s38
        v_add_u32 v17, s37, v17
        v_cmp_eq_u32 vcc, s40, v16
        v_cndmask_b32 v17, v17, -1, vcc
        v_cmp_eq_u32 vcc, s39, v16
        v_cndmask_b32 v17, v17, 31, vcc
        """)
        if x == 1:
            su.append("""s_cmp_eq_u32 s34, 1
            s_cselect_b32 s36, -1, 0
            v_or_b32 v17, s36, v17""")
        su += L(f"""
        v_bfe_u32 v18, v17, 2, 2
        v_cmp_eq_u32 vcc, v18, v4
        v_cndmask_b32 v17, -1, v17, vcc
        v_lshrrev_b32 v18, 4, v17
        v_lshlrev_b32 v18, 1, v18
        v_bfe_u32 v19, v17, 1, 1
        v_add_u32 v18, v18, v19
        v_and_b32 v19, 1, v17
        v_lshlrev_b32 v19, 4, v19
        v_lshlrev_b32 v19, v19, v23
        """)
        for jj in range(4):
            su.append(f"v_cmp_eq_u32 vcc, {jj}, v18")
            su.append(f"v_cndmask_b32 v{SEL(x)+jj}, 0, v19, vcc")
    a(weave(su, items(1) + items(2)))
    hcl = []
    for k in range(4):
        hcl.append([f"global_load_dwordx4 {vr(HC(k,0),4)}, v14, s[6:7]", "v_add_u32 v14, 0x4000, v14"])
        hcl.append([f"global_load_dwordx4 {vr(HC(k,1),4)}, v15, s[6:7]", "v_add_u32 v15, 0x4000, v15"])
        hcl.append([f"global_load_dword v{24+k}, v11, s[6:7] offset:{64*k}"])
    a.stamp(1)
    def rd(slot, sg, k, tile):
        b = sg % 5
        base = (5, 5, 12, 12, 13)[b]
        off = (b & 1)*K3_STG if b < 4 else 0
        return f"ds_read_b128 {vr(HB(slot),4)}, v{base} offset:{off + tile*7168 + k*1024}"
    for sg in range(8):
        a(f"@waitv s{sg}")
        a("s_barrier")
        a.stamp(2+sg)
        seq = [(k, t) for k in range(7) for t in range(4)]
        main = [rd(x & 7, sg, *seq[x]) for x in range(6)]
        for x, (k, t) in enumerate(seq):
            if x + 6 < 28:
                main.append(rd((x+6) & 7, sg, *seq[x+6])); main.append("s_waitcnt lgkmcnt(6)")
            else:
                main.append(f"s_waitcnt lgkmcnt({27-x})")
            c = "0" if (sg == 0 and k == 0) else vr(ACC(t),4)
            main.append(f"{MF16} {vr(ACC(t),4)}, {ar(WD(sg*7+k),4)}, {vr(HB(x&7),4)}, {c}")
        fill = []
        if sg + 3 < 8: fill += items(sg+3)
        if sg == 4: fill += hcl
        a(interleave(main, fill))
        if sg == 7:
            a("s_waitcnt vmcnt(0)")
            for x in range(2):
                for t in range(4):
                    a(f"{MF16} {vr(ACC(t),4)}, {vr(SEL(x),4)}, {vr(HC(t,x),4)}, {vr(ACC(t),4)}")
    a.stamp(10)
    for k in range(4):
        for r in range(4):
            a(f"v_add_f32 v{ACC(k)+r}, v{24+k}, v{ACC(k)+r}")
        a(f"v_cvt_pk_bf16_f32 v{56+2*k}, v{ACC(k)}, v{ACC(k)+1}")
        a(f"v_cvt_pk_bf16_f32 v{57+2*k}, v{ACC(k)+2}, v{ACC(k)+3}")
        a(f"global_store_dwordx2 v9, v[{56+2*k}:{57+2*k}], s[4:5] offset:{1024*k}")
    if STAMPS: a("s_waitcnt vmcnt(0)")
    a.stamp(11); a.stamp(15)
    a.dump_stamps(WS_ST + (2 << 20))
    a("K3_done:")
    a("s_endpgm")
    return a.finalize()

def build_all():
    out = []
    hdr = open("sequential_preLN__spectral_fnet__glu_gated_glu__prompt.s.ref").read().split("\n")
    out += [l for l in hdr if l.startswith(";") and "@launch" not in l]
    out.append(f"; @launch kernel=k1_kernel grid=(256,1,1) block=(512,1,1) lds={K1_LDS}")
    out.append(f"; @launch kernel=k2_kernel grid=(256,1,1) block=(256,1,1) lds={K2_LDS}")
    if not FUSE: out.append(f"; @launch kernel=k3_kernel grid=(256,1,1) block=(256,1,1) lds={K3_LDS}")
    out.append('.amdgcn_target "amdgcn-amd-amdhsa--gfx950"')
    out.append(".text")
    out.append(header("k1_kernel") + gen_k1())
    out.append(header("k2_kernel") + gen_k2())
    if not FUSE: out.append(header("k3_kernel") + gen_k3())
    out.append('.section .rodata,"a"')
    for k in (kd("k1_kernel", 256, 256), kd("k2_kernel", 512, 256)) + (() if FUSE else (kd("k3_kernel", 128+224, 128),)):
        out.append(".p2align 6\n" + k)
    return "\n".join(out) + "\n"

if __name__ == "__main__":
    for x in sys.argv[2:]:
        if x == "stamps": STAMPS = True
        elif "=" in x:
            k_, v_ = x.split("="); globals()[k_] = int(v_)
    open(sys.argv[1] if len(sys.argv) > 1 else "v5.s", "w").write(build_all())
```

```python
import sys, math, struct
from asmlib import Asm, vr, ar, sr, weave, L

WS_V   = 0
WS_MX  = 2 << 20
WS_X0  = (2 << 20) + 8192
WS_MT  = (2 << 20) + (64 << 10)
WS_FL  = (2 << 20) + (128 << 10)
WS_XP  = 3 << 20
WS_HC  = 5 << 20
WS_WUP = 8 << 20
WS_WD  = 12 << 20
WS_HH  = 16 << 20
WS_ST  = 32 << 20
STAMPS = False
ROT2 = False
ROTP = False
ROT3 = False
DOTS_IN_C = True
FUSE = True
WD_IN_MAIN = 8
K1SC = 0
DBG = 0
NOHELP = 0
FINE = 0
GRAM = 1
EARLY_SU = 1
HSLEEP = 0

def f2u(f): return struct.unpack('<I', struct.pack('<f', f))[0]
def hx(f): return "0x%08x" % f2u(f)
def kd(name, vgpr, accum, sgpr=102):
    return f"""
.amdhsa_kernel {name}
  .amdhsa_next_free_vgpr {vgpr}
  .amdhsa_next_free_sgpr {sgpr}
  .amdhsa_accum_offset {accum}
  .amdhsa_group_segment_fixed_size 0
  .amdhsa_kernarg_size 96
  .amdhsa_user_sgpr_count 2
  .amdhsa_user_sgpr_kernarg_segment_ptr 1
  .amdhsa_system_sgpr_workgroup_id_x 1
.end_amdhsa_kernel
"""
def header(name):
    return f".globl {name}\n.p2align 8\n.type {name},@function\n{name}:\n"

def interleave(main, fill, key='v_mfma'):
    out = []
    nm = sum(1 for m in main if m.startswith(key))
    fi = 0; seen = 0
    for m in main:
        out.append(m)
        if m.startswith(key):
            seen += 1
            tgt = (len(fill) * seen + nm - 1) // nm
            while fi < tgt:
                out.append(fill[fi]); fi += 1
    out += fill[fi:]
    return out

MF16 = "v_mfma_f32_16x16x32_bf16"
MF32 = "v_mfma_f32_32x32x16_bf16"

K1_LDS_F = 131072
K1_LDS_HELP = 147456
K1_LDS = 163840

def gen_k1():
    a = Asm(); a.stamps = STAMPS
    CS = lambda t, cs, k: 64 + ((t*2 + cs)*4 + k)*4
    G = lambda hi, rho, tile: 128 + ((hi*2 + rho)*2 + tile)*4
    FB = lambda s, tile: 160 + (s*6 + tile)*4
    XB = lambda s, hi, rho: 160 + (s*6 + 2 + hi*2 + rho)*4
    SM = lambda rho: 208 + rho*4
    SQ = lambda rho: 216 + rho*4
    ONES = 224
    a(f"""
    s_cmp_ge_u32 s2, 256
    s_cbranch_scc1 K1_done
    s_load_dwordx2 s[4:5], s[0:1], 0
    s_load_dwordx2 s[6:7], s[0:1], 88
    s_load_dwordx4 s[8:11], s[0:1], 48
    s_load_dwordx2 s[12:13], s[0:1], 64
    v_lshrrev_b32 v1, 6, v0
    v_and_b32 v2, 63, v0
    v_readfirstlane_b32 s14, v1
    v_and_b32 v3, 15, v2
    v_lshrrev_b32 v4, 4, v2
    v_lshlrev_b32 v13, 4, v2         ; lane*16
    s_and_b32 s15, s2, 7
    s_lshl_b32 s15, s15, 1
    s_bfe_u32 s16, s2, 0x10003
    s_or_b32 s15, s15, s16           ; s2 index
    s_lshr_b32 s16, s2, 4            ; eb
    s_cmp_ge_u32 s14, 4
    s_cbranch_scc1 K1_helper
    """)
    if DBG:
        a("""
        s_memrealtime s[96:97]
        s_load_dwordx2 s[98:99], s[0:1], 80
        s_waitcnt lgkmcnt(0)
        s_and_b32 s100, s2, 0x3f
        s_cmp_lg_u32 s100, 0
        s_cbranch_scc1 DBG_k1_0
        @cond_begin
        s_lshr_b32 s100, s2, 6
        s_lshl_b32 s100, s100, 4
        s_add_u32 s100, s100, 0
        v_mov_b32 v250, s100
        v_mov_b32 v251, s96
        s_mov_b64 s[100:101], exec
        s_mov_b64 exec, 1
        global_store_dword v250, v251, s[98:99]
        s_mov_b64 exec, s[100:101]
        @cond_end
        DBG_k1_0:
        """)
    a.stamp(0); a.stamp(14)
    a(f"""
    v_lshrrev_b32 v5, 2, v2
    v_lshlrev_b32 v5, 17, v5
    s_lshl_b32 s17, s14, 15
    s_lshl_b32 s18, s15, 10
    s_add_u32 s18, s18, s17
    v_add_u32 v5, s18, v5
    v_sub_u32 v6, 0, v4
    v_xor_b32 v6, v6, v2
    v_and_b32 v6, 3, v6
    v_lshl_add_u32 v7, v6, 4, v5
    s_and_b32 s46, s16, 7            ; rot
    """)
    for b in range(8):
        a(f"""
        s_add_u32 s47, s46, {b}
        s_and_b32 s47, s47, 7
        s_lshl_b32 s47, s47, 6
        v_add_u32 v{240+b}, s47, v7
        """)
    a("""
    s_waitcnt lgkmcnt(0)
    s_add_u32 s48, s4, 0x4000
    s_addc_u32 s49, s5, 0
    """)
    xi = []
    for k in range(8):
        for hi in range(2):
            for rho in range(2):
                kk = k + 8*hi
                tag = f" ;@tag=x{k}" if (hi == 1 and rho == 1) else ""
                xi.append([f"s_add_u32 m0, s17, {(rho*16+kk)*1024 - 512*hi}",
                           f"global_load_lds_dwordx4 v{240+k}, {'s[48:49]' if rho else 's[4:5]'} offset:{512*hi}{tag}"])
    for it in xi[:8]: a(it)
    a.stamp(1)
    fg = L(f"""
    s_mov_b32 s20, 0x41c80000
    s_lshl_b32 s21, s16, 4
    s_add_u32 s21, s21, 1
    v_add_u32 v9, s21, v3
    v_cvt_f32_u32 v10, v9
    v_mul_f32 v10, {hx(-1.0/512)}, v10
    v_lshlrev_b32 v11, 31, v9
    v_or_b32 v56, 1.0, v11
    s_lshl_b32 s21, s14, 1
    s_add_u32 s21, s21, s46
    s_add_u32 s50, s21, 1
    s_and_b32 s21, s21, 7
    s_and_b32 s50, s50, 7
    s_lshl_b32 s21, s21, 5
    s_lshl_b32 s50, s50, 5
    v_lshlrev_b32 v12, 3, v4
    v_add_u32 v62, s50, v12
    v_add_u32 v12, s21, v12
    v_cvt_f32_u32 v12, v12
    v_cvt_f32_u32 v62, v62
    v_mul_f32 v12, v10, v12
    v_mul_f32 v62, v10, v62
    s_lshl_b32 s21, s14, 12
    s_add_u32 s21, s21, {K1_LDS_F}
    v_add_u32 v14, s21, v13
    """)
    fg.append("""s_cmp_eq_u32 s16, 15
    s_cselect_b32 s22, 0x80008000, 0
    s_cselect_b32 s23, 0x80008000, 0
    s_cselect_b32 s18, 0x8000, 0
    s_cmp_eq_u32 s14, 0
    s_cselect_b32 s18, s18, 0
    s_mov_b32 s19, 0""")
    fg += L("""
    v_mov_b32 v15, 0x3f80
    v_cndmask_b32 v57, v56, 0, s[22:23]
    v_cndmask_b32 v58, 0, 1.0, s[22:23]
    """)
    for kk in range(2):
        if kk == 1: fg.append("v_mov_b32 v12, v62")
        for j in range(8):
            fg.append(f"v_cos_f32 v{16+j}, v12")
            fg.append(f"v_sin_f32 v{24+j}, v12")
            if j < 7: fg.append("v_add_f32 v12, v10, v12")
        o = 32 + kk*8
        for jj in range(4):
            fg.append(f"v_cvt_pk_bf16_f32 v{o+jj}, v{16+2*jj}, v{17+2*jj}")
            fg.append(f"v_cvt_pk_bf16_f32 v{o+4+jj}, v{24+2*jj}, v{25+2*jj}")
        if kk == 1: fg.append(f"v_cndmask_b32 v{o+4}, v{o+4}, v15, s[18:19]")
        fg.append(f"ds_write_b128 v14, {vr(o,4)} offset:{kk*2048}")
        fg.append(f"ds_write_b128 v14, {vr(o+4,4)} offset:{kk*2048+1024}")
    ad = L(f"""
    v_lshrrev_b32 v5, 2, v3
    v_sub_u32 v5, 0, v5
    v_and_b32 v5, 3, v5
    v_xor_b32 v6, v5, v4
    v_lshlrev_b32 v6, 4, v6
    v_lshl_add_u32 v6, v3, 6, v6
    v_add_u32 v6, s17, v6
    v_add_u32 v61, {K1_LDS_F}, v13
    """)
    for r in range(4): ad.append(f"v_mov_b32 v{ONES+r}, 0x3f803f80")
    a(weave(fg + ad, xi[8:16]))
    a("s_waitcnt lgkmcnt(0)")
    a.stamp(2)
    a("s_barrier")
    cs = L(f"""
    s_lshl_b32 s21, s14, 4
    v_add_u32 v9, s21, v3
    v_cvt_f32_u32 v10, v9
    v_mul_f32 v10, {hx(1.0/128)}, v10
    v_mul_f32 v11, {hx(8.0)}, v10
    v_lshlrev_b32 v12, 5, v4
    v_cvt_f32_u32 v12, v12
    v_mul_f32 v12, v10, v12
    v_mov_b32 v15, 0x80008000
    """)
    for k in range(4):
        for hh in range(2):
            cs.append("v_mov_b32 v14, v12")
            for r in range(4):
                j = hh*4 + r
                cs.append(f"v_cos_f32 v{16+j}, v14")
                cs.append(f"v_sin_f32 v{24+j}, v14")
                if r < 3: cs.append("v_add_f32 v14, v11, v14")
            cs.append("v_add_f32 v12, v10, v12")
        for jj in range(4):
            cs.append(f"v_cvt_pk_bf16_f32 v{CS(0,0,k)+jj}, v{16+2*jj}, v{17+2*jj}")
            cs.append(f"v_cvt_pk_bf16_f32 v{CS(0,1,k)+jj}, v{24+2*jj}, v{25+2*jj}")
        for c_ in range(2):
            for jj in range(2):
                cs.append(f"v_mov_b32 v{CS(1,c_,k)+jj}, v{CS(0,c_,k)+jj}")
                cs.append(f"v_xor_b32 v{CS(1,c_,k)+2+jj}, v15, v{CS(0,c_,k)+2+jj}")
    cs.append("v_mul_u32_u24 v16, 80, v4")
    cs.append(f"""s_sub_u32 s21, 23, s16
    s_cmp_lt_u32 s16, 8
    s_cselect_b32 s21, s16, s21
    s_cselect_b32 s24, 16, 0
    s_add_u32 s50, s21, 1
    s_and_b32 s50, s50, 15
    s_sub_u32 s51, s21, s46
    s_and_b32 s51, s51, 7
    s_and_b32 s21, s21, 8
    s_add_u32 s21, s21, s51
    s_lshl_b32 s21, s21, 10
    s_sub_u32 s51, s50, s46
    s_and_b32 s51, s51, 7
    s_and_b32 s50, s50, 8
    s_add_u32 s50, s50, s51
    s_lshl_b32 s50, s50, 10
    s_mov_b32 s52, 0
    s_mov_b32 s53, 0xffff0000""")
    cs += L(f"""
    v_add_u32 v25, s21, v6
    v_add_u32 v26, 1, v4
    v_and_b32 v26, 3, v26
    v_xor_b32 v26, v26, v5
    v_lshlrev_b32 v26, 4, v26
    v_lshl_add_u32 v26, v3, 6, v26
    v_mov_b32 v27, s21
    v_mov_b32 v28, s50
    v_cndmask_b32 v27, v27, v28, s[52:53]
    v_add3_u32 v26, v26, v27, s17
    """)
    cs += L(f"""
    s_lshl_b32 s21, s14, 5
    s_add_u32 s21, s21, s15
    s_lshl_b32 s26, s21, 14
    s_lshl_b32 s27, s46, 11
    s_add_u32 s26, s26, s27
    s_lshr_b32 s27, s16, 3
    s_lshl_b32 s27, s27, 10
    s_add_u32 s26, s26, s27
    s_add_u32 s26, s26, {WS_XP}
    v_add_u32 v28, s26, v13
    v_add_u32 v29, 0x40000, v28
    v_mov_b32 v30, s24
    v_lshlrev_b32 v31, 14, v9
    s_lshl_b32 s26, s16, 10
    s_lshl_b32 s27, s15, 6
    s_add_u32 s26, s26, s27
    v_add_u32 v31, s26, v31
    v_lshl_add_u32 v31, v4, 4, v31
    v_add_u32 v17, 0x100000, v31
    v_add_u32 v18, s17, v13
    v_add_u32 v19, 0x10000, v13
    s_mov_b32 s25, {hx(1.0/512)}
    v_mov_b32 v27, {hx(1e-5)}
    """)
    def reads(k):
        s = k & 1
        o = [f"@waitv x{k}",
             f"ds_read_b128 {vr(FB(s,0),4)}, v61 offset:{(k*2)*1024}",
             f"ds_read_b128 {vr(FB(s,1),4)}, v61 offset:{(k*2+1)*1024}"]
        for hi in range(2):
            for rho in range(2):
                o.append(f"ds_read_b128 {vr(XB(s,hi,rho),4)}, v6 offset:{(rho*16 + k + 8*hi)*1024}")
        return o
    for it in xi[16:20]: a(it)
    a(reads(0))
    ncs = len(cs); per = (ncs + 6) // 7
    for k in range(8):
        seq = []
        if k < 7:
            seq += reads(k+1); seq.append("s_waitcnt lgkmcnt(6)")
        else:
            seq += L(f"""
            ds_read_b128 v[32:35], v25
            ds_read_b32 v36, v26
            ds_read_b128 v[40:43], v25 offset:16384
            ds_read_b32 v44, v26 offset:16384
            s_waitcnt lgkmcnt(4)
            """)
        s = k & 1
        if k == 0:
            seq.append(f"v_lshlrev_b32 v59, 16, v{XB(0,0,0)}")
            seq.append(f"v_lshlrev_b32 v60, 16, v{XB(0,0,1)}")
        for hi in range(2):
            for rho in range(2):
                first = (k == 0 and hi == 0)
                x = vr(XB(s,hi,rho),4)
                seq.append(f"{MF16} {vr(SQ(rho),4)}, {x}, {x}, {'0' if first else vr(SQ(rho),4)}")
                seq.append(f"{MF16} {vr(SM(rho),4)}, {x}, {vr(ONES,4)}, {'0' if first else vr(SM(rho),4)}")
        for hi in range(2):
            for rho in range(2):
                for tile in range(2):
                    c = "0" if k == 0 else vr(G(hi,rho,tile),4)
                    seq.append(f"{MF16} {vr(G(hi,rho,tile),4)}, {vr(XB(s,hi,rho),4)}, {vr(FB(s,tile),4)}, {c}")
        fill = cs[k*per:(k+1)*per] if k < 7 else []
        if k < 3:
            fill = weave(fill, xi[20+4*k:24+4*k])
        a(interleave(seq, fill))
    a.stamp(3)
    for rho in range(2):
        for r in range(4):
            a(f"ds_bpermute_b32 v{160+rho*4+r}, v16, v{SQ(rho)+r} offset:{4*r}")
    a("s_waitcnt lgkmcnt(8)")
    for rho in range(2):
        b = 32 + rho*8
        for k in range(4):
            a(f"v_alignbit_b32 v{48+rho*4+k}, v{b+k+1}, v{b+k}, v30")
        a(f"global_store_dwordx4 v{28+rho}, {vr(48+rho*4,4)}, s[6:7]")
    for rho in range(2):
        for r in range(4):
            a(f"v_mul_f32 v{SM(rho)+r}, s25, v{SM(rho)+r}")
    for rho in range(2):
        for tile in range(2):
            for r in range(4):
                a(f"v_fma_f32 v{G(0,rho,tile)+r}, v{G(1,rho,tile)+r}, v{56+tile}, v{G(0,rho,tile)+r}")
    for rho in range(2):
        for r in range(4):
            a(f"v_fma_f32 v{G(0,rho,1)+r}, -v{SM(rho)+r}, v58, v{G(0,rho,1)+r}")
    a("s_waitcnt lgkmcnt(0)")
    for rho in range(2):
        for r in range(4):
            q_ = 160+rho*4+r
            a(f"v_fma_f32 v{q_}, v{q_}, s25, v27")
            a(f"v_fma_f32 v{q_}, -v{SM(rho)+r}, v{SM(rho)+r}, v{q_}")
            a(f"v_rsq_f32 v{q_}, v{q_}")
    for rho in range(2):
        for tile in range(2):
            for r in range(4):
                a(f"v_mul_f32 v{G(0,rho,tile)+r}, v{G(0,rho,tile)+r}, v{160+rho*4+r}")
    for tile in range(2):
        for rho in range(2):
            a(f"v_cvt_pk_bf16_f32 v{184+tile*4+rho*2}, v{G(0,rho,tile)}, v{G(0,rho,tile)+1}")
            a(f"v_cvt_pk_bf16_f32 v{184+tile*4+rho*2+1}, v{G(0,rho,tile)+2}, v{G(0,rho,tile)+3}")
    a(f"""
    ds_write_b128 v18, v[184:187]
    ds_write_b128 v18, v[188:191] offset:1024
    s_cmp_lg_u32 s16, 0
    s_cbranch_scc1 K1_nomx
    @cond_begin
    s_lshl_b32 s26, s21, 6
    s_add_u32 s26, s26, {WS_MX}
    v_lshl_add_u32 v20, v4, 4, s26
    v_lshl_add_u32 v21, v3, 2, s26
    s_mov_b64 s[28:29], exec
    s_mov_b32 exec_lo, 0x00010001
    s_mov_b32 exec_hi, 0x00010001
    global_store_dwordx4 v20, {vr(SM(0),4)}, s[6:7]
    global_store_dwordx4 v20, {vr(SM(1),4)}, s[6:7] offset:1024
    s_mov_b64 exec, 0xffff
    v_add_u32 v21, {WS_X0 - WS_MX}, v21
    global_store_dword v21, v59, s[6:7]
    global_store_dword v21, v60, s[6:7] offset:1024
    s_mov_b64 exec, s[28:29]
    @cond_end
    K1_nomx:
    s_waitcnt lgkmcnt(0)
    """)
    a.stamp(4)
    a("s_barrier")
    a.stamp(5)
    AR = lambda k: 192 + k*4
    AI = lambda k: 160 + k*4
    NR = lambda k: 232 + k*4
    for k in range(4):
        b = 13 if k < 2 else 19
        a(f"ds_read_b128 {vr(AR(k),4)}, v{b} offset:{(k&1)*32768}")
        a(f"ds_read_b128 {vr(AI(k),4)}, v{b} offset:{(k&1)*32768 + 1024}")
    VA = lambda t, c: 128 + (t*2 + c)*4
    for k in range(4):
        a(f"s_waitcnt lgkmcnt({6-2*k})")
        for jj in range(4):
            a(f"v_xor_b32 v{NR(k)+jj}, v15, v{AR(k)+jj}")
        for t in range(2):
            c0 = "0" if k == 0 else vr(VA(t,0),4)
            c1 = "0" if k == 0 else vr(VA(t,1),4)
            a(f"{MF16} {vr(VA(t,0),4)}, {vr(AR(k),4)}, {vr(CS(t,0,k),4)}, {c0}")
            a(f"{MF16} {vr(VA(t,1),4)}, {vr(AI(k),4)}, {vr(CS(t,0,k),4)}, {c1}")
        for t in range(2):
            a(f"{MF16} {vr(VA(t,0),4)}, {vr(AI(k),4)}, {vr(CS(t,1,k),4)}, {vr(VA(t,0),4)}")
            a(f"{MF16} {vr(VA(t,1),4)}, {vr(NR(k),4)}, {vr(CS(t,1,k),4)}, {vr(VA(t,1),4)}")
    for t in range(2):
        o = 32 + t*4
        a(f"v_cvt_pk_bf16_f32 v{o}, v{VA(t,0)}, v{VA(t,0)+1}")
        a(f"v_cvt_pk_bf16_f32 v{o+1}, v{VA(t,0)+2}, v{VA(t,0)+3}")
        a(f"v_cvt_pk_bf16_f32 v{o+2}, v{VA(t,1)}, v{VA(t,1)+1}")
        a(f"v_cvt_pk_bf16_f32 v{o+3}, v{VA(t,1)+2}, v{VA(t,1)+3}")
        a(f"global_store_dwordx4 v{31 if t == 0 else 17}, {vr(o,4)}, s[6:7]")
    a.stamp(6)
    if STAMPS: a("s_waitcnt vmcnt(0)")
    if DBG: a("s_waitcnt vmcnt(0)")
    if DBG:
        a("""
        s_memrealtime s[96:97]
        s_load_dwordx2 s[98:99], s[0:1], 80
        s_waitcnt lgkmcnt(0)
        s_and_b32 s100, s2, 0x3f
        s_cmp_lg_u32 s100, 0
        s_cbranch_scc1 DBG_k1_1
        @cond_begin
        s_lshr_b32 s100, s2, 6
        s_lshl_b32 s100, s100, 4
        s_add_u32 s100, s100, 4
        v_mov_b32 v250, s100
        v_mov_b32 v251, s96
        s_mov_b64 s[100:101], exec
        s_mov_b64 exec, 1
        global_store_dword v250, v251, s[98:99]
        s_mov_b64 exec, s[100:101]
        @cond_end
        DBG_k1_1:
        """)
    a.stamp(7); a.stamp(15)
    a.dump_stamps(WS_ST)
    a("s_endpgm")
    a("K1_helper:")
    a("s_mov_b32 s45, s14")
    a.stamp(0); a.stamp(14)
    a("s_barrier")
    for _ in range(HSLEEP): a("s_sleep 16")
    if NOHELP: a("s_cmp_ge_u32 s2, 4\ns_cbranch_scc1 K1_done")
    a(f"""
    s_sub_u32 s14, s14, 4
    s_lshl_b32 s17, s2, 2
    s_add_u32 s17, s17, s14
    s_lshl_b32 s24, s14, 12
    s_add_u32 s24, s24, {K1_LDS_HELP}
    v_add_u32 v14, s24, v13
    v_lshrrev_b32 v5, 2, v3
    v_and_b32 v6, 3, v3
    v_lshlrev_b32 v6, 3, v6
    v_lshrrev_b32 v7, 1, v4
    v_lshl_add_u32 v7, v7, 3, v5
    v_lshl_add_u32 v7, v7, 6, v6
    v_and_b32 v8, 1, v4
    v_lshl_add_u32 v7, v8, 11, v7
    v_add_u32 v7, s24, v7
    v_lshrrev_b32 v9, 1, v4
    v_lshlrev_b32 v9, 4, v9
    v_lshl_add_u32 v9, v8, 2, v9
    v_add_u32 v9, v9, v5
    v_lshl_add_u32 v9, v9, 7, v6
    v_add_u32 v9, s24, v9
    v_lshrrev_b32 v10, 3, v2
    v_and_b32 v11, 7, v2
    v_lshlrev_b32 v11, 4, v11
    v_lshl_add_u32 v10, v10, 10, v11
    s_waitcnt lgkmcnt(0)
    s_cmp_ge_u32 s17, 16
    s_cbranch_scc1 K1_nofl
    @cond_begin
    s_lshl_b32 s26, s17, 10
    s_add_u32 s26, s26, {WS_FL}
    v_add_u32 v12, s26, v13
    v_mov_b32 v16, 0
    v_mov_b32 v17, 0
    v_mov_b32 v18, 0
    v_mov_b32 v19, 0
    global_store_dwordx4 v12, v[16:19], s[6:7]
    s_nop 1
    @cond_end
    K1_nofl:
    """)
    def down_load(sreg, rb, sd):
        a(f"""
        s_lshr_b32 s26, {sreg}, 3
        s_and_b32 s27, {sreg}, 7
        s_and_b32 s28, s26, 15
        s_mul_i32 s28, s28, 7
        s_lshr_b32 s29, s26, 4
        s_lshl_b32 s29, s29, 1
        s_add_u32 s28, s28, s29
        s_sub_u32 s29, s26, 48
        s_mul_i32 s29, s29, 14
        s_add_u32 s29, s29, 6            ; case C
        s_cmp_lt_u32 s26, 48
        s_cselect_b32 s28, s28, s29      ; tA
        s_cselect_b32 s29, 1, 7
        s_lshl_b32 s28, s28, 14
        s_lshl_b32 s29, s29, 14
        s_sub_u32 s29, s29, 0x2000
        s_lshl_b32 s35, s27, 7
        s_add_u32 s28, s28, s35
        v_add_u32 v12, s28, v10
        s_mul_i32 s28, s27, 224
        s_add_u32 s28, s28, s26
        s_lshl_b32 s28, s28, 10
        s_add_u32 s{sd}, s28, {WS_WD}
        """)
        for ins in range(4):
            a(f"global_load_dwordx4 {vr(rb+4*ins,4)}, v12, s[12:13]")
            if ins == 1: a("v_add_u32 v12, s29, v12")
            elif ins < 3: a("v_add_u32 v12, 0x2000, v12")
    def down_proc(rb, sd):
        for ins in range(4):
            a(f"ds_write_b128 v14, {vr(rb+4*ins,4)} offset:{ins*1024}")
        a(f"v_add_u32 v12, s{sd}, v13")
        a("s_waitcnt lgkmcnt(0)")
        for ct in range(4):
            a(f"ds_read_b64_tr_b16 v[{48+ct*4}:{49+ct*4}], v9 offset:{ct*32}")
            a(f"ds_read_b64_tr_b16 v[{50+ct*4}:{51+ct*4}], v9 offset:{ct*32 + 1024}")
        for ct in range(4):
            a(f"s_waitcnt lgkmcnt({6-2*ct})")
            a(f"global_store_dwordx4 v12, {vr(48+ct*4,4)}, s[6:7]")
            if ct < 3: a(f"v_add_u32 v12, {56*1024}, v12")
    a("""
    s_cmp_ge_u32 s17, 896
    s_cbranch_scc1 K1_hA_down
    """)
    a.cond_begin()
    a(f"""
    s_and_b32 s26, s17, 15
    s_lshr_b32 s27, s17, 4
    s_and_b32 s28, s26, 7
    s_lshl_b32 s28, s28, 5
    s_add_u32 s29, s28, 1
    s_sub_u32 s28, 511, s28
    s_cmp_lt_u32 s26, 8
    s_cselect_b32 s30, s29, s28
    s_cselect_b32 s31, 1, -1
    s_cselect_b32 s32, -1, 256
    s_lshl_b32 s33, s27, 6
    s_mov_b32 s34, 3584
    s_lshl_b32 s28, s27, 5
    s_add_u32 s28, s28, s26
    s_lshl_b32 s28, s28, 11
    s_add_u32 s40, s28, {WS_WUP}
    v_lshrrev_b32 v11, 2, v2
    v_and_b32 v15, 3, v2
    v_lshlrev_b32 v15, 4, v15
    """)
    for ins in range(2):
        a(f"""
        v_add_u32 v12, {16*ins}, v11
        v_mul_lo_u32 v12, v12, s31
        v_add_u32 v12, s30, v12
        v_cmp_ne_u32 vcc, s32, v12
        v_cndmask_b32 v12, 0, v12, vcc
        v_mul_lo_u32 v12, v12, s34
        v_add3_u32 v12, v12, s33, v15
        global_load_dwordx4 {vr(16+4*ins,4)}, v12, s[8:9]
        global_load_dwordx4 {vr(24+4*ins,4)}, v12, s[10:11]
        """)
    a("s_branch K1_hA_go")
    a.cond_end()
    a("K1_hA_down:")
    a.cond_begin()
    a("s_sub_u32 s25, s17, 896")
    down_load("s25", 16, 40)
    a.cond_end()
    a("K1_hA_go:")
    a("""
    s_cmp_ge_u32 s17, 320
    s_cbranch_scc1 K1_hB_skip
    """)
    a.cond_begin()
    a("s_add_u32 s25, s17, 128")
    down_load("s25", 32, 41)
    a.cond_end()
    a("K1_hB_skip:")
    a.stamp(1)
    a("s_waitcnt vmcnt(0)")
    a.stamp(2)
    a("""
    s_cmp_ge_u32 s17, 896
    s_cbranch_scc1 K1_hA_down2
    """)
    a.cond_begin()
    for ins in range(4):
        a(f"ds_write_b128 v14, {vr(16+4*ins,4)} offset:{ins*1024}")
    a("v_add_u32 v12, s40, v13")
    a("s_waitcnt lgkmcnt(0)")
    idx = 0
    for Pp in range(2):
        for aa in range(2):
            a(f"ds_read_b64_tr_b16 v[{48+idx*4}:{49+idx*4}], v7 offset:{aa*256 + Pp*32}")
            a(f"ds_read_b64_tr_b16 v[{50+idx*4}:{51+idx*4}], v7 offset:{aa*256 + Pp*32 + 1024}")
            idx += 1
    idx = 0
    for Pp in range(2):
        for aa in range(2):
            a(f"s_waitcnt lgkmcnt({6-2*idx})")
            a(f"global_store_dwordx4 v12, {vr(48+idx*4,4)}, s[6:7] offset:{aa*1024}")
            idx += 1
        if Pp == 0: a("v_add_u32 v12, 0x8000, v12")
    a("s_branch K1_hA_go2")
    a.cond_end()
    a("K1_hA_down2:")
    a.cond_begin()
    down_proc(16, 40)
    a.cond_end()
    a("K1_hA_go2:")
    a("""
    s_cmp_ge_u32 s17, 320
    s_cbranch_scc1 K1_hend
    s_nop 1
    """)
    a.cond_begin()
    down_proc(32, 41)
    a.cond_end()
    a("K1_hend:")
    a.stamp(3)
    if STAMPS: a("s_waitcnt vmcnt(0)")
    for k in range(4, 8): a.stamp(k)
    a.stamp(15)
    a.dump_stamps(WS_ST, wave="s45")
    a("K1_done:")
    a("s_endpgm")
    txt = a.finalize()
    if K1SC:
        out = []
        inh = False
        for l in txt.split("\n"):
            if l.startswith("K1_helper:"): inh = True
            if inh and l.strip().startswith("global_store") and "sc1" not in l:
                l = l.split(";")[0].rstrip() + (" sc1" if K1SC == 1 else " nt" if K1SC == 2 else " sc0 sc1")
            out.append(l)
        txt = "\n".join(out)
    return txt

K2_LDS = 163840
REG = 40960


def arrive(name, off):
    return f"""s_lshl_b32 s22, s15, 10
    s_lshl_b32 s23, s16, 4
    s_add_u32 s22, s22, s23
    s_lshl_b32 s23, s14, 2
    s_add_u32 s22, s22, s23
    s_add_u32 s22, s22, {WS_FL + off}
    v_mov_b32 v27, s22
    v_mov_b32 v28, 1
    s_mov_b64 s[36:37], exec
    s_mov_b64 exec, 1
    global_store_dword v27, v28, s[6:7] sc1
    s_mov_b64 exec, s[36:37]"""
def poll_issue(name, off):
    return f"""s_lshl_b32 s22, s15, 10
    s_add_u32 s22, s22, {WS_FL + off}
    v_lshl_add_u32 v30, v2, 2, s22
    global_load_dword v29, v30, s[6:7] sc1 ;@tag=fl{name}"""
def poll_check(name, off):
    return [f"@waitv fl{name}", f"""v_cmp_eq_u32 vcc, 1, v29
    s_cmp_eq_u64 vcc, exec
    s_cbranch_scc1 KD_ready{name}
    @cond_begin
    s_mov_b32 s23, 0
    KD_poll{name}:
    global_load_dword v29, v30, s[6:7] sc1
    s_waitcnt vmcnt(0)
    v_cmp_eq_u32 vcc, 1, v29
    s_add_u32 s23, s23, 1
    s_cmp_eq_u64 vcc, exec
    s_cbranch_scc1 KD_ready{name}
    s_cmp_lt_u32 s23, 0x4000
    s_cbranch_scc1 KD_poll{name}
    @cond_end
    KD_ready{name}:"""]

KD_STG = 32768
def phaseD_setup(WD3):
    SEL = lambda x: 104 + x*4
    o = []
    o.append(f"""s_and_b32 s22, s16, 1
    s_lshl_b32 s22, s22, 1
    s_lshl_b32 s23, s15, 2
    s_add_u32 s46, s22, s23
    s_sub_u32 s47, 128, s46
    s_cmp_eq_u32 s46, 0
    s_cselect_b32 s47, 64, s47
    s_add_u32 s48, s46, 1
    s_sub_u32 s49, 128, s48
    s_cmp_eq_u32 s14, 1
    s_cselect_b32 s50, s47, s46
    s_cmp_eq_u32 s14, 2
    s_cselect_b32 s50, s48, s50
    s_cmp_eq_u32 s14, 3
    s_cselect_b32 s50, s49, s50
    s_mul_i32 s22, s50, 57344
    s_add_u32 s22, s22, {WS_HH}
    v_add_u32 v7, s22, v5
    s_add_u32 s24, s6, 4096
    s_addc_u32 s25, s7, 0""")
    o.append(f"""s_lshr_b32 s30, s61, 1
    s_lshl_b32 s31, s61, 4
    s_sub_u32 s32, 496, s31
    s_lshr_b32 s32, s32, 5
    s_add_u32 s32, s32, 8
    s_cmp_lt_u32 s61, 16
    s_cselect_b32 s30, s30, s32
    s_sub_u32 s33, s30, 1
    s_cmp_eq_u32 s61, 0
    s_cselect_b32 s33, 15, s33
    s_cmp_eq_u32 s61, 16
    s_cselect_b32 s33, 7, s33
    s_max_i32 s33, s33, 0
    s_and_b32 s34, s61, 1
    s_cmp_gt_u32 s61, 16
    s_cselect_b32 s34, 1, s34
    s_lshl_b32 s52, s30, 10
    s_add_u32 s52, s52, {WS_HC}
    v_add_u32 v14, s52, v5
    s_lshl_b32 s52, s33, 10
    s_add_u32 s52, s52, {WS_HC}
    v_add_u32 v15, s52, v5""")
    o += L(f"""
    v_lshlrev_b32 v6, 2, v3
    v_add_u32 v6, {WS_MT}, v6
    v_lshlrev_b32 v12, 17, v3
    v_mov_b32 v13, s61
    v_lshl_add_u32 v12, v13, 5, v12
    v_lshl_add_u32 v12, v4, 3, v12
    v_add_u32 v16, s31, v3
    v_mov_b32 v23, 0x3f80
    """)
    for x, sk in ((0, 30), (1, 33)):
        o.append(f"""s_and_b32 s52, s{sk}, 7
        s_lshl_b32 s52, s52, 5
        s_sub_u32 s56, -1, s52
        s_sub_u32 s57, 511, s52
        s_cmp_lt_u32 s{sk}, 8
        s_cselect_b32 s56, s56, s57
        s_cselect_b32 s57, 1, -1
        s_cmp_eq_u32 s{sk}, 15
        s_cselect_b32 s58, 0, -1
        s_cselect_b32 s59, 256, -1""")
        o += L(f"""
        v_mul_lo_u32 v17, v16, s57
        v_add_u32 v17, s56, v17
        v_cmp_eq_u32 vcc, s59, v16
        v_cndmask_b32 v17, v17, -1, vcc
        v_cmp_eq_u32 vcc, s58, v16
        v_cndmask_b32 v17, v17, 31, vcc
        """)
        if x == 1:
            o.append("""s_cmp_eq_u32 s34, 1
            s_cselect_b32 s52, -1, 0
            v_or_b32 v17, s52, v17""")
        o += L(f"""
        v_bfe_u32 v18, v17, 2, 2
        v_cmp_eq_u32 vcc, v18, v4
        v_cndmask_b32 v17, -1, v17, vcc
        v_lshrrev_b32 v18, 4, v17
        v_lshlrev_b32 v18, 1, v18
        v_bfe_u32 v19, v17, 1, 1
        v_add_u32 v18, v18, v19
        v_and_b32 v19, 1, v17
        v_lshlrev_b32 v19, 4, v19
        v_lshlrev_b32 v19, v19, v23
        """)
        for jj in range(4):
            o.append(f"v_cmp_eq_u32 vcc, {jj}, v18")
            o.append(f"v_cndmask_b32 v{SEL(x)+jj}, 0, v19, vcc")
    return o

QD = [2, 1, 3, 4, 0, 2, 1]
def d_items(sg):
    l = []
    for k in range(8):
        tag = f" ;@tag=s{sg}" if k == 7 else ""
        x = []
        x.append(f"s_add_u32 m0, s21, {QD[sg]*8192 + (k & 4)*1024}")
        x.append(f"global_load_lds_dwordx4 v7, {'s[6:7]' if k < 4 else 's[24:25]'} offset:{(k&3)*1024} sc1{tag}")
        if k == 7: x.append("v_add_u32 v7, 0x2000, v7")
        l.append("\n".join(x))
    return l

def phaseD(a, ep6, wd_rest, WD3, su):
    HB = lambda s: 128 + s*4
    ACC = lambda k: 160 + k*4
    HC = lambda k, x: 176 + (k*2 + x)*4
    SEL = lambda x: 104 + x*4
    MT = 216
    a(weave(ep6, wd_rest))
    if FINE: a.stamp(2)
    a(poll_check("B", 256))
    if FINE: a.stamp(3)
    if su: a(su)
    if FINE: a.stamp(4)
    a("@waitv hh5")
    a(arrive("C", 512))
    a.stamp(5 if FINE else 8)
    hcl = []
    for k in range(4):
        hcl.append(f"s_lshl_b32 s22, s{46+k}, 14\nv_add_u32 v17, s22, v14\nglobal_load_dwordx4 {vr(HC(k,0),4)}, v17, s[6:7] sc1\nv_add_u32 v17, s22, v15\nglobal_load_dwordx4 {vr(HC(k,1),4)}, v17, s[6:7] sc1")
        hcl.append(f"s_lshl_b32 s22, s{46+k}, 6\nv_add_u32 v17, s22, v6\nglobal_load_dword v{MT+k}, v17, s[6:7] sc1")
    def rd(slot, sg, k, tile):
        return f"ds_read_b128 {vr(HB(slot),4)}, v{32+tile} offset:{QD[sg]*8192 + k*1024}"
    for sg in range(7):
        a(f"@waitv s{sg}" + (",wd" if sg == 0 else ""))
        a("s_barrier")
        if FINE: a.stamp(6 + sg)
        elif sg in (0, 2, 4): a.stamp(9 + sg//2)
        seq = [(k, t) for k in range(8) for t in range(4)]
        main = [rd(x & 7, sg, *seq[x]) for x in range(6)]
        for x, (k, t) in enumerate(seq):
            if x + 6 < 32:
                main.append(rd((x+6) & 7, sg, *seq[x+6])); main.append("s_waitcnt lgkmcnt(6)")
            else:
                main.append(f"s_waitcnt lgkmcnt({31-x})")
            c = "0" if (sg == 0 and k == 0) else vr(ACC(t),4)
            main.append(f"{MF16} {vr(ACC(t),4)}, {ar(WD3(sg*8+k),4)}, {vr(HB(x&7),4)}, {c}")
        fill = []
        if sg == 0: fill = d_items(2) + d_items(3)[:4] + ["@waitv hh6", arrive("D", 768)]
        if sg == 1: fill = d_items(3)[4:] + [poll_issue("C", 512)] + hcl
        if sg == 2: fill = poll_check("C", 512) + d_items(4) + [poll_issue("D", 768)] + d_items(5)
        if sg == 3: fill = ["s_nop 0"]*16 + poll_check("D", 768) + d_items(6)
        a(interleave(main, fill))
        if sg == 4:
            for x in range(2):
                for t in range(4):
                    a(f"{MF16} {vr(ACC(t),4)}, {vr(SEL(x),4)}, {vr(HC(t,x),4)}, {vr(ACC(t),4)}")
    if not FINE: a.stamp(12)
    for k in range(4):
        a(f"s_lshl_b32 s22, s{46+k}, 10")
        a(f"v_add_u32 v{220+k}, s22, v12")
        for r in range(4):
            a(f"v_add_f32 v{ACC(k)+r}, v{MT+k}, v{ACC(k)+r}")
        a(f"v_cvt_pk_bf16_f32 v{224+2*k}, v{ACC(k)}, v{ACC(k)+1}")
        a(f"v_cvt_pk_bf16_f32 v{225+2*k}, v{ACC(k)+2}, v{ACC(k)+3}")
        a(f"global_store_dwordx2 v{220+k}, v[{224+2*k}:{225+2*k}], s[8:9]")

def gen_k2():
    a = Asm(); a.stamps = STAMPS
    H = lambda rho, k: 128 + (rho*16 + k)*4
    XF = lambda rho, k: (rho*16 + k)*4
    T = lambda rho, d: 32 + (rho*2 + d)*4
    SEL = lambda d, tb: 48 + (d*2 + tb)*4
    NEGM = lambda rho: 64 + rho*4
    ACC = lambda s, tb: 72 + (s*2 + tb)*4
    TP = lambda rho, d: 104 + (rho*2 + d)*4
    VA = lambda s, tb: 128 + (s*2 + tb)*4
    WF = lambda s: 160 + s*4
    VW = [8, 9, 25, 26]
    SC = "sc1" if FUSE else ""
    def WD3(k):
        return 4*k if k < 32 else (128 + 4*(k-32) if k < 40 else 192 + 4*(k-40))
    a(f"""
    s_cmp_ge_u32 s2, 256
    s_cbranch_scc1 K2_done
    s_load_dwordx2 s[6:7], s[0:1], 88
    s_load_dwordx4 s[8:11], s[0:1], 72
    v_lshrrev_b32 v1, 6, v0
    v_and_b32 v2, 63, v0
    v_readfirstlane_b32 s14, v1
    v_and_b32 v3, 15, v2
    v_lshrrev_b32 v4, 4, v2
    v_lshlrev_b32 v5, 4, v2
    s_and_b32 s15, s2, 3
    s_lshl_b32 s15, s15, 2
    s_bfe_u32 s16, s2, 0x20003
    s_add_u32 s15, s15, s16          ; j
    s_bfe_u32 s16, s2, 0x10002
    s_lshl_b32 s16, s16, 3
    s_lshr_b32 s17, s2, 5
    s_add_u32 s16, s16, s17          ; n
    s_lshl_b32 s17, s15, 2
    s_add_u32 s17, s17, s14          ; a0
    s_sub_u32 s18, 128, s17
    s_cmp_eq_u32 s17, 0
    s_cselect_b32 s18, 64, s18       ; a1
    s_cselect_b32 s19, 0, 16384
    s_cselect_b32 s20, 16384, 0
    s_mul_i32 s21, s14, {REG}
    s_lshl_b32 s22, s17, 14
    s_lshl_b32 s23, s18, 14
    v_add_u32 v6, s22, v5
    v_add_u32 v7, s23, v5
    v_add_u32 v12, {WS_XP}, v6
    v_add_u32 v13, {WS_XP}, v7
    s_lshl_b32 s22, s17, 6
    s_lshl_b32 s23, s18, 6
    s_add_u32 s22, s22, {WS_MX}
    s_add_u32 s23, s23, {WS_MX}
    v_lshl_add_u32 v14, v3, 2, s22
    v_lshl_add_u32 v15, v3, 2, s23
    s_cmp_ge_u32 s16, 7
    s_cselect_b32 s53, 7, 0
    s_sub_u32 s53, s16, s53
    s_cmp_ge_u32 s53, 7
    s_cselect_b32 s22, 7, 0
    s_sub_u32 s53, s53, s22
    s_cmp_ge_u32 s15, 7
    s_cselect_b32 s54, 7, 0
    s_sub_u32 s54, s15, s54
    s_cmp_ge_u32 s54, 7
    s_cselect_b32 s22, 7, 0
    s_sub_u32 s54, s54, s22
    """)
    if not ROT2: a("s_mov_b32 s53, 0")
    if not ROTP: a("s_mov_b32 s54, 0")
    for i in range(7):
        a(f"""
        s_add_u32 s{46+i}, s53, {i}
        s_cmp_ge_u32 s{46+i}, 7
        s_cselect_b32 s22, 7, 0
        s_sub_u32 s{46+i}, s{46+i}, s22
        s_lshl_b32 s{46+i}, s{46+i}, 11
        """)
    a("""
    s_waitcnt lgkmcnt(0)
    s_add_u32 s26, s6, 8192
    s_addc_u32 s27, s7, 0
    s_add_u32 s28, s6, 12288
    s_addc_u32 s29, s7, 0
    """)
    if DBG:
        a("""
        s_memrealtime s[96:97]
        s_load_dwordx2 s[98:99], s[0:1], 80
        s_waitcnt lgkmcnt(0)
        s_and_b32 s100, s2, 0x3f
        s_cmp_lg_u32 s100, 0
        s_cbranch_scc1 DBG_k2_2
        @cond_begin
        s_lshr_b32 s100, s2, 6
        s_lshl_b32 s100, s100, 4
        s_add_u32 s100, s100, 8
        v_mov_b32 v250, s100
        v_mov_b32 v251, s96
        s_mov_b64 s[100:101], exec
        s_mov_b64 exec, 1
        global_store_dword v250, v251, s[98:99]
        s_mov_b64 exec, s[100:101]
        @cond_end
        DBG_k2_2:
        """)
    a.stamp(0); a.stamp(14)
    for sel in range(2):
        a(f"s_add_u32 m0, s21, {sel*16384 + 12288}")
        a(f"global_load_lds_dwordx4 v{6+sel}, s[28:29] offset:3072")
    a("""
    global_load_dword v16, v14, s[6:7]
    global_load_dword v18, v15, s[6:7]
    global_load_dword v17, v14, s[26:27]
    global_load_dword v19, v15, s[26:27] ;@tag=first
    """)
    pair_items = []
    for i in range(8):
        it = []
        if i < 7:
            for sel in range(2):
                for tb in range(2):
                    x = []
                    if tb == 0: x.append(f"v_add_u32 v{252+sel}, s{46+i}, v{6+sel}")
                    x += [f"s_add_u32 m0, s21, {sel*16384 + 2*i*1024}",
                          f"global_load_lds_dwordx4 v{252+sel}, s[6:7] offset:{tb*1024}"]
                    it.append(x)
            for rho in range(2):
                for d in range(2):
                    x = []
                    if d == 0: x.append(f"v_add_u32 v{254+rho}, s{46+i}, v{12+rho}")
                    tag = f" ;@tag=p{i}" if (d == 1 and rho == 1) else ""
                    x.append(f"global_load_dwordx4 {ar(XF(rho,i+8*d),4)}, v{254+rho}, s[6:7] offset:{d*1024}{tag}")
                    it.append(x)
        else:
            for sel in range(2):
                it.append([f"s_add_u32 m0, s21, {sel*16384 + 12288}", f"global_load_lds_dwordx4 v{6+sel}, s[28:29] offset:2048"])
            for rho in range(2):
                for d in range(2):
                    tag = f" ;@tag=p{i}" if (d == 1 and rho == 1) else ""
                    it.append([f"global_load_dwordx4 {ar(XF(rho,i+8*d),4)}, v{12+rho}, s[28:29] offset:{2048+d*1024}{tag}"])
        pair_items.append(it)
    for it in pair_items[0]: a(it)
    QB = [4, 0, 2, 1, 3, 4, 0]
    def wdma_items(p):
        l = []
        for k in range(4):
            for aa in range(2):
                tag = f" ;@tag=w{p}" if (k == 3 and aa == 1) else ""
                x = [f"s_add_u32 m0, s21, {QB[p]*8192 + 2*k*1024}",
                     f"global_load_lds_dwordx4 v{VW[k]}, s[6:7] offset:{aa*1024}{tag}"]
                if aa == 1:
                    if k == 0:
                        x.append(f"s_cmp_eq_u32 s54, {6-p}\ns_cselect_b32 s55, -6, 1\ns_lshl_b32 s55, s55, 15")
                    x.append(f"v_add_u32 v{VW[k]}, s55, v{VW[k]}")
                l.append(x)
        return l
    if not FINE: a.stamp(1)
    su = L(f"""
    v_mov_b32 v127, 0x3f80
    v_lshlrev_b32 v8, 7, v3
    v_add_u32 v9, s18, v8
    v_add_u32 v8, s17, v8
    s_mov_b32 s32, 0xffff0000
    s_mov_b32 s33, 0xffff0000
    v_lshlrev_b32 v25, 2, v4
    v_cvt_f32_u32 v25, v25
    v_mov_b32 v26, 0x80008000
    """)
    for rho in range(2):
        su += L(f"""
        v_cvt_f32_u32 v27, v{8+rho}
        v_mul_f32 v27, {hx(1.0/2048)}, v27
        v_mul_f32 v28, v27, v25
        """)
        for r in range(4):
            su.append(f"v_cos_f32 v{72+r}, v28")
            su.append(f"v_sin_f32 v{76+r}, v28")
            if r < 3: su.append("v_add_f32 v28, v27, v28")
        for r in range(8): su.append(f"v_mul_f32 v{80+r}, 0.5, v{72+r}")
        su += L(f"""
        v_cvt_pk_bf16_f32 v88, v72, v73
        v_cvt_pk_bf16_f32 v89, v74, v75
        v_cvt_pk_bf16_f32 v90, v76, v77
        v_cvt_pk_bf16_f32 v91, v78, v79
        v_cvt_pk_bf16_f32 v92, v80, v81
        v_cvt_pk_bf16_f32 v93, v82, v83
        v_cvt_pk_bf16_f32 v94, v84, v85
        v_cvt_pk_bf16_f32 v95, v86, v87
        v_xor_b32 v96, v26, v90
        v_xor_b32 v97, v26, v91
        v_xor_b32 v98, v26, v94
        v_xor_b32 v99, v26, v95
        """)
        for dst, c0, c1 in ((TP(rho,0), 98, 92), (TP(rho,1), 94, 92), (T(rho,0), 88, 90), (T(rho,1), 88, 96)):
            for k in range(2):
                su.append(f"v_cndmask_b32 v{dst+k}, v{c0+k}, v{c1+k}, s[32:33]")
                su.append(f"v_cndmask_b32 v{dst+2+k}, v{c1+k}, v{c0+k}, s[32:33]")
    su += L(f"""
    v_lshrrev_b32 v27, 2, v3
    v_lshl_add_u32 v27, v4, 2, v27
    v_lshlrev_b32 v27, 6, v27
    v_and_b32 v28, 3, v3
    v_lshl_add_u32 v27, v28, 4, v27
    v_and_b32 v28, 1, v4
    v_lshl_add_u32 v27, v28, 3, v27
    v_add_u32 v120, s21, v27
    v_xor_b32 v121, 8, v120
    v_add_u32 v122, s19, v120
    v_add_u32 v123, s19, v121
    v_add_u32 v124, s20, v120
    v_add_u32 v125, s20, v121
    v_add_u32 v27, 48, v3
    v_lshlrev_b32 v126, 2, v27
    """)
    a(weave(su, pair_items[1] + pair_items[2]))
    def trread(dst, rho, d, g_):
        if d == 0: b0, b1, off = 120, 121, rho*16384 + g_*1024
        else: b0, b1, off = 122+2*rho, 123+2*rho, g_*1024
        return [f"ds_read_b64_tr_b16 {ar(dst,2)}, v{b0} offset:{off}", f"ds_read_b64_tr_b16 {ar(dst+2,2)}, v{b1} offset:{off}"]
    if not FINE: a.stamp(2)
    a("@waitv first")
    for rho in range(2):
        a(trread(VA(2+rho,0), rho, 0, 15)); a(trread(VA(2+rho,1), rho, 1, 15))
    se = L(f"""
    v_lshlrev_b32 v27, 3, v4
    v_sub_u32 v28, v3, v27
    v_sub_u32 v29, 0, v3
    v_sub_u32 v29, v29, v27
    """)
    for (d, tb, src, add) in ((0,0,28,0), (0,1,28,16), (1,0,29,31), (1,1,29,15)):
        se += L(f"""
        v_add_u32 v30, {add}, v{src}
        v_and_b32 v31, 1, v30
        v_lshlrev_b32 v31, 4, v31
        v_lshlrev_b32 v31, v31, v127
        v_lshrrev_b32 v30, 1, v30
        """)
        for jj in range(4):
            se.append(f"v_cmp_eq_u32 s[{56+2*(jj&1)}:{57+2*(jj&1)}], {jj}, v30\nv_cmp_eq_u32 vcc, {jj}, v30" if False else f"v_cmp_eq_u32 s[{56+2*(jj&1)}:{57+2*(jj&1)}], {jj}, v30")
            if jj & 1:
                se.append(f"v_cndmask_b32 v{SEL(d,tb)+jj-1}, 0, v31, s[56:57]")
                se.append(f"v_cndmask_b32 v{SEL(d,tb)+jj}, 0, v31, s[58:59]")
    a(se[:20])
    a("s_waitcnt lgkmcnt(0)")
    for rho in range(2):
        a(f"{MF16} {vr(ACC(2+rho,0),4)}, {ar(VA(2+rho,0),4)}, {vr(TP(rho,0),4)}, 0")
    for rho in range(2):
        a(f"{MF16} {vr(ACC(2+rho,0),4)}, {ar(VA(2+rho,1),4)}, {vr(TP(rho,1),4)}, {vr(ACC(2+rho,0),4)}")
    a(se[20:38])
    for rho in range(2):
        a(f"ds_bpermute_b32 v{22+rho}, v126, v{ACC(2+rho,0)+3}")
    a(se[38:])
    a(f"""
    s_mul_i32 s42, s16, 7
    s_add_u32 s30, s42, s54
    s_lshl_b32 s30, s30, 15
    s_add_u32 s30, s30, {WS_WUP}
    """)
    for k in range(4):
        a(f"""
        s_lshl_b32 s22, s14, 2
        s_add_u32 s22, s22, {k}
        s_and_b32 s23, s22, 7
        s_add_u32 s31, s23, s53
        s_cmp_ge_u32 s31, 7
        s_cselect_b32 s55, 7, 0
        s_sub_u32 s31, s31, s55
        s_cmp_eq_u32 s23, 7
        s_cselect_b32 s31, 7, s31
        s_and_b32 s22, s22, 8
        s_add_u32 s31, s31, s22
        s_lshl_b32 s31, s31, 11
        s_add_u32 s31, s31, s30
        v_add_u32 v{VW[k]}, s31, v5
        """)
    a(f"""
    s_and_b32 s22, s16, 7
    s_sub_u32 s23, s22, s53
    s_add_u32 s31, s23, 7
    s_cmp_lt_i32 s23, 0
    s_cselect_b32 s23, s31, s23
    s_cmp_eq_u32 s22, 7
    s_cselect_b32 s23, 7, s23
    s_and_b32 s22, s16, 8
    s_add_u32 s60, s23, s22
    s_lshl_b32 s22, s16, 10
    s_add_u32 s22, s22, {WS_HC}
    v_mov_b32 v27, s17
    v_mov_b32 v28, s18
    v_cndmask_b32 v27, v27, v28, s[32:33]
    v_lshrrev_b32 v28, 1, v4
    v_lshlrev_b32 v10, 14, v27
    v_lshl_add_u32 v10, v28, 9, v10
    v_lshl_add_u32 v10, v3, 4, v10
    v_add_u32 v10, s22, v10
    s_mov_b32 s36, 57344
    v_mul_lo_u32 v11, v27, s36
    v_lshl_add_u32 v11, v28, 8, v11
    v_lshl_add_u32 v11, v3, 4, v11
    s_mov_b32 s34, 0
    s_mov_b32 s35, 0xffff0000
    s_waitcnt lgkmcnt(0)
    """)
    for rho in range(2):
        a(f"v_add_f32 v{16+2*rho}, v{16+2*rho}, v{22+rho}")
        for r in range(4):
            a(f"v_sub_f32 v{NEGM(rho)+r}, 0, v{16+2*rho}")
    for r in range(20, 24): a(f"v_mov_b32 v{r}, 0")
    mt_store = f"""s_cmp_eq_u32 s16, 0
    s_cbranch_scc0 K2_nomt
    @cond_begin
    v_add_u32 v14, {WS_MT - WS_MX}, v14
    v_add_u32 v15, {WS_MT - WS_MX}, v15
    s_mov_b64 s[36:37], exec
    s_mov_b64 exec, 0xffff
    global_store_dword v14, v16, s[6:7] {SC}
    global_store_dword v15, v18, s[6:7] {SC}
    s_mov_b64 exec, s[36:37]
    @cond_end
    K2_nomt:"""
    groups = [(i, d) for i in range(8) for d in range(2)]
    def reads(gi):
        i, d = groups[gi]
        o = []
        if d == 0: o.append(f"@waitv p{i}")
        for rho in range(2):
            s = (gi & 1)*2 + rho
            o += trread(VA(s, 0), rho, d, 2*i) + trread(VA(s, 1), rho, d, 2*i+1)
        return o
    def mm(gi):
        i, d = groups[gi]
        kap = i + 8*d
        o = []
        for rho in range(2):
            s = (gi & 1)*2 + rho
            for tb in range(2):
                o.append(f"{MF16} {vr(ACC(s,tb),4)}, {ar(VA(s,tb),4)}, {vr(T(rho,d),4)}, {vr(NEGM(rho),4)}")
        for rho in range(2):
            s = (gi & 1)*2 + rho
            for tb in range(2):
                o.append(f"{MF16} {vr(ACC(s,tb),4)}, {vr(SEL(d,tb),4)}, {ar(XF(rho,kap),4)}, {vr(ACC(s,tb),4)}")
        return o
    def post(gi):
        i, d = groups[gi]
        kap = i + 8*d
        o = []
        for rho in range(2):
            s = (gi & 1)*2 + rho
            h = H(rho, kap)
            for tb in range(2):
                o.append(f"v_cvt_pk_bf16_f32 v{h+2*tb}, v{ACC(s,tb)}, v{ACC(s,tb)+1}")
                o.append(f"v_cvt_pk_bf16_f32 v{h+2*tb+1}, v{ACC(s,tb)+2}, v{ACC(s,tb)+3}")
        h0 = H(0, kap); h = H(1, kap)
        if GRAM:
            for rho in range(2):
                hh_ = vr(H(rho, kap), 4); gacc = vr(112+4*rho, 4)
                o.append(f"{MF16} {gacc}, {hh_}, {hh_}, {'0' if gi == 0 else gacc} ")
        for k in range(4): o.append(f"v_permlane16_swap_b32 v{h0+k}, v{h+k}")
        if DOTS_IN_C and not GRAM:
            for k in range(4):
                o.append(f"v_dot2c_f32_bf16 v{20+(k&1)}, v{h0+k}, v{h0+k}")
                o.append(f"v_dot2c_f32_bf16 v{22+(k&1)}, v{h+k}, v{h+k}")
        o.append(f"""s_cmp_eq_u32 s60, {kap}
        s_cbranch_scc0 K2_nh{kap}
        @cond_begin
        global_store_dwordx4 v10, {vr(h0,4)}, s[6:7] {SC}
        global_store_dwordx4 v10, {vr(h,4)}, s[6:7] offset:256 {SC}
        @cond_end
        K2_nh{kap}:""")
        return o
    def fix(rho):
        F = ACC(rho, 1) + 3; M = ACC(2+rho, 1) + 3
        return L(f"""
        v_add_f32 v27, v{F}, v{M}
        v_mul_f32 v27, 0.5, v27
        v_sub_f32 v28, v{17+2*rho}, v{16+2*rho}
        v_cndmask_b32 v{F}, v{F}, v27, s[34:35]
        v_cndmask_b32 v{M}, v{M}, v28, s[34:35]
        """)
    if not FINE: a.stamp(3)
    a(reads(0))
    extra = {0: pair_items[3] + pair_items[4][:4], 1: pair_items[4][4:] + pair_items[5], 2: pair_items[6], 3: pair_items[7],
             4: [], 5: wdma_items(0), 6: [], 7: wdma_items(1)}
    for i in range(8):
        seq = []
        for gi in (2*i, 2*i+1):
            if gi + 1 < 16:
                seq += reads(gi+1); seq.append("s_waitcnt lgkmcnt(8)")
            else: seq.append("s_waitcnt lgkmcnt(0)")
            m_ = mm(gi)
            fill = post(gi-1) if 1 <= gi <= 14 else []
            seq += m_[:2] + interleave(m_[2:], fill)
        if i == 0: seq.append(mt_store)
        a(weave(seq, extra[i]))
    a(fix(0)); a(fix(1))
    a(post(14)); a(post(15))
    if not FINE: a.stamp(4)
    for k in range(4): a(f"v_add_u32 v{32+k}, {k*REG}, v5")
    wd_items = []
    if FUSE:
        a(f"""
        s_lshr_b32 s22, s16, 1
        s_lshl_b32 s22, s22, 2
        s_add_u32 s61, s22, s14          ; nu
        s_mul_i32 s22, s61, {56*1024}
        s_add_u32 s22, s22, {WS_WD}
        v_add_u32 v24, s22, v5
        """)
        for k in range(56):
            x = f"global_load_dwordx4 {ar(WD3(k),4)}, v24, s[6:7] offset:{(k&3)*1024}"
            if k == 55: x += " ;@tag=wd"
            if (k & 3) == 3: x += "\nv_add_u32 v24, 0x1000, v24"
            wd_items.append([x])
    dsu = phaseD_setup(WD3)
    dots = []
    for kap in range(16):
        for k in range(4):
            dots.append(f"v_dot2c_f32_bf16 v{20+(k&1)}, v{H(0,kap)+k}, v{H(0,kap)+k}")
            dots.append(f"v_dot2c_f32_bf16 v{22+(k&1)}, v{H(1,kap)+k}, v{H(1,kap)+k}")
    if GRAM:
        stats = L(f"""
        v_and_b32 v27, 3, v3
        v_cmp_eq_u32 s[56:57], 1, v27
        v_cmp_eq_u32 s[58:59], 2, v27
        v_cmp_eq_u32 vcc, 3, v27
        v_cndmask_b32 v20, v112, v113, s[56:57]
        v_cndmask_b32 v22, v116, v117, s[56:57]
        v_cndmask_b32 v20, v20, v114, s[58:59]
        v_cndmask_b32 v22, v22, v118, s[58:59]
        v_cndmask_b32 v20, v20, v115, vcc
        v_cndmask_b32 v22, v22, v119, vcc
        v_lshrrev_b32 v27, 2, v3
        v_lshl_add_u32 v27, v27, 4, v3
        v_lshlrev_b32 v27, 2, v27
        ds_bpermute_b32 v21, v27, v20
        ds_bpermute_b32 v23, v27, v22
        s_mov_b32 s38, {hx(1.0/512)}
        v_mov_b32 v27, {hx(1e-5)}
        s_waitcnt lgkmcnt(0)
        v_cndmask_b32 v20, v21, v23, s[32:33]
        v_fma_f32 v20, v20, s38, v27
        v_rsq_f32 v20, v20
        v_mul_f32 v21, {hx(-math.log2(math.e))}, v20
        """)
        a(stats); stats = []
    else:
        stats = L(f"""
        v_add_f32 v20, v20, v21
        v_add_f32 v22, v22, v23
        v_add_f32 v20, v20, v22
        v_mov_b32 v21, v20
        v_permlane32_swap_b32 v20, v21
        v_add_f32 v20, v20, v21
        s_mov_b32 s38, {hx(1.0/512)}
        v_mov_b32 v27, {hx(1e-5)}
        v_fma_f32 v20, v20, s38, v27
        v_rsq_f32 v20, v20
        v_mul_f32 v21, {hx(-math.log2(math.e))}, v20
        """)
    MACC = lambda st: 72 + st*16
    def wread(p, phi):
        return f"ds_read_b128 {ar(WF(phi & 7),4)}, v{32 + (phi>>3)} offset:{QB[p]*8192 + (phi&7)*1024}"
    def epilogue(p):
        st = p & 1
        if p < 6: off = f"s_lshl_b32 s44, s16, 10\ns_add_u32 s44, s44, {WS_HH + (p>>1)*16*1024 + (p&1)*512}"
        else:     off = f"s_lshl_b32 s44, s16, 9\ns_add_u32 s44, s44, {WS_HH + 48*1024}"
        f = [off + "\ns_add_u32 s40, s6, s44\ns_addc_u32 s41, s7, 0"]
        m = MACC(st)
        for r in range(8): f.append(f"v_mul_f32 v{40+r}, v21, v{m+r}")
        for r in range(8):
            f.append(f"v_exp_f32 v{40+r}, v{40+r}")
            f.append(f"v_mul_f32 v{48+r}, v20, v{m+8+r}")
        for r in range(8): f.append(f"v_add_f32 v{40+r}, 1.0, v{40+r}")
        for r in range(8): f.append(f"v_rcp_f32 v{40+r}, v{40+r}")
        for r in range(8): f.append(f"v_mul_f32 v{40+r}, v{40+r}, v{48+r}")
        for r in range(4): f.append(f"v_cvt_pk_bf16_f32 v{56+r}, v{40+2*r}, v{41+2*r}")
        f.append(f"global_store_dwordx4 v11, v[56:59], s[40:41] {SC} ;@tag=hh{p}")
        return f
    PF = 6
    bar = {0: "w0", 1: "w1", 2: "w2,w3", 4: "w4,w5", 6: "w6"}
    for p in range(7):
        if p in bar:
            a(f"@waitv {bar[p]}")
            a("s_barrier")
            if p < 2 and not FINE: a.stamp(5+p)
            main = [wread(p, x) for x in range(PF)]
        else:
            main = []
        st = p & 1
        nxt_ok = (p+1 < 7) and (p+1 not in bar)
        for phi in range(32):
            kap, aa = phi >> 1, phi & 1
            if phi + PF < 32:
                main.append(wread(p, phi+PF)); main.append(f"s_waitcnt lgkmcnt({PF})")
            elif nxt_ok:
                main.append(wread(p+1, phi+PF-32)); main.append(f"s_waitcnt lgkmcnt({PF})")
            else:
                main.append(f"s_waitcnt lgkmcnt({31-phi})")
            c = "0" if phi == 0 else vr(MACC(st),16)
            main.append(f"{MF32} {vr(MACC(st),16)}, {ar(WF(phi&7),4)}, {vr(H(aa,kap),4)}, {c}")
        dm = []
        if p == 0: dm = wdma_items(2) + wdma_items(3)
        if p == 1: dm = wdma_items(4)
        if p == 2: dm = wdma_items(5)
        if p == 4: dm = wdma_items(6)
        dm = [[ "\n".join(x) ] for x in dm]
        if FUSE:
            mine = wd_items[p*WD_IN_MAIN:(p+1)*WD_IN_MAIN]
            dm = [[y] for y in weave([x[0] for x in dm], mine)] if dm else mine
        if DOTS_IN_C: dots = []
        if p == 0: body = dots[:96] + (stats if DOTS_IN_C else [])
        elif p == 1: body = dots[96:] + ([] if DOTS_IN_C else stats) + epilogue(0)
        else: body = epilogue(p-1)
        fl = weave(body, dm)
        if FUSE:
            def ins(lst, frac, items):
                k = int(len(lst)*frac)
                return lst[:k] + items + lst[k:]
            if p == 0: fl = weave(dsu, [[x] for x in fl]) if EARLY_SU else [dsu[0]] + fl
            if p == 3: fl = ins(fl, 0.5, ["@waitv hh1", arrive("A", 0)])
            if p == 5:
                fl = ins(fl, 0.5, ["@waitv hh3", arrive("B", 256)])
                fl = ins(fl, 0.3, [poll_issue("A", 0)])
            if p == 6:
                fl = poll_check("A", 0) + ins(weave(fl, [[x] for x in d_items(0) + d_items(1)]), 0.6, [poll_issue("B", 256)])
        a(interleave(main, fl))
    a.stamp(1 if FINE else 7)
    if not FUSE:
        a(epilogue(6))
    else:
        phaseD(a, epilogue(6), wd_items[7*WD_IN_MAIN:], WD3, [] if EARLY_SU else dsu[1:])
    if STAMPS: a("s_waitcnt vmcnt(0)")
    if DBG: a("s_waitcnt vmcnt(0)")
    if DBG:
        a("""
        s_memrealtime s[96:97]
        s_load_dwordx2 s[98:99], s[0:1], 80
        s_waitcnt lgkmcnt(0)
        s_and_b32 s100, s2, 0x3f
        s_cmp_lg_u32 s100, 0
        s_cbranch_scc1 DBG_k2_3
        @cond_begin
        s_lshr_b32 s100, s2, 6
        s_lshl_b32 s100, s100, 4
        s_add_u32 s100, s100, 12
        v_mov_b32 v250, s100
        v_mov_b32 v251, s96
        s_mov_b64 s[100:101], exec
        s_mov_b64 exec, 1
        global_store_dword v250, v251, s[98:99]
        s_mov_b64 exec, s[100:101]
        @cond_end
        DBG_k2_3:
        """)
    a.stamp(13); a.stamp(15)
    a.dump_stamps(WS_ST + (1 << 20))
    a("K2_done:")
    a("s_endpgm")
    return a.finalize()

K3_STG = 28672
K3_LDS = 5*K3_STG
def gen_k3():
    a = Asm(); a.stamps = STAMPS
    WD = lambda k3: k3*4
    HB = lambda s: 64 + s*4
    ACC = lambda k: 32 + k*4
    HC = lambda k, x: 96 + (k*2 + x)*4
    SEL = lambda x: 48 + x*4
    a(f"""
    s_cmp_ge_u32 s2, 256
    s_cbranch_scc1 K3_done
    s_load_dwordx2 s[4:5], s[0:1], 72
    s_load_dwordx2 s[6:7], s[0:1], 88
    v_lshrrev_b32 v1, 6, v0
    v_and_b32 v2, 63, v0
    v_readfirstlane_b32 s14, v1
    v_and_b32 v3, 15, v2
    v_lshrrev_b32 v4, 4, v2
    v_lshlrev_b32 v5, 4, v2
    s_and_b32 s15, s2, 7
    s_lshl_b32 s15, s15, 2
    s_bfe_u32 s16, s2, 0x20003
    s_add_u32 s15, s15, s16
    s_lshr_b32 s16, s2, 5
    s_lshl_b32 s17, s16, 2
    s_add_u32 s17, s17, s14          ; nu
    s_lshl_b32 s18, s15, 2           ; tt0
    s_add_u32 s19, s18, s14
    s_mul_i32 s20, s17, {56*1024}
    s_add_u32 s20, s20, {WS_WD}
    v_add_u32 v6, s20, v5
    s_mul_i32 s20, s19, 57344
    s_add_u32 s20, s20, {WS_HH}
    v_add_u32 v7, s20, v5
    s_mul_i32 s21, s14, 7168
    s_add_u32 s46, s15, s16
    s_and_b32 s46, s46, {7 if ROT3 else 0}            ; rot
    s_mul_i32 s20, s46, 7168
    v_add_u32 v6, s20, v6
    v_add_u32 v7, s20, v7
    s_waitcnt lgkmcnt(0)
    s_add_u32 s24, s6, 4096
    s_addc_u32 s25, s7, 0
    """)
    a.stamp(0); a.stamp(14)
    def items(sg):
        buf = (sg % 5)*K3_STG
        l = []
        for k in range(7):
            x = [f"s_add_u32 m0, s21, {buf + (k & 4)*1024}",
                 f"global_load_lds_dwordx4 v7, {'s[6:7]' if k < 4 else 's[24:25]'} offset:{(k&3)*1024}"]
            if k == 6:
                x.append(f"s_cmp_eq_u32 s46, {7-sg}\ns_cselect_b32 s47, -7, 1\ns_mul_i32 s47, s47, 7168\nv_add_u32 v7, s47, v7")
            l.append(x)
            tag = f" ;@tag=s{sg}" if k == 6 else ""
            x = [f"global_load_dwordx4 {ar(WD(sg*7+k),4)}, v6, {'s[6:7]' if k < 4 else 's[24:25]'} offset:{(k&3)*1024}{tag}"]
            if k == 6: x.append("v_add_u32 v6, s47, v6")
            l.append(x)
        return l
    for it in items(0): a(it)
    su = L(f"""
    v_lshlrev_b32 v8, 7, v3
    v_add_u32 v8, s18, v8
    v_lshlrev_b32 v9, 10, v8
    s_lshl_b32 s20, s17, 5
    v_add_u32 v9, s20, v9
    v_lshl_add_u32 v9, v4, 3, v9
    s_lshl_b32 s20, s18, 6
    s_add_u32 s20, s20, {WS_MT}
    v_lshl_add_u32 v11, v3, 2, s20
    """)
    su.append(f"""s_lshr_b32 s30, s17, 1
    s_lshl_b32 s31, s17, 4
    s_sub_u32 s32, 496, s31
    s_lshr_b32 s32, s32, 5
    s_add_u32 s32, s32, 8
    s_cmp_lt_u32 s17, 16
    s_cselect_b32 s30, s30, s32
    s_sub_u32 s33, s30, 1
    s_cmp_eq_u32 s17, 0
    s_cselect_b32 s33, 15, s33
    s_cmp_eq_u32 s17, 16
    s_cselect_b32 s33, 7, s33
    s_max_i32 s33, s33, 0
    s_and_b32 s34, s17, 1
    s_cmp_gt_u32 s17, 16
    s_cselect_b32 s34, 1, s34
    s_lshl_b32 s35, s18, 14
    s_add_u32 s35, s35, {WS_HC}
    s_lshl_b32 s36, s30, 10
    s_add_u32 s36, s36, s35
    v_add_u32 v14, s36, v5
    s_lshl_b32 s36, s33, 10
    s_add_u32 s36, s36, s35
    v_add_u32 v15, s36, v5""")
    su += L(f"""
    v_add_u32 v16, s31, v3
    v_mov_b32 v23, 0x3f80
    v_add_u32 v12, {2*K3_STG}, v5
    v_add_u32 v13, {4*K3_STG}, v5
    """)
    for x, sk in ((0, 30), (1, 33)):
        su.append(f"""s_and_b32 s36, s{sk}, 7
        s_lshl_b32 s36, s36, 5
        s_sub_u32 s37, -1, s36
        s_sub_u32 s38, 511, s36
        s_cmp_lt_u32 s{sk}, 8
        s_cselect_b32 s37, s37, s38
        s_cselect_b32 s38, 1, -1
        s_cmp_eq_u32 s{sk}, 15
        s_cselect_b32 s39, 0, -1
        s_cselect_b32 s40, 256, -1""")
        su += L(f"""
        v_mul_lo_u32 v17, v16, s38
        v_add_u32 v17, s37, v17
        v_cmp_eq_u32 vcc, s40, v16
        v_cndmask_b32 v17, v17, -1, vcc
        v_cmp_eq_u32 vcc, s39, v16
        v_cndmask_b32 v17, v17, 31, vcc
        """)
        if x == 1:
            su.append("""s_cmp_eq_u32 s34, 1
            s_cselect_b32 s36, -1, 0
            v_or_b32 v17, s36, v17""")
        su += L(f"""
        v_bfe_u32 v18, v17, 2, 2
        v_cmp_eq_u32 vcc, v18, v4
        v_cndmask_b32 v17, -1, v17, vcc
        v_lshrrev_b32 v18, 4, v17
        v_lshlrev_b32 v18, 1, v18
        v_bfe_u32 v19, v17, 1, 1
        v_add_u32 v18, v18, v19
        v_and_b32 v19, 1, v17
        v_lshlrev_b32 v19, 4, v19
        v_lshlrev_b32 v19, v19, v23
        """)
        for jj in range(4):
            su.append(f"v_cmp_eq_u32 vcc, {jj}, v18")
            su.append(f"v_cndmask_b32 v{SEL(x)+jj}, 0, v19, vcc")
    a(weave(su, items(1) + items(2)))
    hcl = []
    for k in range(4):
        hcl.append([f"global_load_dwordx4 {vr(HC(k,0),4)}, v14, s[6:7]", "v_add_u32 v14, 0x4000, v14"])
        hcl.append([f"global_load_dwordx4 {vr(HC(k,1),4)}, v15, s[6:7]", "v_add_u32 v15, 0x4000, v15"])
        hcl.append([f"global_load_dword v{24+k}, v11, s[6:7] offset:{64*k}"])
    a.stamp(1)
    def rd(slot, sg, k, tile):
        b = sg % 5
        base = (5, 5, 12, 12, 13)[b]
        off = (b & 1)*K3_STG if b < 4 else 0
        return f"ds_read_b128 {vr(HB(slot),4)}, v{base} offset:{off + tile*7168 + k*1024}"
    for sg in range(8):
        a(f"@waitv s{sg}")
        a("s_barrier")
        a.stamp(2+sg)
        seq = [(k, t) for k in range(7) for t in range(4)]
        main = [rd(x & 7, sg, *seq[x]) for x in range(6)]
        for x, (k, t) in enumerate(seq):
            if x + 6 < 28:
                main.append(rd((x+6) & 7, sg, *seq[x+6])); main.append("s_waitcnt lgkmcnt(6)")
            else:
                main.append(f"s_waitcnt lgkmcnt({27-x})")
            c = "0" if (sg == 0 and k == 0) else vr(ACC(t),4)
            main.append(f"{MF16} {vr(ACC(t),4)}, {ar(WD(sg*7+k),4)}, {vr(HB(x&7),4)}, {c}")
        fill = []
        if sg + 3 < 8: fill += items(sg+3)
        if sg == 4: fill += hcl
        a(interleave(main, fill))
        if sg == 7:
            a("s_waitcnt vmcnt(0)")
            for x in range(2):
                for t in range(4):
                    a(f"{MF16} {vr(ACC(t),4)}, {vr(SEL(x),4)}, {vr(HC(t,x),4)}, {vr(ACC(t),4)}")
    a.stamp(10)
    for k in range(4):
        for r in range(4):
            a(f"v_add_f32 v{ACC(k)+r}, v{24+k}, v{ACC(k)+r}")
        a(f"v_cvt_pk_bf16_f32 v{56+2*k}, v{ACC(k)}, v{ACC(k)+1}")
        a(f"v_cvt_pk_bf16_f32 v{57+2*k}, v{ACC(k)+2}, v{ACC(k)+3}")
        a(f"global_store_dwordx2 v9, v[{56+2*k}:{57+2*k}], s[4:5] offset:{1024*k}")
    if STAMPS: a("s_waitcnt vmcnt(0)")
    a.stamp(11); a.stamp(15)
    a.dump_stamps(WS_ST + (2 << 20))
    a("K3_done:")
    a("s_endpgm")
    return a.finalize()

def build_all():
    out = []
    hdr = open("sequential_preLN__spectral_fnet__glu_gated_glu__prompt.s.ref").read().split("\n")
    out += [l for l in hdr if l.startswith(";") and "@launch" not in l]
    out.append(f"; @launch kernel=k1_kernel grid=(256,1,1) block=(512,1,1) lds={K1_LDS}")
    out.append(f"; @launch kernel=k2_kernel grid=(256,1,1) block=(256,1,1) lds={K2_LDS}")
    if not FUSE: out.append(f"; @launch kernel=k3_kernel grid=(256,1,1) block=(256,1,1) lds={K3_LDS}")
    out.append('.amdgcn_target "amdgcn-amd-amdhsa--gfx950"')
    out.append(".text")
    out.append(header("k1_kernel") + gen_k1())
    out.append(header("k2_kernel") + gen_k2())
    if not FUSE: out.append(header("k3_kernel") + gen_k3())
    out.append('.section .rodata,"a"')
    for k in (kd("k1_kernel", 256, 256), kd("k2_kernel", 512, 256)) + (() if FUSE else (kd("k3_kernel", 128+224, 128),)):
        out.append(".p2align 6\n" + k)
    return "\n".join(out) + "\n"

if __name__ == "__main__":
    for x in sys.argv[2:]:
        if x == "stamps": STAMPS = True
        elif "=" in x:
            k_, v_ = x.split("="); globals()[k_] = int(v_)
    open(sys.argv[1] if len(sys.argv) > 1 else "v5.s", "w").write(build_all())
```

```python
import re

TRANS = ("v_exp_f32", "v_log_f32", "v_rcp_f32", "v_rsq_f32", "v_sqrt_f32", "v_sin_f32", "v_cos_f32")

def parse_reg(tok):
    tok = tok.strip()
    tok = tok.lstrip('-')
    if tok.startswith('abs(') or tok.startswith('|'):
        tok = tok.replace('abs(', '').replace(')', '').replace('|', '')
    m = re.fullmatch(r'([vas])(\d+)', tok)
    if m:
        return [(m.group(1), int(m.group(2)))]
    m = re.fullmatch(r'([vas])\[(\d+):(\d+)\]', tok)
    if m:
        return [(m.group(1), i) for i in range(int(m.group(2)), int(m.group(3)) + 1)]
    if tok == 'vcc':
        return [('s', 106), ('s', 107)]
    if tok == 'vcc_lo':
        return [('s', 106)]
    if tok == 'vcc_hi':
        return [('s', 107)]
    if tok == 'exec':
        return [('s', 126), ('s', 127)]
    if tok == 'm0':
        return [('s', 124)]
    return []

class Ins:
    def __init__(self, text):
        self.text = text
        t = text.split(';')[0].strip()
        self.is_label = t.endswith(':')
        self.is_dir = t.startswith('.')
        self.op = ''
        self.w = []; self.r = []
        self.srcC = []; self.srcAB = []
        self.kind = 'other'
        self.nops = 1
        if not t or self.is_label or self.is_dir:
            self.kind = 'none'; self.nops = 0
            return
        parts = t.split(None, 1)
        op = parts[0]; self.op = op
        rest = parts[1] if len(parts) > 1 else ''
        ops = [o.strip() for o in rest.split(',')] if rest else []
        mods = ''
        if ops:
            l = ops[-1].split()
            if l:
                ops[-1] = l[0]; mods = ' '.join(l[1:])
        self.mods = mods
        regs = [parse_reg(o) for o in ops]
        self.dpp = ('row_' in mods) or ('quad_perm' in mods) or op.endswith('_dpp') or ('wave_' in mods)
        if op == 's_nop':
            self.kind = 'nop'; self.nops = int(ops[0], 0) + 1
        elif op.startswith('v_mfma'):
            self.kind = 'mfma'
            self.w = regs[0]; self.srcAB = regs[1] + regs[2]; self.srcC = regs[3]
            self.r = self.srcAB + self.srcC
            self.passes = 8 if '32x32' in op else 4
        elif op.startswith('v_'):
            self.kind = 'valu'
            base = op.replace('_e32', '').replace('_e64', '').replace('_dpp', '').replace('_sdwa', '')
            self.base = base
            if base.startswith('v_cmp'):
                self.w = regs[0]; self.r = sum(regs[1:], [])
                if base.startswith('v_cmpx'):
                    self.w = self.w + [('s', 126), ('s', 127)]
            elif base.startswith('v_permlane') and 'swap' in base:
                self.w = regs[0] + regs[1]; self.r = regs[0] + regs[1]
            elif base in ('v_add_co_u32', 'v_sub_co_u32', 'v_addc_co_u32', 'v_subb_co_u32', 'v_mad_u64_u32'):
                self.w = regs[0] + regs[1]; self.r = sum(regs[2:], [])
            elif base in ('v_fmac_f32', 'v_dot2c_f32_bf16', 'v_pk_fmac_f16', 'v_writelane_b32'):
                self.w = regs[0]; self.r = sum(regs, [])
            elif base == 'v_nop':
                pass
            else:
                self.w = regs[0]; self.r = sum(regs[1:], [])
                if base == 'v_cndmask_b32' and len(ops) == 3:
                    self.r = self.r + [('s', 106), ('s', 107)]
                if self.dpp:
                    self.r = self.r + regs[0]
            self.trans = base in TRANS
            self.dl = base.startswith('v_dot')
        elif op.startswith('ds_'):
            self.kind = 'ds'
            if op.startswith('ds_write') :
                self.r = sum(regs, [])
            else:
                self.w = regs[0]; self.r = sum(regs[1:], [])
        elif op.startswith('global_') or op.startswith('buffer_') or op.startswith('flat_'):
            self.kind = 'vmem'
            lds = ('_lds_' in op) or (' lds' in (' ' + mods))
            self.lds = lds
            if 'store' in op:
                self.r = sum(regs, [])
                self.store_data = regs[1] if op.startswith('global_') else regs[0]
            elif 'atomic' in op:
                if 'sc0' in mods:
                    self.w = regs[0]; self.r = sum(regs[1:], [])
                else:
                    self.r = sum(regs, [])
            elif op in ('buffer_wbl2', 'buffer_inv'):
                pass
            elif lds:
                self.r = sum(regs, []) + [('s', 124)]
            else:
                self.w = regs[0]; self.r = sum(regs[1:], [])
        elif op.startswith('s_'):
            self.kind = 'salu'
            if op.startswith('s_cmp') or op.startswith('s_cbranch') or op in ('s_branch', 's_barrier', 's_waitcnt', 's_endpgm', 's_setprio', 's_sleep', 's_bitcmp0_b32', 's_bitcmp1_b32'):
                self.r = sum(regs, [])
            elif op.startswith('s_load') or op.startswith('s_memtime') or op.startswith('s_memrealtime'):
                self.kind = 'smem'; self.w = regs[0]; self.r = sum(regs[1:], [])
            else:
                self.w = regs[0] if regs else []; self.r = sum(regs[1:], [])
                if 'saveexec' in op:
                    self.w = self.w + [('s', 126), ('s', 127)]
        else:
            raise ValueError("unknown instr: " + text)

def need(p, c):
    n = 0
    pw = set(p.w); cr = set(c.r); cw = set(c.w)
    if p.kind == 'valu':
        vw = {x for x in pw if x[0] in 'va'}
        sw = {x for x in pw if x[0] == 's'}
        if c.kind == 'mfma' and vw & cr:
            n = max(n, 2 if not p.dl else 3)
        if c.kind == 'valu':
            if p.trans and not c.trans and vw & cr: n = max(n, 1)
            if p.trans and c.trans and vw & cr: n = max(n, 1)
            if c.dpp and vw & cr: n = max(n, 2)
            if c.base.startswith('v_permlane') and vw & cr: n = max(n, 2)
            if c.base in ('v_readlane_b32', 'v_readfirstlane_b32') and vw & cr: n = max(n, 1)
            if sw & cr:
                n = max(n, 4 if c.base in ('v_readlane_b32', 'v_writelane_b32') else 2)
            if p.dl:
                if c.base == p.base:
                    ab = set(c.r) - set(c.w) if c.base == 'v_dot2c_f32_bf16' else set(c.r[:-1])
                    if vw & ab: n = max(n, 3)
                elif vw & (cr | cw): n = max(n, 3)
            if ('s', 126) in sw:
                n = max(n, 5 if c.dpp else 4)
        if c.kind in ('vmem', 'ds') and p.dl and vw & cr: n = max(n, 3)
        if c.kind in ('vmem','ds') and p.trans and vw & cr: n = max(n, 1)
        if c.kind == 'vmem' and sw & cr: n = max(n, 5)
        if c.kind in ('salu', 'smem') and sw & cr: n = max(n, 1)
        if c.kind == 'mfma' and ('s', 126) in sw: n = max(n, 4)
    elif p.kind == 'mfma':
        P = p.passes
        if c.kind == 'mfma':
            if pw & set(c.srcAB): n = max(n, {4: 8, 8: 12}[P])
            if pw & set(c.srcC):
                if list(p.w) == list(c.srcC) and c.passes == P: n = max(n, 0)
                else: n = max(n, {4: 6, 8: 10}[P])
            if pw & cw and not (pw & set(c.srcC)):
                n = max(n, {4: 6, 8: 10}[P])
        else:
            if pw & (cr | cw): n = max(n, {4: 8, 8: 12}[P])
            if c.kind == 'valu' and set(p.srcC) & cw: n = max(n, {4: 3, 8: 7}[P])
            if c.kind in ('vmem', 'ds') and set(p.srcC) & cw: n = max(n, {4: 3, 8: 7}[P])
    elif p.kind == 'vmem':
        if hasattr(p, 'store_data') and len(p.store_data) >= 3 and set(p.store_data) & cw:
            n = max(n, 2)
    elif p.kind == 'salu':
        if ('s', 124) in pw and ((c.kind == 'vmem' and getattr(c, 'lds', False)) or c.op.startswith('s_movrel')):
            n = max(n, 1)
    return n

class Asm:
    def __init__(self):
        self.lines = []
        self.region = 0
        self.nreg = 0
    def __call__(self, text):
        if isinstance(text, (list, tuple)):
            for t in text: self(t)
            return
        for l in text.strip('\n').split('\n'):
            l = l.strip()
            if l == '@cond_begin': self.cond_begin()
            elif l == '@cond_end': self.cond_end()
            elif l.startswith('@stamp'): self.stamp(int(l.split()[1]))
            elif l:
                self.lines.append((l, self.region))
    def stamp(self, k):
        if getattr(self, 'stamps', False):
            op = "s_memrealtime" if k >= 14 else "s_memtime"
            self(f"s_waitcnt lgkmcnt(0)\n{op} s[{64+2*k}:{65+2*k}]\ns_waitcnt lgkmcnt(0)")
            self.nstamp = max(getattr(self, 'nstamp', 0), k+1)
    def dump_stamps(self, base_off, wsreg="s[6:7]", wave="s14", tmp=(1, 2)):
        if not getattr(self, 'stamps', False): return
        self(f"s_lshl_b32 s62, s2, 3\ns_add_u32 s62, s62, {wave}\ns_lshl_b32 s62, s62, 6\ns_add_u32 s62, s62, {base_off}")
        self(f"v_mov_b32 v{tmp[0]}, s62")
        self("s_mov_b64 exec, 1")
        for k in range(self.nstamp):
            self(f"v_mov_b32 v{tmp[1]}, s{64+2*k}")
            self(f"global_store_dword v{tmp[0]}, v{tmp[1]}, {wsreg} offset:{4*k}")
            self("s_nop 1")
    def cond_begin(self):
        self.nreg += 1; self.region = self.nreg
    def cond_end(self):
        self.region = 0
    def label(self, name):
        self.lines.append((name + ':', self.region))
    def finalize(self, window=24):
        lines = []
        cnt = 0; tags = {}
        for l, reg in self.lines:
            if l.startswith('@waitv'):
                parts = l.split()
                n = min(cnt - tags[t] for t in parts[1].split(','))
                extra = ' '.join(parts[2:])
                lines.append((f"s_waitcnt vmcnt({min(63, n)}) {extra}".strip(), reg)); continue
            t = l.split(';')[0].strip()
            op = t.split()[0] if t else ''
            if (op.startswith('global_') or op.startswith('buffer_')) and reg == 0:
                cnt += 1
            if ';@tag=' in l:
                tags[l.split(';@tag=')[1].strip()] = cnt
            lines.append((l, reg))
        for i in range(1, len(lines) - 1):
            l, reg = lines[i]
            if l.startswith('s_add_u32 m0') and ('_lds_' in lines[i+1][0]):
                pl, preg = lines[i-1]
                pop = pl.split()[0] if pl.split() else ''
                if preg == reg and (pop.startswith('v_') or pop.startswith('ds_')) and 'readfirstlane' not in pop and not pop.startswith('v_cmp') and 'addtid' not in pop:
                    lines[i-1], lines[i] = lines[i], lines[i-1]
        self.lines = lines
        out = []
        hist = []
        for l, reg in self.lines:
            ins = Ins(l); ins.region = reg
            if ins.kind == 'none':
                out.append(l); continue
            req = 0
            h = hist[-window*3:]
            for pi in range(len(h)-1, -1, -1):
                p = h[pi]
                n = need(p, ins)
                if n <= 0: continue
                dist = 0
                for x in h[pi+1:]:
                    if x.region == 0 or x.region == reg or x.region == p.region:
                        dist += x.nops
                if n - dist > req: req = n - dist
            while req > 0:
                k = min(req, 16)
                nop = Ins(f"s_nop {k-1}"); nop.region = reg
                out.append(f"  s_nop {k-1}"); hist.append(nop)
                req -= k
            out.append('  ' + l); hist.append(ins)
        return '\n'.join(out)

def vr(a, n=1):
    return f"v{a}" if n == 1 else f"v[{a}:{a+n-1}]"
def ar(a, n=1):
    return f"a{a}" if n == 1 else f"a[{a}:{a+n-1}]"
def sr(a, n=1):
    return f"s{a}" if n == 1 else f"s[{a}:{a+n-1}]"


def weave(main, items, start=0, every=None, end=None):
    if not items: return list(main)
    end = len(main) if end is None else end
    n = len(items)
    pos = [start + (end - start) * k // n for k in range(n)] if every is None else [min(start + every*k, len(main)) for k in range(n)]
    out = []; k = 0
    for i, m in enumerate(main):
        while k < n and pos[k] <= i:
            out += items[k]; k += 1
        out.append(m)
    while k < n:
        out += items[k]; k += 1
    return out

def L(text):
    return [l.strip() for l in text.strip('\n').split('\n') if l.strip()]
```

```python
import sys, math, struct
from asmlib import Asm, vr, ar, sr, weave, L

WS_V   = 0
WS_MX  = 2 << 20
WS_X0  = (2 << 20) + 8192
WS_MT  = (2 << 20) + (64 << 10)
WS_FL  = (2 << 20) + (128 << 10)
WS_XP  = 3 << 20
WS_HC  = 5 << 20
WS_WUP = 8 << 20
WS_WD  = 12 << 20
WS_HH  = 16 << 20
WS_ST  = 32 << 20
STAMPS = False
ROT2 = False
ROTP = False
ROT3 = False
DOTS_IN_C = True
FUSE = True
WD_IN_MAIN = 6
K1SC = 0
DBG = 0
NOHELP = 0
CODEPF = 1
FINE = 0
GRAM = 1
EARLY_SU = 1
HSLEEP = 0

def f2u(f): return struct.unpack('<I', struct.pack('<f', f))[0]
def hx(f): return "0x%08x" % f2u(f)
def kd(name, vgpr, accum, sgpr=102):
    return f"""
.amdhsa_kernel {name}
  .amdhsa_next_free_vgpr {vgpr}
  .amdhsa_next_free_sgpr {sgpr}
  .amdhsa_accum_offset {accum}
  .amdhsa_group_segment_fixed_size 0
  .amdhsa_kernarg_size 96
  .amdhsa_user_sgpr_count 2
  .amdhsa_user_sgpr_kernarg_segment_ptr 1
  .amdhsa_system_sgpr_workgroup_id_x 1
.end_amdhsa_kernel
"""
def header(name):
    return f".globl {name}\n.p2align 8\n.type {name},@function\n{name}:\n"

def interleave(main, fill, key='v_mfma'):
    out = []
    nm = sum(1 for m in main if m.startswith(key))
    fi = 0; seen = 0
    for m in main:
        out.append(m)
        if m.startswith(key):
            seen += 1
            tgt = (len(fill) * seen + nm - 1) // nm
            while fi < tgt:
                out.append(fill[fi]); fi += 1
    out += fill[fi:]
    return out

MF16 = "v_mfma_f32_16x16x32_bf16"
MF32 = "v_mfma_f32_32x32x16_bf16"

K1_LDS_F = 131072
K1_LDS_HELP = 147456
K1_LDS = 163840

def gen_k1():
    a = Asm(); a.stamps = STAMPS
    CS = lambda t, cs, k: 64 + ((t*2 + cs)*4 + k)*4
    G = lambda hi, rho, tile: 128 + ((hi*2 + rho)*2 + tile)*4
    FB = lambda s, tile: 160 + (s*6 + tile)*4
    XB = lambda s, hi, rho: 160 + (s*6 + 2 + hi*2 + rho)*4
    SM = lambda rho: 208 + rho*4
    SQ = lambda rho: 216 + rho*4
    ONES = 224
    a(f"""
    s_cmp_ge_u32 s2, 256
    s_cbranch_scc1 K1_done
    s_load_dwordx2 s[4:5], s[0:1], 0
    s_load_dwordx2 s[6:7], s[0:1], 88
    s_load_dwordx4 s[8:11], s[0:1], 48
    s_load_dwordx2 s[12:13], s[0:1], 64
    v_lshrrev_b32 v1, 6, v0
    v_and_b32 v2, 63, v0
    v_readfirstlane_b32 s14, v1
    v_and_b32 v3, 15, v2
    v_lshrrev_b32 v4, 4, v2
    v_lshlrev_b32 v13, 4, v2         ; lane*16
    s_and_b32 s15, s2, 7
    s_lshl_b32 s15, s15, 1
    s_bfe_u32 s16, s2, 0x10003
    s_or_b32 s15, s15, s16           ; s2 index
    s_lshr_b32 s16, s2, 4            ; eb
    s_cmp_ge_u32 s14, 4
    s_cbranch_scc1 K1_helper
    """)
    if DBG:
        a("""
        s_memrealtime s[96:97]
        s_load_dwordx2 s[98:99], s[0:1], 80
        s_waitcnt lgkmcnt(0)
        s_and_b32 s100, s2, 0x3f
        s_cmp_lg_u32 s100, 0
        s_cbranch_scc1 DBG_k1_0
        @cond_begin
        s_lshr_b32 s100, s2, 6
        s_lshl_b32 s100, s100, 4
        s_add_u32 s100, s100, 0
        v_mov_b32 v250, s100
        v_mov_b32 v251, s96
        s_mov_b64 s[100:101], exec
        s_mov_b64 exec, 1
        global_store_dword v250, v251, s[98:99]
        s_mov_b64 exec, s[100:101]
        @cond_end
        DBG_k1_0:
        """)
    a.stamp(0); a.stamp(14)
    a(f"""
    v_lshrrev_b32 v5, 2, v2
    v_lshlrev_b32 v5, 17, v5
    s_lshl_b32 s17, s14, 15
    s_lshl_b32 s18, s15, 10
    s_add_u32 s18, s18, s17
    v_add_u32 v5, s18, v5
    v_sub_u32 v6, 0, v4
    v_xor_b32 v6, v6, v2
    v_and_b32 v6, 3, v6
    v_lshl_add_u32 v7, v6, 4, v5
    s_and_b32 s46, s16, 7            ; rot
    """)
    for b in range(8):
        a(f"""
        s_add_u32 s47, s46, {b}
        s_and_b32 s47, s47, 7
        s_lshl_b32 s47, s47, 6
        v_add_u32 v{240+b}, s47, v7
        """)
    a("""
    s_waitcnt lgkmcnt(0)
    s_add_u32 s48, s4, 0x4000
    s_addc_u32 s49, s5, 0
    """)
    xi = []
    for k in range(8):
        for hi in range(2):
            for rho in range(2):
                kk = k + 8*hi
                tag = f" ;@tag=x{k}" if (hi == 1 and rho == 1) else ""
                xi.append([f"s_add_u32 m0, s17, {(rho*16+kk)*1024 - 512*hi}",
                           f"global_load_lds_dwordx4 v{240+k}, {'s[48:49]' if rho else 's[4:5]'} offset:{512*hi}{tag}"])
    for it in xi[:8]: a(it)
    a.stamp(1)
    fg = L(f"""
    s_mov_b32 s20, 0x41c80000
    s_lshl_b32 s21, s16, 4
    s_add_u32 s21, s21, 1
    v_add_u32 v9, s21, v3
    v_cvt_f32_u32 v10, v9
    v_mul_f32 v10, {hx(-1.0/512)}, v10
    v_lshlrev_b32 v11, 31, v9
    v_or_b32 v56, 1.0, v11
    s_lshl_b32 s21, s14, 1
    s_add_u32 s21, s21, s46
    s_add_u32 s50, s21, 1
    s_and_b32 s21, s21, 7
    s_and_b32 s50, s50, 7
    s_lshl_b32 s21, s21, 5
    s_lshl_b32 s50, s50, 5
    v_lshlrev_b32 v12, 3, v4
    v_add_u32 v62, s50, v12
    v_add_u32 v12, s21, v12
    v_cvt_f32_u32 v12, v12
    v_cvt_f32_u32 v62, v62
    v_mul_f32 v12, v10, v12
    v_mul_f32 v62, v10, v62
    s_lshl_b32 s21, s14, 12
    s_add_u32 s21, s21, {K1_LDS_F}
    v_add_u32 v14, s21, v13
    """)
    fg.append("""s_cmp_eq_u32 s16, 15
    s_cselect_b32 s22, 0x80008000, 0
    s_cselect_b32 s23, 0x80008000, 0
    s_cselect_b32 s18, 0x8000, 0
    s_cmp_eq_u32 s14, 0
    s_cselect_b32 s18, s18, 0
    s_mov_b32 s19, 0""")
    fg += L("""
    v_mov_b32 v15, 0x3f80
    v_cndmask_b32 v57, v56, 0, s[22:23]
    v_cndmask_b32 v58, 0, 1.0, s[22:23]
    """)
    for kk in range(2):
        if kk == 1: fg.append("v_mov_b32 v12, v62")
        for j in range(8):
            fg.append(f"v_cos_f32 v{16+j}, v12")
            fg.append(f"v_sin_f32 v{24+j}, v12")
            if j < 7: fg.append("v_add_f32 v12, v10, v12")
        o = 32 + kk*8
        for jj in range(4):
            fg.append(f"v_cvt_pk_bf16_f32 v{o+jj}, v{16+2*jj}, v{17+2*jj}")
            fg.append(f"v_cvt_pk_bf16_f32 v{o+4+jj}, v{24+2*jj}, v{25+2*jj}")
        if kk == 1: fg.append(f"v_cndmask_b32 v{o+4}, v{o+4}, v15, s[18:19]")
        fg.append(f"ds_write_b128 v14, {vr(o,4)} offset:{kk*2048}")
        fg.append(f"ds_write_b128 v14, {vr(o+4,4)} offset:{kk*2048+1024}")
    ad = L(f"""
    v_lshrrev_b32 v5, 2, v3
    v_sub_u32 v5, 0, v5
    v_and_b32 v5, 3, v5
    v_xor_b32 v6, v5, v4
    v_lshlrev_b32 v6, 4, v6
    v_lshl_add_u32 v6, v3, 6, v6
    v_add_u32 v6, s17, v6
    v_add_u32 v61, {K1_LDS_F}, v13
    """)
    for r in range(4): ad.append(f"v_mov_b32 v{ONES+r}, 0x3f803f80")
    a(weave(fg + ad, xi[8:16]))
    a("s_waitcnt lgkmcnt(0)")
    a.stamp(2)
    a("s_barrier")
    cs = L(f"""
    s_lshl_b32 s21, s14, 4
    v_add_u32 v9, s21, v3
    v_cvt_f32_u32 v10, v9
    v_mul_f32 v10, {hx(1.0/128)}, v10
    v_mul_f32 v11, {hx(8.0)}, v10
    v_lshlrev_b32 v12, 5, v4
    v_cvt_f32_u32 v12, v12
    v_mul_f32 v12, v10, v12
    v_mov_b32 v15, 0x80008000
    """)
    for k in range(4):
        for hh in range(2):
            cs.append("v_mov_b32 v14, v12")
            for r in range(4):
                j = hh*4 + r
                cs.append(f"v_cos_f32 v{16+j}, v14")
                cs.append(f"v_sin_f32 v{24+j}, v14")
                if r < 3: cs.append("v_add_f32 v14, v11, v14")
            cs.append("v_add_f32 v12, v10, v12")
        for jj in range(4):
            cs.append(f"v_cvt_pk_bf16_f32 v{CS(0,0,k)+jj}, v{16+2*jj}, v{17+2*jj}")
            cs.append(f"v_cvt_pk_bf16_f32 v{CS(0,1,k)+jj}, v{24+2*jj}, v{25+2*jj}")
        for c_ in range(2):
            for jj in range(2):
                cs.append(f"v_mov_b32 v{CS(1,c_,k)+jj}, v{CS(0,c_,k)+jj}")
                cs.append(f"v_xor_b32 v{CS(1,c_,k)+2+jj}, v15, v{CS(0,c_,k)+2+jj}")
    cs.append("v_mul_u32_u24 v16, 80, v4")
    cs.append(f"""s_sub_u32 s21, 23, s16
    s_cmp_lt_u32 s16, 8
    s_cselect_b32 s21, s16, s21
    s_cselect_b32 s24, 16, 0
    s_add_u32 s50, s21, 1
    s_and_b32 s50, s50, 15
    s_sub_u32 s51, s21, s46
    s_and_b32 s51, s51, 7
    s_and_b32 s21, s21, 8
    s_add_u32 s21, s21, s51
    s_lshl_b32 s21, s21, 10
    s_sub_u32 s51, s50, s46
    s_and_b32 s51, s51, 7
    s_and_b32 s50, s50, 8
    s_add_u32 s50, s50, s51
    s_lshl_b32 s50, s50, 10
    s_mov_b32 s52, 0
    s_mov_b32 s53, 0xffff0000""")
    cs += L(f"""
    v_add_u32 v25, s21, v6
    v_add_u32 v26, 1, v4
    v_and_b32 v26, 3, v26
    v_xor_b32 v26, v26, v5
    v_lshlrev_b32 v26, 4, v26
    v_lshl_add_u32 v26, v3, 6, v26
    v_mov_b32 v27, s21
    v_mov_b32 v28, s50
    v_cndmask_b32 v27, v27, v28, s[52:53]
    v_add3_u32 v26, v26, v27, s17
    """)
    cs += L(f"""
    s_lshl_b32 s21, s14, 5
    s_add_u32 s21, s21, s15
    s_lshl_b32 s26, s21, 14
    s_lshl_b32 s27, s46, 11
    s_add_u32 s26, s26, s27
    s_lshr_b32 s27, s16, 3
    s_lshl_b32 s27, s27, 10
    s_add_u32 s26, s26, s27
    s_add_u32 s26, s26, {WS_XP}
    v_add_u32 v28, s26, v13
    v_add_u32 v29, 0x40000, v28
    v_mov_b32 v30, s24
    v_lshlrev_b32 v31, 14, v9
    s_lshl_b32 s26, s16, 10
    s_lshl_b32 s27, s15, 6
    s_add_u32 s26, s26, s27
    v_add_u32 v31, s26, v31
    v_lshl_add_u32 v31, v4, 4, v31
    v_add_u32 v17, 0x100000, v31
    v_add_u32 v18, s17, v13
    v_add_u32 v19, 0x10000, v13
    s_mov_b32 s25, {hx(1.0/512)}
    v_mov_b32 v27, {hx(1e-5)}
    """)
    def reads(k):
        s = k & 1
        o = [f"@waitv x{k}",
             f"ds_read_b128 {vr(FB(s,0),4)}, v61 offset:{(k*2)*1024}",
             f"ds_read_b128 {vr(FB(s,1),4)}, v61 offset:{(k*2+1)*1024}"]
        for hi in range(2):
            for rho in range(2):
                o.append(f"ds_read_b128 {vr(XB(s,hi,rho),4)}, v6 offset:{(rho*16 + k + 8*hi)*1024}")
        return o
    for it in xi[16:20]: a(it)
    a(reads(0))
    ncs = len(cs); per = (ncs + 6) // 7
    for k in range(8):
        seq = []
        if k < 7:
            seq += reads(k+1); seq.append("s_waitcnt lgkmcnt(6)")
        else:
            seq += L(f"""
            ds_read_b128 v[32:35], v25
            ds_read_b32 v36, v26
            ds_read_b128 v[40:43], v25 offset:16384
            ds_read_b32 v44, v26 offset:16384
            s_waitcnt lgkmcnt(4)
            """)
        s = k & 1
        if k == 0:
            seq.append(f"v_lshlrev_b32 v59, 16, v{XB(0,0,0)}")
            seq.append(f"v_lshlrev_b32 v60, 16, v{XB(0,0,1)}")
        for hi in range(2):
            for rho in range(2):
                first = (k == 0 and hi == 0)
                x = vr(XB(s,hi,rho),4)
                seq.append(f"{MF16} {vr(SQ(rho),4)}, {x}, {x}, {'0' if first else vr(SQ(rho),4)}")
                seq.append(f"{MF16} {vr(SM(rho),4)}, {x}, {vr(ONES,4)}, {'0' if first else vr(SM(rho),4)}")
        for hi in range(2):
            for rho in range(2):
                for tile in range(2):
                    c = "0" if k == 0 else vr(G(hi,rho,tile),4)
                    seq.append(f"{MF16} {vr(G(hi,rho,tile),4)}, {vr(XB(s,hi,rho),4)}, {vr(FB(s,tile),4)}, {c}")
        fill = cs[k*per:(k+1)*per] if k < 7 else []
        if k < 3:
            fill = weave(fill, xi[20+4*k:24+4*k])
        a(interleave(seq, fill))
    a.stamp(3)
    for rho in range(2):
        for r in range(4):
            a(f"ds_bpermute_b32 v{160+rho*4+r}, v16, v{SQ(rho)+r} offset:{4*r}")
    a("s_waitcnt lgkmcnt(8)")
    for rho in range(2):
        b = 32 + rho*8
        for k in range(4):
            a(f"v_alignbit_b32 v{48+rho*4+k}, v{b+k+1}, v{b+k}, v30")
        a(f"global_store_dwordx4 v{28+rho}, {vr(48+rho*4,4)}, s[6:7]")
    for rho in range(2):
        for r in range(4):
            a(f"v_mul_f32 v{SM(rho)+r}, s25, v{SM(rho)+r}")
    for rho in range(2):
        for tile in range(2):
            for r in range(4):
                a(f"v_fma_f32 v{G(0,rho,tile)+r}, v{G(1,rho,tile)+r}, v{56+tile}, v{G(0,rho,tile)+r}")
    for rho in range(2):
        for r in range(4):
            a(f"v_fma_f32 v{G(0,rho,1)+r}, -v{SM(rho)+r}, v58, v{G(0,rho,1)+r}")
    a("s_waitcnt lgkmcnt(0)")
    for rho in range(2):
        for r in range(4):
            q_ = 160+rho*4+r
            a(f"v_fma_f32 v{q_}, v{q_}, s25, v27")
            a(f"v_fma_f32 v{q_}, -v{SM(rho)+r}, v{SM(rho)+r}, v{q_}")
            a(f"v_rsq_f32 v{q_}, v{q_}")
    for rho in range(2):
        for tile in range(2):
            for r in range(4):
                a(f"v_mul_f32 v{G(0,rho,tile)+r}, v{G(0,rho,tile)+r}, v{160+rho*4+r}")
    for tile in range(2):
        for rho in range(2):
            a(f"v_cvt_pk_bf16_f32 v{184+tile*4+rho*2}, v{G(0,rho,tile)}, v{G(0,rho,tile)+1}")
            a(f"v_cvt_pk_bf16_f32 v{184+tile*4+rho*2+1}, v{G(0,rho,tile)+2}, v{G(0,rho,tile)+3}")
    a(f"""
    ds_write_b128 v18, v[184:187]
    ds_write_b128 v18, v[188:191] offset:1024
    s_cmp_lg_u32 s16, 0
    s_cbranch_scc1 K1_nomx
    @cond_begin
    s_lshl_b32 s26, s21, 6
    s_add_u32 s26, s26, {WS_MX}
    v_lshl_add_u32 v20, v4, 4, s26
    v_lshl_add_u32 v21, v3, 2, s26
    s_mov_b64 s[28:29], exec
    s_mov_b32 exec_lo, 0x00010001
    s_mov_b32 exec_hi, 0x00010001
    global_store_dwordx4 v20, {vr(SM(0),4)}, s[6:7]
    global_store_dwordx4 v20, {vr(SM(1),4)}, s[6:7] offset:1024
    s_mov_b64 exec, 0xffff
    v_add_u32 v21, {WS_X0 - WS_MX}, v21
    global_store_dword v21, v59, s[6:7]
    global_store_dword v21, v60, s[6:7] offset:1024
    s_mov_b64 exec, s[28:29]
    @cond_end
    K1_nomx:
    s_waitcnt lgkmcnt(0)
    """)
    a.stamp(4)
    a("s_barrier")
    a.stamp(5)
    AR = lambda k: 192 + k*4
    AI = lambda k: 160 + k*4
    NR = lambda k: 232 + k*4
    for k in range(4):
        b = 13 if k < 2 else 19
        a(f"ds_read_b128 {vr(AR(k),4)}, v{b} offset:{(k&1)*32768}")
        a(f"ds_read_b128 {vr(AI(k),4)}, v{b} offset:{(k&1)*32768 + 1024}")
    VA = lambda t, c: 128 + (t*2 + c)*4
    for k in range(4):
        a(f"s_waitcnt lgkmcnt({6-2*k})")
        for jj in range(4):
            a(f"v_xor_b32 v{NR(k)+jj}, v15, v{AR(k)+jj}")
        for t in range(2):
            c0 = "0" if k == 0 else vr(VA(t,0),4)
            c1 = "0" if k == 0 else vr(VA(t,1),4)
            a(f"{MF16} {vr(VA(t,0),4)}, {vr(AR(k),4)}, {vr(CS(t,0,k),4)}, {c0}")
            a(f"{MF16} {vr(VA(t,1),4)}, {vr(AI(k),4)}, {vr(CS(t,0,k),4)}, {c1}")
        for t in range(2):
            a(f"{MF16} {vr(VA(t,0),4)}, {vr(AI(k),4)}, {vr(CS(t,1,k),4)}, {vr(VA(t,0),4)}")
            a(f"{MF16} {vr(VA(t,1),4)}, {vr(NR(k),4)}, {vr(CS(t,1,k),4)}, {vr(VA(t,1),4)}")
    for t in range(2):
        o = 32 + t*4
        a(f"v_cvt_pk_bf16_f32 v{o}, v{VA(t,0)}, v{VA(t,0)+1}")
        a(f"v_cvt_pk_bf16_f32 v{o+1}, v{VA(t,0)+2}, v{VA(t,0)+3}")
        a(f"v_cvt_pk_bf16_f32 v{o+2}, v{VA(t,1)}, v{VA(t,1)+1}")
        a(f"v_cvt_pk_bf16_f32 v{o+3}, v{VA(t,1)+2}, v{VA(t,1)+3}")
        a(f"global_store_dwordx4 v{31 if t == 0 else 17}, {vr(o,4)}, s[6:7]")
    a.stamp(6)
    if STAMPS: a("s_waitcnt vmcnt(0)")
    if DBG: a("s_waitcnt vmcnt(0)")
    if DBG:
        a("""
        s_memrealtime s[96:97]
        s_load_dwordx2 s[98:99], s[0:1], 80
        s_waitcnt lgkmcnt(0)
        s_and_b32 s100, s2, 0x3f
        s_cmp_lg_u32 s100, 0
        s_cbranch_scc1 DBG_k1_1
        @cond_begin
        s_lshr_b32 s100, s2, 6
        s_lshl_b32 s100, s100, 4
        s_add_u32 s100, s100, 4
        v_mov_b32 v250, s100
        v_mov_b32 v251, s96
        s_mov_b64 s[100:101], exec
        s_mov_b64 exec, 1
        global_store_dword v250, v251, s[98:99]
        s_mov_b64 exec, s[100:101]
        @cond_end
        DBG_k1_1:
        """)
    a.stamp(7); a.stamp(15)
    a.dump_stamps(WS_ST)
    a("s_endpgm")
    a("K1_helper:")
    a("s_mov_b32 s45, s14")
    a.stamp(0); a.stamp(14)
    a("s_barrier")
    for _ in range(HSLEEP): a("s_sleep 16")
    if NOHELP: a("s_cmp_ge_u32 s2, 4\ns_cbranch_scc1 K1_done")
    a(f"""
    s_sub_u32 s14, s14, 4
    s_lshl_b32 s17, s2, 2
    s_add_u32 s17, s17, s14
    s_lshl_b32 s24, s14, 12
    s_add_u32 s24, s24, {K1_LDS_HELP}
    v_add_u32 v14, s24, v13
    v_lshrrev_b32 v5, 2, v3
    v_and_b32 v6, 3, v3
    v_lshlrev_b32 v6, 3, v6
    v_lshrrev_b32 v7, 1, v4
    v_lshl_add_u32 v7, v7, 3, v5
    v_lshl_add_u32 v7, v7, 6, v6
    v_and_b32 v8, 1, v4
    v_lshl_add_u32 v7, v8, 11, v7
    v_add_u32 v7, s24, v7
    v_lshrrev_b32 v9, 1, v4
    v_lshlrev_b32 v9, 4, v9
    v_lshl_add_u32 v9, v8, 2, v9
    v_add_u32 v9, v9, v5
    v_lshl_add_u32 v9, v9, 7, v6
    v_add_u32 v9, s24, v9
    v_lshrrev_b32 v10, 3, v2
    v_and_b32 v11, 7, v2
    v_lshlrev_b32 v11, 4, v11
    v_lshl_add_u32 v10, v10, 10, v11
    s_waitcnt lgkmcnt(0)
    s_cmp_ge_u32 s17, 16
    s_cbranch_scc1 K1_nofl
    @cond_begin
    s_lshl_b32 s26, s17, 10
    s_add_u32 s26, s26, {WS_FL}
    v_add_u32 v12, s26, v13
    v_mov_b32 v16, 0
    v_mov_b32 v17, 0
    v_mov_b32 v18, 0
    v_mov_b32 v19, 0
    global_store_dwordx4 v12, v[16:19], s[6:7]
    s_nop 1
    @cond_end
    K1_nofl:
    """)
    if CODEPF:
        a(f"""
        s_sub_u32 s26, s17, 16
        s_cmp_ge_u32 s26, 21
        s_cbranch_scc1 K1_nopf
        @cond_begin
        s_getpc_b64 s[28:29]
        K1_pc:
        s_add_u32 s28, s28, k2_kernel-K1_pc
        s_addc_u32 s29, s29, 0
        s_lshl_b32 s26, s26, 10
        v_add_u32 v12, s26, v13
        global_load_dwordx4 v[60:63], v12, s[28:29]
        @cond_end
        K1_nopf:
        """)
    def down_load(sreg, rb, sd):
        a(f"""
        s_lshr_b32 s26, {sreg}, 3
        s_and_b32 s27, {sreg}, 7
        s_and_b32 s28, s26, 15
        s_mul_i32 s28, s28, 7
        s_lshr_b32 s29, s26, 4
        s_lshl_b32 s29, s29, 1
        s_add_u32 s28, s28, s29
        s_sub_u32 s29, s26, 48
        s_mul_i32 s29, s29, 14
        s_add_u32 s29, s29, 6            ; case C
        s_cmp_lt_u32 s26, 48
        s_cselect_b32 s28, s28, s29      ; tA
        s_cselect_b32 s29, 1, 7
        s_lshl_b32 s28, s28, 14
        s_lshl_b32 s29, s29, 14
        s_sub_u32 s29, s29, 0x2000
        s_lshl_b32 s35, s27, 7
        s_add_u32 s28, s28, s35
        v_add_u32 v12, s28, v10
        s_mul_i32 s28, s27, 224
        s_add_u32 s28, s28, s26
        s_lshl_b32 s28, s28, 10
        s_add_u32 s{sd}, s28, {WS_WD}
        """)
        for ins in range(4):
            a(f"global_load_dwordx4 {vr(rb+4*ins,4)}, v12, s[12:13]")
            if ins == 1: a("v_add_u32 v12, s29, v12")
            elif ins < 3: a("v_add_u32 v12, 0x2000, v12")
    def down_proc(rb, sd):
        for ins in range(4):
            a(f"ds_write_b128 v14, {vr(rb+4*ins,4)} offset:{ins*1024}")
        a(f"v_add_u32 v12, s{sd}, v13")
        a("s_waitcnt lgkmcnt(0)")
        for ct in range(4):
            a(f"ds_read_b64_tr_b16 v[{48+ct*4}:{49+ct*4}], v9 offset:{ct*32}")
            a(f"ds_read_b64_tr_b16 v[{50+ct*4}:{51+ct*4}], v9 offset:{ct*32 + 1024}")
        for ct in range(4):
            a(f"s_waitcnt lgkmcnt({6-2*ct})")
            a(f"global_store_dwordx4 v12, {vr(48+ct*4,4)}, s[6:7]")
            if ct < 3: a(f"v_add_u32 v12, {56*1024}, v12")
    a("""
    s_cmp_ge_u32 s17, 896
    s_cbranch_scc1 K1_hA_down
    """)
    a.cond_begin()
    a(f"""
    s_and_b32 s26, s17, 15
    s_lshr_b32 s27, s17, 4
    s_and_b32 s28, s26, 7
    s_lshl_b32 s28, s28, 5
    s_add_u32 s29, s28, 1
    s_sub_u32 s28, 511, s28
    s_cmp_lt_u32 s26, 8
    s_cselect_b32 s30, s29, s28
    s_cselect_b32 s31, 1, -1
    s_cselect_b32 s32, -1, 256
    s_lshl_b32 s33, s27, 6
    s_mov_b32 s34, 3584
    s_lshl_b32 s28, s27, 5
    s_add_u32 s28, s28, s26
    s_lshl_b32 s28, s28, 11
    s_add_u32 s40, s28, {WS_WUP}
    v_lshrrev_b32 v11, 2, v2
    v_and_b32 v15, 3, v2
    v_lshlrev_b32 v15, 4, v15
    """)
    for ins in range(2):
        a(f"""
        v_add_u32 v12, {16*ins}, v11
        v_mul_lo_u32 v12, v12, s31
        v_add_u32 v12, s30, v12
        v_cmp_ne_u32 vcc, s32, v12
        v_cndmask_b32 v12, 0, v12, vcc
        v_mul_lo_u32 v12, v12, s34
        v_add3_u32 v12, v12, s33, v15
        global_load_dwordx4 {vr(16+4*ins,4)}, v12, s[8:9]
        global_load_dwordx4 {vr(24+4*ins,4)}, v12, s[10:11]
        """)
    a("s_branch K1_hA_go")
    a.cond_end()
    a("K1_hA_down:")
    a.cond_begin()
    a("s_sub_u32 s25, s17, 896")
    down_load("s25", 16, 40)
    a.cond_end()
    a("K1_hA_go:")
    a("""
    s_cmp_ge_u32 s17, 320
    s_cbranch_scc1 K1_hB_skip
    """)
    a.cond_begin()
    a("s_add_u32 s25, s17, 128")
    down_load("s25", 32, 41)
    a.cond_end()
    a("K1_hB_skip:")
    a.stamp(1)
    a("s_waitcnt vmcnt(0)")
    a.stamp(2)
    a("""
    s_cmp_ge_u32 s17, 896
    s_cbranch_scc1 K1_hA_down2
    """)
    a.cond_begin()
    for ins in range(4):
        a(f"ds_write_b128 v14, {vr(16+4*ins,4)} offset:{ins*1024}")
    a("v_add_u32 v12, s40, v13")
    a("s_waitcnt lgkmcnt(0)")
    idx = 0
    for Pp in range(2):
        for aa in range(2):
            a(f"ds_read_b64_tr_b16 v[{48+idx*4}:{49+idx*4}], v7 offset:{aa*256 + Pp*32}")
            a(f"ds_read_b64_tr_b16 v[{50+idx*4}:{51+idx*4}], v7 offset:{aa*256 + Pp*32 + 1024}")
            idx += 1
    idx = 0
    for Pp in range(2):
        for aa in range(2):
            a(f"s_waitcnt lgkmcnt({6-2*idx})")
            a(f"global_store_dwordx4 v12, {vr(48+idx*4,4)}, s[6:7] offset:{aa*1024}")
            idx += 1
        if Pp == 0: a("v_add_u32 v12, 0x8000, v12")
    a("s_branch K1_hA_go2")
    a.cond_end()
    a("K1_hA_down2:")
    a.cond_begin()
    down_proc(16, 40)
    a.cond_end()
    a("K1_hA_go2:")
    a("""
    s_cmp_ge_u32 s17, 320
    s_cbranch_scc1 K1_hend
    s_nop 1
    """)
    a.cond_begin()
    down_proc(32, 41)
    a.cond_end()
    a("K1_hend:")
    a.stamp(3)
    if STAMPS: a("s_waitcnt vmcnt(0)")
    for k in range(4, 8): a.stamp(k)
    a.stamp(15)
    a.dump_stamps(WS_ST, wave="s45")
    a("K1_done:")
    a("s_endpgm")
    txt = a.finalize()
    if K1SC:
        out = []
        inh = False
        for l in txt.split("\n"):
            if l.startswith("K1_helper:"): inh = True
            if inh and l.strip().startswith("global_store") and "sc1" not in l:
                l = l.split(";")[0].rstrip() + (" sc1" if K1SC == 1 else " nt" if K1SC == 2 else " sc0 sc1")
            out.append(l)
        txt = "\n".join(out)
    return txt

K2_LDS = 163840
REG = 40960


def arrive(name, off):
    return f"""s_lshl_b32 s22, s15, 10
    s_lshl_b32 s23, s16, 4
    s_add_u32 s22, s22, s23
    s_lshl_b32 s23, s14, 2
    s_add_u32 s22, s22, s23
    s_add_u32 s22, s22, {WS_FL + off}
    v_mov_b32 v27, s22
    v_mov_b32 v28, 1
    s_mov_b64 s[36:37], exec
    s_mov_b64 exec, 1
    global_store_dword v27, v28, s[6:7] sc1
    s_mov_b64 exec, s[36:37]"""
def poll_issue(name, off):
    return f"""s_lshl_b32 s22, s15, 10
    s_add_u32 s22, s22, {WS_FL + off}
    v_lshl_add_u32 v30, v2, 2, s22
    global_load_dword v29, v30, s[6:7] sc1 ;@tag=fl{name}"""
def poll_check(name, off):
    return [f"@waitv fl{name}", f"""v_cmp_eq_u32 vcc, 1, v29
    s_cmp_eq_u64 vcc, exec
    s_cbranch_scc1 KD_ready{name}
    @cond_begin
    s_mov_b32 s23, 0
    KD_poll{name}:
    global_load_dword v29, v30, s[6:7] sc1
    s_waitcnt vmcnt(0)
    v_cmp_eq_u32 vcc, 1, v29
    s_add_u32 s23, s23, 1
    s_cmp_eq_u64 vcc, exec
    s_cbranch_scc1 KD_ready{name}
    s_cmp_lt_u32 s23, 0x4000
    s_cbranch_scc1 KD_poll{name}
    @cond_end
    KD_ready{name}:"""]

KD_STG = 32768
def phaseD_setup(WD3):
    SEL = lambda x: 104 + x*4
    o = []
    o.append(f"""s_and_b32 s22, s16, 1
    s_lshl_b32 s22, s22, 1
    s_lshl_b32 s23, s15, 2
    s_add_u32 s46, s22, s23
    s_sub_u32 s47, 128, s46
    s_cmp_eq_u32 s46, 0
    s_cselect_b32 s47, 64, s47
    s_add_u32 s48, s46, 1
    s_sub_u32 s49, 128, s48
    s_cmp_eq_u32 s14, 1
    s_cselect_b32 s50, s47, s46
    s_cmp_eq_u32 s14, 2
    s_cselect_b32 s50, s48, s50
    s_cmp_eq_u32 s14, 3
    s_cselect_b32 s50, s49, s50
    s_mul_i32 s22, s50, 57344
    s_add_u32 s22, s22, {WS_HH}
    v_add_u32 v7, s22, v5
    s_add_u32 s24, s6, 4096
    s_addc_u32 s25, s7, 0""")
    o.append(f"""s_lshr_b32 s30, s61, 1
    s_lshl_b32 s31, s61, 4
    s_sub_u32 s32, 496, s31
    s_lshr_b32 s32, s32, 5
    s_add_u32 s32, s32, 8
    s_cmp_lt_u32 s61, 16
    s_cselect_b32 s30, s30, s32
    s_sub_u32 s33, s30, 1
    s_cmp_eq_u32 s61, 0
    s_cselect_b32 s33, 15, s33
    s_cmp_eq_u32 s61, 16
    s_cselect_b32 s33, 7, s33
    s_max_i32 s33, s33, 0
    s_and_b32 s34, s61, 1
    s_cmp_gt_u32 s61, 16
    s_cselect_b32 s34, 1, s34
    s_lshl_b32 s52, s30, 10
    s_add_u32 s52, s52, {WS_HC}
    v_add_u32 v14, s52, v5
    s_lshl_b32 s52, s33, 10
    s_add_u32 s52, s52, {WS_HC}
    v_add_u32 v15, s52, v5""")
    o += L(f"""
    v_lshlrev_b32 v6, 2, v3
    v_add_u32 v6, {WS_MT}, v6
    v_lshlrev_b32 v12, 17, v3
    v_mov_b32 v13, s61
    v_lshl_add_u32 v12, v13, 5, v12
    v_lshl_add_u32 v12, v4, 3, v12
    v_add_u32 v16, s31, v3
    v_mov_b32 v23, 0x3f80
    """)
    for x, sk in ((0, 30), (1, 33)):
        o.append(f"""s_and_b32 s52, s{sk}, 7
        s_lshl_b32 s52, s52, 5
        s_sub_u32 s56, -1, s52
        s_sub_u32 s57, 511, s52
        s_cmp_lt_u32 s{sk}, 8
        s_cselect_b32 s56, s56, s57
        s_cselect_b32 s57, 1, -1
        s_cmp_eq_u32 s{sk}, 15
        s_cselect_b32 s58, 0, -1
        s_cselect_b32 s59, 256, -1""")
        o += L(f"""
        v_mul_lo_u32 v17, v16, s57
        v_add_u32 v17, s56, v17
        v_cmp_eq_u32 vcc, s59, v16
        v_cndmask_b32 v17, v17, -1, vcc
        v_cmp_eq_u32 vcc, s58, v16
        v_cndmask_b32 v17, v17, 31, vcc
        """)
        if x == 1:
            o.append("""s_cmp_eq_u32 s34, 1
            s_cselect_b32 s52, -1, 0
            v_or_b32 v17, s52, v17""")
        o += L(f"""
        v_bfe_u32 v18, v17, 2, 2
        v_cmp_eq_u32 vcc, v18, v4
        v_cndmask_b32 v17, -1, v17, vcc
        v_lshrrev_b32 v18, 4, v17
        v_lshlrev_b32 v18, 1, v18
        v_bfe_u32 v19, v17, 1, 1
        v_add_u32 v18, v18, v19
        v_and_b32 v19, 1, v17
        v_lshlrev_b32 v19, 4, v19
        v_lshlrev_b32 v19, v19, v23
        """)
        for jj in range(4):
            o.append(f"v_cmp_eq_u32 vcc, {jj}, v18")
            o.append(f"v_cndmask_b32 v{SEL(x)+jj}, 0, v19, vcc")
    return o

QD = [2, 1, 3, 4, 0, 2, 1]
def d_items(sg):
    l = []
    for k in range(0, 8, 2):
        tag = f" ;@tag=s{sg}" if k == 6 else ""
        b = 's[6:7]' if k < 4 else 's[24:25]'
        x = [f"s_add_u32 m0, s21, {QD[sg]*8192 + (k & 4)*1024}",
             f"global_load_lds_dwordx4 v7, {b} offset:{(k&3)*1024} sc1",
             f"global_load_lds_dwordx4 v7, {b} offset:{(k&3)*1024+1024} sc1{tag}"]
        if k == 6: x.append("v_add_u32 v7, 0x2000, v7")
        l.append("\n".join(x))
    return l

def phaseD(a, ep6, wd_rest, WD3, su):
    HB = lambda s: 128 + s*4
    ACC = lambda k: 160 + k*4
    HC = lambda k, x: 176 + (k*2 + x)*4
    SEL = lambda x: 104 + x*4
    MT = 216
    a(weave(ep6, wd_rest))
    if FINE: a.stamp(2)
    a(poll_check("B", 256))
    if FINE: a.stamp(3)
    if su: a(su)
    if FINE: a.stamp(4)
    a.stamp(5 if FINE else 8)
    hcl = []
    for k in range(4):
        hcl.append(f"s_lshl_b32 s22, s{46+k}, 14\nv_add_u32 v17, s22, v14\nglobal_load_dwordx4 {vr(HC(k,0),4)}, v17, s[6:7] sc1\nv_add_u32 v17, s22, v15\nglobal_load_dwordx4 {vr(HC(k,1),4)}, v17, s[6:7] sc1")
        hcl.append(f"s_lshl_b32 s22, s{46+k}, 6\nv_add_u32 v17, s22, v6\nglobal_load_dword v{MT+k}, v17, s[6:7] sc1")
    def rd(slot, sg, k, tile):
        return f"ds_read_b128 {vr(HB(slot),4)}, v{32+tile} offset:{QD[sg]*8192 + k*1024}"
    for sg in range(7):
        a(f"@waitv s{sg}" + (",wd" if sg == 0 else ""))
        a("s_barrier")
        if FINE: a.stamp(6 + sg)
        elif sg in (0, 2, 4): a.stamp(9 + sg//2)
        seq = [(k, t) for k in range(8) for t in range(4)]
        main = [rd(x & 7, sg, *seq[x]) for x in range(6)]
        for x, (k, t) in enumerate(seq):
            if x + 6 < 32:
                main.append(rd((x+6) & 7, sg, *seq[x+6])); main.append("s_waitcnt lgkmcnt(6)")
            else:
                main.append(f"s_waitcnt lgkmcnt({31-x})")
            c = "0" if (sg == 0 and k == 0) else vr(ACC(t),4)
            main.append(f"{MF16} {vr(ACC(t),4)}, {ar(WD3(sg*8+k),4)}, {vr(HB(x&7),4)}, {c}")
        fill = []
        if sg == 0: fill = d_items(2)[:2] + ["@waitv hh5", arrive("C", 512)] + d_items(2)[2:] + d_items(3)[:2] + ["@waitv hh6", arrive("D", 768)]
        if sg == 1: fill = d_items(3)[2:] + [poll_issue("C", 512)] + hcl
        if sg == 2: fill = poll_check("C", 512) + d_items(4) + [poll_issue("D", 768)] + d_items(5)
        if sg == 3: fill = ["s_nop 0"]*16 + poll_check("D", 768) + d_items(6)
        a(interleave(main, fill))
        if sg == 4:
            for x in range(2):
                for t in range(4):
                    a(f"{MF16} {vr(ACC(t),4)}, {vr(SEL(x),4)}, {vr(HC(t,x),4)}, {vr(ACC(t),4)}")
    if not FINE: a.stamp(12)
    for k in range(4):
        a(f"s_lshl_b32 s22, s{46+k}, 10")
        a(f"v_add_u32 v{220+k}, s22, v12")
        for r in range(4):
            a(f"v_add_f32 v{ACC(k)+r}, v{MT+k}, v{ACC(k)+r}")
        a(f"v_cvt_pk_bf16_f32 v{224+2*k}, v{ACC(k)}, v{ACC(k)+1}")
        a(f"v_cvt_pk_bf16_f32 v{225+2*k}, v{ACC(k)+2}, v{ACC(k)+3}")
        a(f"global_store_dwordx2 v{220+k}, v[{224+2*k}:{225+2*k}], s[8:9]")

def gen_k2():
    a = Asm(); a.stamps = STAMPS
    H = lambda rho, k: 128 + (rho*16 + k)*4
    XF = lambda rho, k: (rho*16 + k)*4
    T = lambda rho, d: 32 + (rho*2 + d)*4
    SEL = lambda d, tb: 48 + (d*2 + tb)*4
    NEGM = lambda rho: 64 + rho*4
    ACC = lambda s, tb: 72 + (s*2 + tb)*4
    TP = lambda rho, d: 104 + (rho*2 + d)*4
    VA = lambda s, tb: 128 + (s*2 + tb)*4
    WF = lambda s: 160 + s*4
    VW = [8, 9, 25, 26]
    SC = "sc1" if FUSE else ""
    def WD3(k):
        return 4*k if k < 32 else (128 + 4*(k-32) if k < 40 else 192 + 4*(k-40))
    a(f"""
    s_cmp_ge_u32 s2, 256
    s_cbranch_scc1 K2_done
    s_load_dwordx2 s[6:7], s[0:1], 88
    s_load_dwordx4 s[8:11], s[0:1], 72
    v_lshrrev_b32 v1, 6, v0
    v_and_b32 v2, 63, v0
    v_readfirstlane_b32 s14, v1
    v_and_b32 v3, 15, v2
    v_lshrrev_b32 v4, 4, v2
    v_lshlrev_b32 v5, 4, v2
    s_and_b32 s15, s2, 3
    s_lshl_b32 s15, s15, 2
    s_bfe_u32 s16, s2, 0x20003
    s_add_u32 s15, s15, s16          ; j
    s_bfe_u32 s16, s2, 0x10002
    s_lshl_b32 s16, s16, 3
    s_lshr_b32 s17, s2, 5
    s_add_u32 s16, s16, s17          ; n
    s_lshl_b32 s17, s15, 2
    s_add_u32 s17, s17, s14          ; a0
    s_sub_u32 s18, 128, s17
    s_cmp_eq_u32 s17, 0
    s_cselect_b32 s18, 64, s18       ; a1
    s_cselect_b32 s19, 0, 16384
    s_cselect_b32 s20, 16384, 0
    s_mul_i32 s21, s14, {REG}
    s_lshl_b32 s22, s17, 14
    s_lshl_b32 s23, s18, 14
    v_add_u32 v6, s22, v5
    v_add_u32 v7, s23, v5
    v_add_u32 v12, {WS_XP}, v6
    v_add_u32 v13, {WS_XP}, v7
    s_lshl_b32 s22, s17, 6
    s_lshl_b32 s23, s18, 6
    s_add_u32 s22, s22, {WS_MX}
    s_add_u32 s23, s23, {WS_MX}
    v_lshl_add_u32 v14, v3, 2, s22
    v_lshl_add_u32 v15, v3, 2, s23
    s_cmp_ge_u32 s16, 7
    s_cselect_b32 s53, 7, 0
    s_sub_u32 s53, s16, s53
    s_cmp_ge_u32 s53, 7
    s_cselect_b32 s22, 7, 0
    s_sub_u32 s53, s53, s22
    s_cmp_ge_u32 s15, 7
    s_cselect_b32 s54, 7, 0
    s_sub_u32 s54, s15, s54
    s_cmp_ge_u32 s54, 7
    s_cselect_b32 s22, 7, 0
    s_sub_u32 s54, s54, s22
    """)
    if not ROT2: a("s_mov_b32 s53, 0")
    if not ROTP: a("s_mov_b32 s54, 0")
    for i in range(7):
        a(f"""
        s_add_u32 s{46+i}, s53, {i}
        s_cmp_ge_u32 s{46+i}, 7
        s_cselect_b32 s22, 7, 0
        s_sub_u32 s{46+i}, s{46+i}, s22
        s_lshl_b32 s{46+i}, s{46+i}, 11
        """)
    a("""
    s_waitcnt lgkmcnt(0)
    s_add_u32 s26, s6, 8192
    s_addc_u32 s27, s7, 0
    s_add_u32 s28, s6, 12288
    s_addc_u32 s29, s7, 0
    """)
    if DBG:
        a("""
        s_memrealtime s[96:97]
        s_load_dwordx2 s[98:99], s[0:1], 80
        s_waitcnt lgkmcnt(0)
        s_and_b32 s100, s2, 0x3f
        s_cmp_lg_u32 s100, 0
        s_cbranch_scc1 DBG_k2_2
        @cond_begin
        s_lshr_b32 s100, s2, 6
        s_lshl_b32 s100, s100, 4
        s_add_u32 s100, s100, 8
        v_mov_b32 v250, s100
        v_mov_b32 v251, s96
        s_mov_b64 s[100:101], exec
        s_mov_b64 exec, 1
        global_store_dword v250, v251, s[98:99]
        s_mov_b64 exec, s[100:101]
        @cond_end
        DBG_k2_2:
        """)
    a.stamp(0); a.stamp(14)
    for sel in range(2):
        a(f"s_add_u32 m0, s21, {sel*16384 + 12288}")
        a(f"global_load_lds_dwordx4 v{6+sel}, s[28:29] offset:3072")
    a("""
    global_load_dword v16, v14, s[6:7]
    global_load_dword v18, v15, s[6:7]
    global_load_dword v17, v14, s[26:27]
    global_load_dword v19, v15, s[26:27] ;@tag=first
    """)
    pair_items = []
    for i in range(8):
        it = []
        if i < 7:
            for sel in range(2):
                for tb in range(2):
                    x = []
                    if tb == 0: x.append(f"v_add_u32 v{252+sel}, s{46+i}, v{6+sel}")
                    x += [f"s_add_u32 m0, s21, {sel*16384 + 2*i*1024}",
                          f"global_load_lds_dwordx4 v{252+sel}, s[6:7] offset:{tb*1024}"]
                    it.append(x)
            for rho in range(2):
                for d in range(2):
                    x = []
                    if d == 0: x.append(f"v_add_u32 v{254+rho}, s{46+i}, v{12+rho}")
                    tag = f" ;@tag=p{i}" if (d == 1 and rho == 1) else ""
                    x.append(f"global_load_dwordx4 {ar(XF(rho,i+8*d),4)}, v{254+rho}, s[6:7] offset:{d*1024}{tag}")
                    it.append(x)
        else:
            for sel in range(2):
                it.append([f"s_add_u32 m0, s21, {sel*16384 + 12288}", f"global_load_lds_dwordx4 v{6+sel}, s[28:29] offset:2048"])
            for rho in range(2):
                for d in range(2):
                    tag = f" ;@tag=p{i}" if (d == 1 and rho == 1) else ""
                    it.append([f"global_load_dwordx4 {ar(XF(rho,i+8*d),4)}, v{12+rho}, s[28:29] offset:{2048+d*1024}{tag}"])
        pair_items.append(it)
    for it in pair_items[0]: a(it)
    QB = [4, 0, 2, 1, 3, 4, 0]
    def wdma_items(p):
        l = []
        for k in range(4):
            tag = f" ;@tag=w{p}" if k == 3 else ""
            x = [f"s_add_u32 m0, s21, {QB[p]*8192 + 2*k*1024}",
                 f"global_load_lds_dwordx4 v{VW[k]}, s[6:7]",
                 f"global_load_lds_dwordx4 v{VW[k]}, s[6:7] offset:1024{tag}",
                 f"v_add_u32 v{VW[k]}, 0x8000, v{VW[k]}"]
            l.append(x)
        return l
    if not FINE: a.stamp(1)
    su = L(f"""
    v_mov_b32 v127, 0x3f80
    v_lshlrev_b32 v8, 7, v3
    v_add_u32 v9, s18, v8
    v_add_u32 v8, s17, v8
    s_mov_b32 s32, 0xffff0000
    s_mov_b32 s33, 0xffff0000
    v_lshlrev_b32 v25, 2, v4
    v_cvt_f32_u32 v25, v25
    v_mov_b32 v26, 0x80008000
    """)
    for rho in range(2):
        su += L(f"""
        v_cvt_f32_u32 v27, v{8+rho}
        v_mul_f32 v27, {hx(1.0/2048)}, v27
        v_mul_f32 v28, v27, v25
        """)
        for r in range(4):
            su.append(f"v_cos_f32 v{72+r}, v28")
            su.append(f"v_sin_f32 v{76+r}, v28")
            if r < 3: su.append("v_add_f32 v28, v27, v28")
        for r in range(8): su.append(f"v_mul_f32 v{80+r}, 0.5, v{72+r}")
        su += L(f"""
        v_cvt_pk_bf16_f32 v88, v72, v73
        v_cvt_pk_bf16_f32 v89, v74, v75
        v_cvt_pk_bf16_f32 v90, v76, v77
        v_cvt_pk_bf16_f32 v91, v78, v79
        v_cvt_pk_bf16_f32 v92, v80, v81
        v_cvt_pk_bf16_f32 v93, v82, v83
        v_cvt_pk_bf16_f32 v94, v84, v85
        v_cvt_pk_bf16_f32 v95, v86, v87
        v_xor_b32 v96, v26, v90
        v_xor_b32 v97, v26, v91
        v_xor_b32 v98, v26, v94
        v_xor_b32 v99, v26, v95
        """)
        for dst, c0, c1 in ((TP(rho,0), 98, 92), (TP(rho,1), 94, 92), (T(rho,0), 88, 90), (T(rho,1), 88, 96)):
            for k in range(2):
                su.append(f"v_cndmask_b32 v{dst+k}, v{c0+k}, v{c1+k}, s[32:33]")
                su.append(f"v_cndmask_b32 v{dst+2+k}, v{c1+k}, v{c0+k}, s[32:33]")
    su += L(f"""
    v_lshrrev_b32 v27, 2, v3
    v_lshl_add_u32 v27, v4, 2, v27
    v_lshlrev_b32 v27, 6, v27
    v_and_b32 v28, 3, v3
    v_lshl_add_u32 v27, v28, 4, v27
    v_and_b32 v28, 1, v4
    v_lshl_add_u32 v27, v28, 3, v27
    v_add_u32 v120, s21, v27
    v_xor_b32 v121, 8, v120
    v_add_u32 v122, s19, v120
    v_add_u32 v123, s19, v121
    v_add_u32 v124, s20, v120
    v_add_u32 v125, s20, v121
    v_add_u32 v27, 48, v3
    v_lshlrev_b32 v126, 2, v27
    """)
    a(weave(su, pair_items[1] + pair_items[2]))
    def trread(dst, rho, d, g_):
        if d == 0: b0, b1, off = 120, 121, rho*16384 + g_*1024
        else: b0, b1, off = 122+2*rho, 123+2*rho, g_*1024
        return [f"ds_read_b64_tr_b16 {ar(dst,2)}, v{b0} offset:{off}", f"ds_read_b64_tr_b16 {ar(dst+2,2)}, v{b1} offset:{off}"]
    if not FINE: a.stamp(2)
    a("@waitv first")
    for rho in range(2):
        a(trread(VA(2+rho,0), rho, 0, 15)); a(trread(VA(2+rho,1), rho, 1, 15))
    se = L(f"""
    v_lshlrev_b32 v27, 3, v4
    v_sub_u32 v28, v3, v27
    v_sub_u32 v29, 0, v3
    v_sub_u32 v29, v29, v27
    """)
    for (d, tb, src, add) in ((0,0,28,0), (0,1,28,16), (1,0,29,31), (1,1,29,15)):
        se += L(f"""
        v_add_u32 v30, {add}, v{src}
        v_and_b32 v31, 1, v30
        v_lshlrev_b32 v31, 4, v31
        v_lshlrev_b32 v31, v31, v127
        v_lshrrev_b32 v30, 1, v30
        """)
        for jj in range(4):
            se.append(f"v_cmp_eq_u32 s[{56+2*(jj&1)}:{57+2*(jj&1)}], {jj}, v30\nv_cmp_eq_u32 vcc, {jj}, v30" if False else f"v_cmp_eq_u32 s[{56+2*(jj&1)}:{57+2*(jj&1)}], {jj}, v30")
            if jj & 1:
                se.append(f"v_cndmask_b32 v{SEL(d,tb)+jj-1}, 0, v31, s[56:57]")
                se.append(f"v_cndmask_b32 v{SEL(d,tb)+jj}, 0, v31, s[58:59]")
    a(se[:20])
    a("s_waitcnt lgkmcnt(0)")
    for rho in range(2):
        a(f"{MF16} {vr(ACC(2+rho,0),4)}, {ar(VA(2+rho,0),4)}, {vr(TP(rho,0),4)}, 0")
    for rho in range(2):
        a(f"{MF16} {vr(ACC(2+rho,0),4)}, {ar(VA(2+rho,1),4)}, {vr(TP(rho,1),4)}, {vr(ACC(2+rho,0),4)}")
    a(se[20:38])
    for rho in range(2):
        a(f"ds_bpermute_b32 v{22+rho}, v126, v{ACC(2+rho,0)+3}")
    a(se[38:])
    a(f"""
    s_mul_i32 s42, s16, 7
    s_add_u32 s30, s42, s54
    s_lshl_b32 s30, s30, 15
    s_add_u32 s30, s30, {WS_WUP}
    """)
    for k in range(4):
        a(f"""
        s_lshl_b32 s22, s14, 2
        s_add_u32 s22, s22, {k}
        s_and_b32 s23, s22, 7
        s_add_u32 s31, s23, s53
        s_cmp_ge_u32 s31, 7
        s_cselect_b32 s55, 7, 0
        s_sub_u32 s31, s31, s55
        s_cmp_eq_u32 s23, 7
        s_cselect_b32 s31, 7, s31
        s_and_b32 s22, s22, 8
        s_add_u32 s31, s31, s22
        s_lshl_b32 s31, s31, 11
        s_add_u32 s31, s31, s30
        v_add_u32 v{VW[k]}, s31, v5
        """)
    a(f"""
    s_and_b32 s22, s16, 7
    s_sub_u32 s23, s22, s53
    s_add_u32 s31, s23, 7
    s_cmp_lt_i32 s23, 0
    s_cselect_b32 s23, s31, s23
    s_cmp_eq_u32 s22, 7
    s_cselect_b32 s23, 7, s23
    s_and_b32 s22, s16, 8
    s_add_u32 s60, s23, s22
    s_lshl_b32 s22, s16, 10
    s_add_u32 s22, s22, {WS_HC}
    v_mov_b32 v27, s17
    v_mov_b32 v28, s18
    v_cndmask_b32 v27, v27, v28, s[32:33]
    v_lshrrev_b32 v28, 1, v4
    v_lshlrev_b32 v10, 14, v27
    v_lshl_add_u32 v10, v28, 9, v10
    v_lshl_add_u32 v10, v3, 4, v10
    v_add_u32 v10, s22, v10
    s_mov_b32 s36, 57344
    v_mul_lo_u32 v11, v27, s36
    v_lshl_add_u32 v11, v28, 8, v11
    v_lshl_add_u32 v11, v3, 4, v11
    s_mov_b32 s34, 0
    s_mov_b32 s35, 0xffff0000
    s_waitcnt lgkmcnt(0)
    """)
    for rho in range(2):
        a(f"v_add_f32 v{16+2*rho}, v{16+2*rho}, v{22+rho}")
        for r in range(4):
            a(f"v_sub_f32 v{NEGM(rho)+r}, 0, v{16+2*rho}")
    for r in range(20, 24): a(f"v_mov_b32 v{r}, 0")
    mt_store = f"""s_cmp_eq_u32 s16, 0
    s_cbranch_scc0 K2_nomt
    @cond_begin
    v_add_u32 v14, {WS_MT - WS_MX}, v14
    v_add_u32 v15, {WS_MT - WS_MX}, v15
    s_mov_b64 s[36:37], exec
    s_mov_b64 exec, 0xffff
    global_store_dword v14, v16, s[6:7] {SC}
    global_store_dword v15, v18, s[6:7] {SC}
    s_mov_b64 exec, s[36:37]
    @cond_end
    K2_nomt:"""
    groups = [(i, d) for i in range(8) for d in range(2)]
    def reads(gi):
        i, d = groups[gi]
        o = []
        if d == 0: o.append(f"@waitv p{i}")
        for rho in range(2):
            s = (gi & 1)*2 + rho
            o += trread(VA(s, 0), rho, d, 2*i) + trread(VA(s, 1), rho, d, 2*i+1)
        return o
    def mm(gi):
        i, d = groups[gi]
        kap = i + 8*d
        o = []
        for rho in range(2):
            s = (gi & 1)*2 + rho
            for tb in range(2):
                o.append(f"{MF16} {vr(ACC(s,tb),4)}, {ar(VA(s,tb),4)}, {vr(T(rho,d),4)}, {vr(NEGM(rho),4)}")
        for rho in range(2):
            s = (gi & 1)*2 + rho
            for tb in range(2):
                o.append(f"{MF16} {vr(ACC(s,tb),4)}, {vr(SEL(d,tb),4)}, {ar(XF(rho,kap),4)}, {vr(ACC(s,tb),4)}")
        return o
    def post(gi):
        i, d = groups[gi]
        kap = i + 8*d
        o = []
        for rho in range(2):
            s = (gi & 1)*2 + rho
            h = H(rho, kap)
            for tb in range(2):
                o.append(f"v_cvt_pk_bf16_f32 v{h+2*tb}, v{ACC(s,tb)}, v{ACC(s,tb)+1}")
                o.append(f"v_cvt_pk_bf16_f32 v{h+2*tb+1}, v{ACC(s,tb)+2}, v{ACC(s,tb)+3}")
        h0 = H(0, kap); h = H(1, kap)
        if GRAM:
            for rho in range(2):
                hh_ = vr(H(rho, kap), 4); gacc = vr(112+4*rho, 4)
                o.append(f"{MF16} {gacc}, {hh_}, {hh_}, {'0' if gi == 0 else gacc} ")
        for k in range(4): o.append(f"v_permlane16_swap_b32 v{h0+k}, v{h+k}")
        if DOTS_IN_C and not GRAM:
            for k in range(4):
                o.append(f"v_dot2c_f32_bf16 v{20+(k&1)}, v{h0+k}, v{h0+k}")
                o.append(f"v_dot2c_f32_bf16 v{22+(k&1)}, v{h+k}, v{h+k}")
        o.append(f"""s_cmp_eq_u32 s60, {kap}
        s_cbranch_scc0 K2_nh{kap}
        @cond_begin
        global_store_dwordx4 v10, {vr(h0,4)}, s[6:7] {SC}
        global_store_dwordx4 v10, {vr(h,4)}, s[6:7] offset:256 {SC}
        @cond_end
        K2_nh{kap}:""")
        return o
    def fix(rho):
        F = ACC(rho, 1) + 3; M = ACC(2+rho, 1) + 3
        return L(f"""
        v_add_f32 v27, v{F}, v{M}
        v_mul_f32 v27, 0.5, v27
        v_sub_f32 v28, v{17+2*rho}, v{16+2*rho}
        v_cndmask_b32 v{F}, v{F}, v27, s[34:35]
        v_cndmask_b32 v{M}, v{M}, v28, s[34:35]
        """)
    wd_items = []; wd_early = []
    if FUSE:
        a(f"""
        s_lshr_b32 s22, s16, 1
        s_lshl_b32 s22, s22, 2
        s_add_u32 s61, s22, s14          ; nu
        s_mul_i32 s22, s61, {56*1024}
        s_add_u32 s22, s22, {WS_WD}
        v_add_u32 v24, s22, v5
        v_add_u32 v1, {40*1024}, v24
        """)
        for k in range(40, 56):
            x = f"global_load_dwordx4 {ar(WD3(k),4)}, v1, s[6:7] offset:{(k&3)*1024}"
            if (k & 3) == 3: x += "\nv_add_u32 v1, 0x1000, v1"
            wd_early.append([x])
        for k in range(40):
            x = f"global_load_dwordx4 {ar(WD3(k),4)}, v24, s[6:7] offset:{(k&3)*1024}"
            if k == 39: x += " ;@tag=wd"
            if (k & 3) == 3: x += "\nv_add_u32 v24, 0x1000, v24"
            wd_items.append([x])
    if not FINE: a.stamp(3)
    a(reads(0))
    extra = {0: pair_items[3] + pair_items[4][:4], 1: pair_items[4][4:] + pair_items[5], 2: pair_items[6], 3: pair_items[7],
             4: wd_early[:8], 5: wdma_items(0), 6: wd_early[8:], 7: wdma_items(1)}
    for i in range(8):
        seq = []
        for gi in (2*i, 2*i+1):
            if gi + 1 < 16:
                seq += reads(gi+1); seq.append("s_waitcnt lgkmcnt(8)")
            else: seq.append("s_waitcnt lgkmcnt(0)")
            m_ = mm(gi)
            fill = post(gi-1) if 1 <= gi <= 14 else []
            seq += m_[:2] + interleave(m_[2:], fill)
        if i == 0: seq.append(mt_store)
        a(weave(seq, extra[i]))
    a(fix(0)); a(fix(1))
    a(post(14)); a(post(15))
    if not FINE: a.stamp(4)
    for k in range(4): a(f"v_add_u32 v{32+k}, {k*REG}, v5")
    dsu = phaseD_setup(WD3)
    dots = []
    for kap in range(16):
        for k in range(4):
            dots.append(f"v_dot2c_f32_bf16 v{20+(k&1)}, v{H(0,kap)+k}, v{H(0,kap)+k}")
            dots.append(f"v_dot2c_f32_bf16 v{22+(k&1)}, v{H(1,kap)+k}, v{H(1,kap)+k}")
    if GRAM:
        stats = L(f"""
        v_and_b32 v27, 3, v3
        v_cmp_eq_u32 s[56:57], 1, v27
        v_cmp_eq_u32 s[58:59], 2, v27
        v_cmp_eq_u32 vcc, 3, v27
        v_cndmask_b32 v20, v112, v113, s[56:57]
        v_cndmask_b32 v22, v116, v117, s[56:57]
        v_cndmask_b32 v20, v20, v114, s[58:59]
        v_cndmask_b32 v22, v22, v118, s[58:59]
        v_cndmask_b32 v20, v20, v115, vcc
        v_cndmask_b32 v22, v22, v119, vcc
        v_lshrrev_b32 v27, 2, v3
        v_lshl_add_u32 v27, v27, 4, v3
        v_lshlrev_b32 v27, 2, v27
        ds_bpermute_b32 v21, v27, v20
        ds_bpermute_b32 v23, v27, v22
        s_mov_b32 s38, {hx(1.0/512)}
        v_mov_b32 v27, {hx(1e-5)}
        s_waitcnt lgkmcnt(0)
        v_cndmask_b32 v20, v21, v23, s[32:33]
        v_fma_f32 v20, v20, s38, v27
        v_rsq_f32 v20, v20
        v_mul_f32 v21, {hx(-math.log2(math.e))}, v20
        """)
        a(stats); stats = []
    else:
        stats = L(f"""
        v_add_f32 v20, v20, v21
        v_add_f32 v22, v22, v23
        v_add_f32 v20, v20, v22
        v_mov_b32 v21, v20
        v_permlane32_swap_b32 v20, v21
        v_add_f32 v20, v20, v21
        s_mov_b32 s38, {hx(1.0/512)}
        v_mov_b32 v27, {hx(1e-5)}
        v_fma_f32 v20, v20, s38, v27
        v_rsq_f32 v20, v20
        v_mul_f32 v21, {hx(-math.log2(math.e))}, v20
        """)
    MACC = lambda st: 72 + st*16
    def wread(p, phi):
        return f"ds_read_b128 {ar(WF(phi & 7),4)}, v{32 + (phi>>3)} offset:{QB[p]*8192 + (phi&7)*1024}"
    def epilogue(p):
        st = p & 1
        if p < 6: off = f"s_lshl_b32 s44, s16, 10\ns_add_u32 s44, s44, {WS_HH + (p>>1)*16*1024 + (p&1)*512}"
        else:     off = f"s_lshl_b32 s44, s16, 9\ns_add_u32 s44, s44, {WS_HH + 48*1024}"
        f = [off + "\ns_add_u32 s40, s6, s44\ns_addc_u32 s41, s7, 0"]
        m = MACC(st)
        for r in range(8): f.append(f"v_mul_f32 v{40+r}, v21, v{m+r}")
        for r in range(8):
            f.append(f"v_exp_f32 v{40+r}, v{40+r}")
            f.append(f"v_mul_f32 v{48+r}, v20, v{m+8+r}")
        for r in range(8): f.append(f"v_add_f32 v{40+r}, 1.0, v{40+r}")
        for r in range(8): f.append(f"v_rcp_f32 v{40+r}, v{40+r}")
        for r in range(8): f.append(f"v_mul_f32 v{40+r}, v{40+r}, v{48+r}")
        for r in range(4): f.append(f"v_cvt_pk_bf16_f32 v{56+r}, v{40+2*r}, v{41+2*r}")
        f.append(f"global_store_dwordx4 v11, v[56:59], s[40:41] {SC} ;@tag=hh{p}")
        return f
    PF = 6
    bar = {0: "w0", 1: "w1", 2: "w2,w3", 4: "w4,w5", 6: "w6"}
    for p in range(7):
        if p in bar:
            a(f"@waitv {bar[p]}")
            a("s_barrier")
            if p < 2 and not FINE: a.stamp(5+p)
            main = [wread(p, x) for x in range(PF)]
        else:
            main = []
        st = p & 1
        nxt_ok = (p+1 < 7) and (p+1 not in bar)
        for phi in range(32):
            kap, aa = phi >> 1, phi & 1
            if aa == 0:
                if phi + PF < 32:
                    main += [wread(p, phi+PF), wread(p, phi+PF+1), f"s_waitcnt lgkmcnt({PF})"]
                elif nxt_ok:
                    main += [wread(p+1, phi+PF-32), wread(p+1, phi+PF-31), f"s_waitcnt lgkmcnt({PF})"]
                else:
                    main.append(f"s_waitcnt lgkmcnt({30-phi})")
            c = "0" if phi == 0 else vr(MACC(st),16)
            main.append(f"{MF32} {vr(MACC(st),16)}, {ar(WF(phi&7),4)}, {vr(H(aa,kap),4)}, {c}")
        dm = []
        if p == 0: dm = wdma_items(2) + wdma_items(3)
        if p == 1: dm = wdma_items(4)
        if p == 2: dm = wdma_items(5)
        if p == 4: dm = wdma_items(6)
        dm = [[ "\n".join(x) ] for x in dm]
        if FUSE:
            mine = wd_items[p*WD_IN_MAIN:(p+1)*WD_IN_MAIN]
            dm = [[y] for y in weave([x[0] for x in dm], mine)] if dm else mine
        if DOTS_IN_C: dots = []
        if p == 0: body = dots[:96] + (stats if DOTS_IN_C else [])
        elif p == 1: body = dots[96:] + ([] if DOTS_IN_C else stats) + epilogue(0)
        else: body = epilogue(p-1)
        fl = weave(body, dm)
        if FUSE:
            def ins(lst, frac, items):
                k = int(len(lst)*frac)
                return lst[:k] + items + lst[k:]
            if p == 0: fl = weave(dsu, [[x] for x in fl]) if EARLY_SU else [dsu[0]] + fl
            if p == 3: fl = ins(fl, 0.5, ["@waitv hh1", arrive("A", 0)])
            if p == 5:
                fl = ins(fl, 0.5, ["@waitv hh3", arrive("B", 256)])
                fl = ins(fl, 0.3, [poll_issue("A", 0)])
            if p == 6:
                fl = poll_check("A", 0) + ins(weave(fl, [[x] for x in d_items(0) + d_items(1)]), 0.6, [poll_issue("B", 256)])
        a(interleave(main, fl))
    a.stamp(1 if FINE else 7)
    if not FUSE:
        a(epilogue(6))
    else:
        phaseD(a, epilogue(6), wd_items[7*WD_IN_MAIN:], WD3, [] if EARLY_SU else dsu[1:])
    if STAMPS: a("s_waitcnt vmcnt(0)")
    if DBG: a("s_waitcnt vmcnt(0)")
    if DBG:
        a("""
        s_memrealtime s[96:97]
        s_load_dwordx2 s[98:99], s[0:1], 80
        s_waitcnt lgkmcnt(0)
        s_and_b32 s100, s2, 0x3f
        s_cmp_lg_u32 s100, 0
        s_cbranch_scc1 DBG_k2_3
        @cond_begin
        s_lshr_b32 s100, s2, 6
        s_lshl_b32 s100, s100, 4
        s_add_u32 s100, s100, 12
        v_mov_b32 v250, s100
        v_mov_b32 v251, s96
        s_mov_b64 s[100:101], exec
        s_mov_b64 exec, 1
        global_store_dword v250, v251, s[98:99]
        s_mov_b64 exec, s[100:101]
        @cond_end
        DBG_k2_3:
        """)
    a.stamp(13); a.stamp(15)
    a.dump_stamps(WS_ST + (1 << 20))
    a("K2_done:")
    a("s_endpgm")
    return a.finalize()

K3_STG = 28672
K3_LDS = 5*K3_STG
def gen_k3():
    a = Asm(); a.stamps = STAMPS
    WD = lambda k3: k3*4
    HB = lambda s: 64 + s*4
    ACC = lambda k: 32 + k*4
    HC = lambda k, x: 96 + (k*2 + x)*4
    SEL = lambda x: 48 + x*4
    a(f"""
    s_cmp_ge_u32 s2, 256
    s_cbranch_scc1 K3_done
    s_load_dwordx2 s[4:5], s[0:1], 72
    s_load_dwordx2 s[6:7], s[0:1], 88
    v_lshrrev_b32 v1, 6, v0
    v_and_b32 v2, 63, v0
    v_readfirstlane_b32 s14, v1
    v_and_b32 v3, 15, v2
    v_lshrrev_b32 v4, 4, v2
    v_lshlrev_b32 v5, 4, v2
    s_and_b32 s15, s2, 7
    s_lshl_b32 s15, s15, 2
    s_bfe_u32 s16, s2, 0x20003
    s_add_u32 s15, s15, s16
    s_lshr_b32 s16, s2, 5
    s_lshl_b32 s17, s16, 2
    s_add_u32 s17, s17, s14          ; nu
    s_lshl_b32 s18, s15, 2           ; tt0
    s_add_u32 s19, s18, s14
    s_mul_i32 s20, s17, {56*1024}
    s_add_u32 s20, s20, {WS_WD}
    v_add_u32 v6, s20, v5
    s_mul_i32 s20, s19, 57344
    s_add_u32 s20, s20, {WS_HH}
    v_add_u32 v7, s20, v5
    s_mul_i32 s21, s14, 7168
    s_add_u32 s46, s15, s16
    s_and_b32 s46, s46, {7 if ROT3 else 0}            ; rot
    s_mul_i32 s20, s46, 7168
    v_add_u32 v6, s20, v6
    v_add_u32 v7, s20, v7
    s_waitcnt lgkmcnt(0)
    s_add_u32 s24, s6, 4096
    s_addc_u32 s25, s7, 0
    """)
    a.stamp(0); a.stamp(14)
    def items(sg):
        buf = (sg % 5)*K3_STG
        l = []
        for k in range(7):
            x = [f"s_add_u32 m0, s21, {buf + (k & 4)*1024}",
                 f"global_load_lds_dwordx4 v7, {'s[6:7]' if k < 4 else 's[24:25]'} offset:{(k&3)*1024}"]
            if k == 6:
                x.append(f"s_cmp_eq_u32 s46, {7-sg}\ns_cselect_b32 s47, -7, 1\ns_mul_i32 s47, s47, 7168\nv_add_u32 v7, s47, v7")
            l.append(x)
            tag = f" ;@tag=s{sg}" if k == 6 else ""
            x = [f"global_load_dwordx4 {ar(WD(sg*7+k),4)}, v6, {'s[6:7]' if k < 4 else 's[24:25]'} offset:{(k&3)*1024}{tag}"]
            if k == 6: x.append("v_add_u32 v6, s47, v6")
            l.append(x)
        return l
    for it in items(0): a(it)
    su = L(f"""
    v_lshlrev_b32 v8, 7, v3
    v_add_u32 v8, s18, v8
    v_lshlrev_b32 v9, 10, v8
    s_lshl_b32 s20, s17, 5
    v_add_u32 v9, s20, v9
    v_lshl_add_u32 v9, v4, 3, v9
    s_lshl_b32 s20, s18, 6
    s_add_u32 s20, s20, {WS_MT}
    v_lshl_add_u32 v11, v3, 2, s20
    """)
    su.append(f"""s_lshr_b32 s30, s17, 1
    s_lshl_b32 s31, s17, 4
    s_sub_u32 s32, 496, s31
    s_lshr_b32 s32, s32, 5
    s_add_u32 s32, s32, 8
    s_cmp_lt_u32 s17, 16
    s_cselect_b32 s30, s30, s32
    s_sub_u32 s33, s30, 1
    s_cmp_eq_u32 s17, 0
    s_cselect_b32 s33, 15, s33
    s_cmp_eq_u32 s17, 16
    s_cselect_b32 s33, 7, s33
    s_max_i32 s33, s33, 0
    s_and_b32 s34, s17, 1
    s_cmp_gt_u32 s17, 16
    s_cselect_b32 s34, 1, s34
    s_lshl_b32 s35, s18, 14
    s_add_u32 s35, s35, {WS_HC}
    s_lshl_b32 s36, s30, 10
    s_add_u32 s36, s36, s35
    v_add_u32 v14, s36, v5
    s_lshl_b32 s36, s33, 10
    s_add_u32 s36, s36, s35
    v_add_u32 v15, s36, v5""")
    su += L(f"""
    v_add_u32 v16, s31, v3
    v_mov_b32 v23, 0x3f80
    v_add_u32 v12, {2*K3_STG}, v5
    v_add_u32 v13, {4*K3_STG}, v5
    """)
    for x, sk in ((0, 30), (1, 33)):
        su.append(f"""s_and_b32 s36, s{sk}, 7
        s_lshl_b32 s36, s36, 5
        s_sub_u32 s37, -1, s36
        s_sub_u32 s38, 511, s36
        s_cmp_lt_u32 s{sk}, 8
        s_cselect_b32 s37, s37, s38
        s_cselect_b32 s38, 1, -1
        s_cmp_eq_u32 s{sk}, 15
        s_cselect_b32 s39, 0, -1
        s_cselect_b32 s40, 256, -1""")
        su += L(f"""
        v_mul_lo_u32 v17, v16, s38
        v_add_u32 v17, s37, v17
        v_cmp_eq_u32 vcc, s40, v16
        v_cndmask_b32 v17, v17, -1, vcc
        v_cmp_eq_u32 vcc, s39, v16
        v_cndmask_b32 v17, v17, 31, vcc
        """)
        if x == 1:
            su.append("""s_cmp_eq_u32 s34, 1
            s_cselect_b32 s36, -1, 0
            v_or_b32 v17, s36, v17""")
        su += L(f"""
        v_bfe_u32 v18, v17, 2, 2
        v_cmp_eq_u32 vcc, v18, v4
        v_cndmask_b32 v17, -1, v17, vcc
        v_lshrrev_b32 v18, 4, v17
        v_lshlrev_b32 v18, 1, v18
        v_bfe_u32 v19, v17, 1, 1
        v_add_u32 v18, v18, v19
        v_and_b32 v19, 1, v17
        v_lshlrev_b32 v19, 4, v19
        v_lshlrev_b32 v19, v19, v23
        """)
        for jj in range(4):
            su.append(f"v_cmp_eq_u32 vcc, {jj}, v18")
            su.append(f"v_cndmask_b32 v{SEL(x)+jj}, 0, v19, vcc")
    a(weave(su, items(1) + items(2)))
    hcl = []
    for k in range(4):
        hcl.append([f"global_load_dwordx4 {vr(HC(k,0),4)}, v14, s[6:7]", "v_add_u32 v14, 0x4000, v14"])
        hcl.append([f"global_load_dwordx4 {vr(HC(k,1),4)}, v15, s[6:7]", "v_add_u32 v15, 0x4000, v15"])
        hcl.append([f"global_load_dword v{24+k}, v11, s[6:7] offset:{64*k}"])
    a.stamp(1)
    def rd(slot, sg, k, tile):
        b = sg % 5
        base = (5, 5, 12, 12, 13)[b]
        off = (b & 1)*K3_STG if b < 4 else 0
        return f"ds_read_b128 {vr(HB(slot),4)}, v{base} offset:{off + tile*7168 + k*1024}"
    for sg in range(8):
        a(f"@waitv s{sg}")
        a("s_barrier")
        a.stamp(2+sg)
        seq = [(k, t) for k in range(7) for t in range(4)]
        main = [rd(x & 7, sg, *seq[x]) for x in range(6)]
        for x, (k, t) in enumerate(seq):
            if x + 6 < 28:
                main.append(rd((x+6) & 7, sg, *seq[x+6])); main.append("s_waitcnt lgkmcnt(6)")
            else:
                main.append(f"s_waitcnt lgkmcnt({27-x})")
            c = "0" if (sg == 0 and k == 0) else vr(ACC(t),4)
            main.append(f"{MF16} {vr(ACC(t),4)}, {ar(WD(sg*7+k),4)}, {vr(HB(x&7),4)}, {c}")
        fill = []
        if sg + 3 < 8: fill += items(sg+3)
        if sg == 4: fill += hcl
        a(interleave(main, fill))
        if sg == 7:
            a("s_waitcnt vmcnt(0)")
            for x in range(2):
                for t in range(4):
                    a(f"{MF16} {vr(ACC(t),4)}, {vr(SEL(x),4)}, {vr(HC(t,x),4)}, {vr(ACC(t),4)}")
    a.stamp(10)
    for k in range(4):
        for r in range(4):
            a(f"v_add_f32 v{ACC(k)+r}, v{24+k}, v{ACC(k)+r}")
        a(f"v_cvt_pk_bf16_f32 v{56+2*k}, v{ACC(k)}, v{ACC(k)+1}")
        a(f"v_cvt_pk_bf16_f32 v{57+2*k}, v{ACC(k)+2}, v{ACC(k)+3}")
        a(f"global_store_dwordx2 v9, v[{56+2*k}:{57+2*k}], s[4:5] offset:{1024*k}")
    if STAMPS: a("s_waitcnt vmcnt(0)")
    a.stamp(11); a.stamp(15)
    a.dump_stamps(WS_ST + (2 << 20))
    a("K3_done:")
    a("s_endpgm")
    return a.finalize()

def build_all():
    out = []
    hdr = open("sequential_preLN__spectral_fnet__glu_gated_glu__prompt.s.ref").read().split("\n")
    out += [l for l in hdr if l.startswith(";") and "@launch" not in l]
    out.append(f"; @launch kernel=k1_kernel grid=(256,1,1) block=(512,1,1) lds={K1_LDS}")
    out.append(f"; @launch kernel=k2_kernel grid=(256,1,1) block=(256,1,1) lds={K2_LDS}")
    if not FUSE: out.append(f"; @launch kernel=k3_kernel grid=(256,1,1) block=(256,1,1) lds={K3_LDS}")
    out.append('.amdgcn_target "amdgcn-amd-amdhsa--gfx950"')
    out.append(".text")
    out.append(header("k1_kernel") + gen_k1())
    out.append(header("k2_kernel") + gen_k2())
    if not FUSE: out.append(header("k3_kernel") + gen_k3())
    out.append('.section .rodata,"a"')
    for k in (kd("k1_kernel", 256, 256), kd("k2_kernel", 512, 256)) + (() if FUSE else (kd("k3_kernel", 128+224, 128),)):
        out.append(".p2align 6\n" + k)
    return "\n".join(out) + "\n"

if __name__ == "__main__":
    for x in sys.argv[2:]:
        if x == "stamps": STAMPS = True
        elif "=" in x:
            k_, v_ = x.split("="); globals()[k_] = int(v_)
    open(sys.argv[1] if len(sys.argv) > 1 else "v5.s", "w").write(build_all())
```

```python
import sys, math, struct
from asmlib import Asm, vr, ar, sr, weave, L

WS_V   = 0
WS_MX  = 2 << 20
WS_X0  = (2 << 20) + 8192
WS_MT  = (2 << 20) + (64 << 10)
WS_FL  = (2 << 20) + (128 << 10)
WS_XP  = 3 << 20
WS_HC  = 5 << 20
WS_WUP = 8 << 20
WS_WD  = 12 << 20
WS_HH  = 16 << 20
WS_ST  = 32 << 20
STAMPS = False
ROT2 = False
ROTP = False
ROT3 = False
DOTS_IN_C = True
FUSE = True
WD_IN_MAIN = 6
K1SC = 0
DBG = 0
NOHELP = 0
CODEPF = 1
FINE = 0
GRAM = 1
EARLY_SU = 1
HSLEEP = 0

def f2u(f): return struct.unpack('<I', struct.pack('<f', f))[0]
def hx(f): return "0x%08x" % f2u(f)
def kd(name, vgpr, accum, sgpr=102):
    return f"""
.amdhsa_kernel {name}
  .amdhsa_next_free_vgpr {vgpr}
  .amdhsa_next_free_sgpr {sgpr}
  .amdhsa_accum_offset {accum}
  .amdhsa_group_segment_fixed_size 0
  .amdhsa_kernarg_size 96
  .amdhsa_user_sgpr_count 2
  .amdhsa_user_sgpr_kernarg_segment_ptr 1
  .amdhsa_system_sgpr_workgroup_id_x 1
.end_amdhsa_kernel
"""
def header(name):
    return f".globl {name}\n.p2align 8\n.type {name},@function\n{name}:\n"

def interleave(main, fill, key='v_mfma'):
    out = []
    nm = sum(1 for m in main if m.startswith(key))
    fi = 0; seen = 0
    for m in main:
        out.append(m)
        if m.startswith(key):
            seen += 1
            tgt = (len(fill) * seen + nm - 1) // nm
            while fi < tgt:
                out.append(fill[fi]); fi += 1
    out += fill[fi:]
    return out

MF16 = "v_mfma_f32_16x16x32_bf16"
MF32 = "v_mfma_f32_32x32x16_bf16"

K1_LDS_F = 131072
K1_LDS_HELP = 147456
K1_LDS = 163840

def gen_k1():
    a = Asm(); a.stamps = STAMPS
    CS = lambda t, cs, k: 64 + ((t*2 + cs)*4 + k)*4
    G = lambda hi, rho, tile: 128 + ((hi*2 + rho)*2 + tile)*4
    FB = lambda s, tile: 160 + (s*6 + tile)*4
    XB = lambda s, hi, rho: 160 + (s*6 + 2 + hi*2 + rho)*4
    SM = lambda rho: 208 + rho*4
    SQ = lambda rho: 216 + rho*4
    ONES = 224
    a(f"""
    s_cmp_ge_u32 s2, 256
    s_cbranch_scc1 K1_done
    s_load_dwordx2 s[4:5], s[0:1], 0
    s_load_dwordx2 s[6:7], s[0:1], 88
    s_load_dwordx4 s[8:11], s[0:1], 48
    s_load_dwordx2 s[12:13], s[0:1], 64
    v_lshrrev_b32 v1, 6, v0
    v_and_b32 v2, 63, v0
    v_readfirstlane_b32 s14, v1
    v_and_b32 v3, 15, v2
    v_lshrrev_b32 v4, 4, v2
    v_lshlrev_b32 v13, 4, v2         ; lane*16
    s_and_b32 s15, s2, 7
    s_lshl_b32 s15, s15, 1
    s_bfe_u32 s16, s2, 0x10003
    s_or_b32 s15, s15, s16           ; s2 index
    s_lshr_b32 s16, s2, 4            ; eb
    s_cmp_ge_u32 s14, 4
    s_cbranch_scc1 K1_helper
    """)
    if DBG:
        a("""
        s_memrealtime s[96:97]
        s_load_dwordx2 s[98:99], s[0:1], 80
        s_waitcnt lgkmcnt(0)
        s_and_b32 s100, s2, 0x3f
        s_cmp_lg_u32 s100, 0
        s_cbranch_scc1 DBG_k1_0
        @cond_begin
        s_lshr_b32 s100, s2, 6
        s_lshl_b32 s100, s100, 4
        s_add_u32 s100, s100, 0
        v_mov_b32 v250, s100
        v_mov_b32 v251, s96
        s_mov_b64 s[100:101], exec
        s_mov_b64 exec, 1
        global_store_dword v250, v251, s[98:99]
        s_mov_b64 exec, s[100:101]
        @cond_end
        DBG_k1_0:
        """)
    a.stamp(0); a.stamp(14)
    a(f"""
    v_lshrrev_b32 v5, 2, v2
    v_lshlrev_b32 v5, 17, v5
    s_lshl_b32 s17, s14, 15
    s_lshl_b32 s18, s15, 10
    s_add_u32 s18, s18, s17
    v_add_u32 v5, s18, v5
    v_sub_u32 v6, 0, v4
    v_xor_b32 v6, v6, v2
    v_and_b32 v6, 3, v6
    v_lshl_add_u32 v7, v6, 4, v5
    s_and_b32 s46, s16, 7            ; rot
    """)
    for b in range(8):
        a(f"""
        s_add_u32 s47, s46, {b}
        s_and_b32 s47, s47, 7
        s_lshl_b32 s47, s47, 6
        v_add_u32 v{240+b}, s47, v7
        """)
    a("""
    s_waitcnt lgkmcnt(0)
    s_add_u32 s48, s4, 0x4000
    s_addc_u32 s49, s5, 0
    """)
    xi = []
    for k in range(8):
        for hi in range(2):
            for rho in range(2):
                kk = k + 8*hi
                tag = f" ;@tag=x{k}" if (hi == 1 and rho == 1) else ""
                xi.append([f"s_add_u32 m0, s17, {(rho*16+kk)*1024 - 512*hi}",
                           f"global_load_lds_dwordx4 v{240+k}, {'s[48:49]' if rho else 's[4:5]'} offset:{512*hi}{tag}"])
    for it in xi[:8]: a(it)
    a.stamp(1)
    fg = L(f"""
    s_mov_b32 s20, 0x41c80000
    s_lshl_b32 s21, s16, 4
    s_add_u32 s21, s21, 1
    v_add_u32 v9, s21, v3
    v_cvt_f32_u32 v10, v9
    v_mul_f32 v10, {hx(-1.0/512)}, v10
    v_lshlrev_b32 v11, 31, v9
    v_or_b32 v56, 1.0, v11
    s_lshl_b32 s21, s14, 1
    s_add_u32 s21, s21, s46
    s_add_u32 s50, s21, 1
    s_and_b32 s21, s21, 7
    s_and_b32 s50, s50, 7
    s_lshl_b32 s21, s21, 5
    s_lshl_b32 s50, s50, 5
    v_lshlrev_b32 v12, 3, v4
    v_add_u32 v62, s50, v12
    v_add_u32 v12, s21, v12
    v_cvt_f32_u32 v12, v12
    v_cvt_f32_u32 v62, v62
    v_mul_f32 v12, v10, v12
    v_mul_f32 v62, v10, v62
    s_lshl_b32 s21, s14, 12
    s_add_u32 s21, s21, {K1_LDS_F}
    v_add_u32 v14, s21, v13
    """)
    fg.append("""s_cmp_eq_u32 s16, 15
    s_cselect_b32 s22, 0x80008000, 0
    s_cselect_b32 s23, 0x80008000, 0
    s_cselect_b32 s18, 0x8000, 0
    s_cmp_eq_u32 s14, 0
    s_cselect_b32 s18, s18, 0
    s_mov_b32 s19, 0""")
    fg += L("""
    v_mov_b32 v15, 0x3f80
    v_cndmask_b32 v57, v56, 0, s[22:23]
    v_cndmask_b32 v58, 0, 1.0, s[22:23]
    """)
    for kk in range(2):
        if kk == 1: fg.append("v_mov_b32 v12, v62")
        for j in range(8):
            fg.append(f"v_cos_f32 v{16+j}, v12")
            fg.append(f"v_sin_f32 v{24+j}, v12")
            if j < 7: fg.append("v_add_f32 v12, v10, v12")
        o = 32 + kk*8
        for jj in range(4):
            fg.append(f"v_cvt_pk_bf16_f32 v{o+jj}, v{16+2*jj}, v{17+2*jj}")
            fg.append(f"v_cvt_pk_bf16_f32 v{o+4+jj}, v{24+2*jj}, v{25+2*jj}")
        if kk == 1: fg.append(f"v_cndmask_b32 v{o+4}, v{o+4}, v15, s[18:19]")
        fg.append(f"ds_write_b128 v14, {vr(o,4)} offset:{kk*2048}")
        fg.append(f"ds_write_b128 v14, {vr(o+4,4)} offset:{kk*2048+1024}")
    ad = L(f"""
    v_lshrrev_b32 v5, 2, v3
    v_sub_u32 v5, 0, v5
    v_and_b32 v5, 3, v5
    v_xor_b32 v6, v5, v4
    v_lshlrev_b32 v6, 4, v6
    v_lshl_add_u32 v6, v3, 6, v6
    v_add_u32 v6, s17, v6
    v_add_u32 v61, {K1_LDS_F}, v13
    """)
    for r in range(4): ad.append(f"v_mov_b32 v{ONES+r}, 0x3f803f80")
    a(weave(fg + ad, xi[8:16]))
    a("s_waitcnt lgkmcnt(0)")
    a.stamp(2)
    a("s_barrier")
    cs = L(f"""
    s_lshl_b32 s21, s14, 4
    v_add_u32 v9, s21, v3
    v_cvt_f32_u32 v10, v9
    v_mul_f32 v10, {hx(1.0/128)}, v10
    v_mul_f32 v11, {hx(8.0)}, v10
    v_lshlrev_b32 v12, 5, v4
    v_cvt_f32_u32 v12, v12
    v_mul_f32 v12, v10, v12
    v_mov_b32 v15, 0x80008000
    """)
    for k in range(4):
        for hh in range(2):
            cs.append("v_mov_b32 v14, v12")
            for r in range(4):
                j = hh*4 + r
                cs.append(f"v_cos_f32 v{16+j}, v14")
                cs.append(f"v_sin_f32 v{24+j}, v14")
                if r < 3: cs.append("v_add_f32 v14, v11, v14")
            cs.append("v_add_f32 v12, v10, v12")
        for jj in range(4):
            cs.append(f"v_cvt_pk_bf16_f32 v{CS(0,0,k)+jj}, v{16+2*jj}, v{17+2*jj}")
            cs.append(f"v_cvt_pk_bf16_f32 v{CS(0,1,k)+jj}, v{24+2*jj}, v{25+2*jj}")
        for c_ in range(2):
            for jj in range(2):
                cs.append(f"v_mov_b32 v{CS(1,c_,k)+jj}, v{CS(0,c_,k)+jj}")
                cs.append(f"v_xor_b32 v{CS(1,c_,k)+2+jj}, v15, v{CS(0,c_,k)+2+jj}")
    cs.append("v_mul_u32_u24 v16, 80, v4")
    cs.append(f"""s_sub_u32 s21, 23, s16
    s_cmp_lt_u32 s16, 8
    s_cselect_b32 s21, s16, s21
    s_cselect_b32 s24, 16, 0
    s_add_u32 s50, s21, 1
    s_and_b32 s50, s50, 15
    s_sub_u32 s51, s21, s46
    s_and_b32 s51, s51, 7
    s_and_b32 s21, s21, 8
    s_add_u32 s21, s21, s51
    s_lshl_b32 s21, s21, 10
    s_sub_u32 s51, s50, s46
    s_and_b32 s51, s51, 7
    s_and_b32 s50, s50, 8
    s_add_u32 s50, s50, s51
    s_lshl_b32 s50, s50, 10
    s_mov_b32 s52, 0
    s_mov_b32 s53, 0xffff0000""")
    cs += L(f"""
    v_add_u32 v25, s21, v6
    v_add_u32 v26, 1, v4
    v_and_b32 v26, 3, v26
    v_xor_b32 v26, v26, v5
    v_lshlrev_b32 v26, 4, v26
    v_lshl_add_u32 v26, v3, 6, v26
    v_mov_b32 v27, s21
    v_mov_b32 v28, s50
    v_cndmask_b32 v27, v27, v28, s[52:53]
    v_add3_u32 v26, v26, v27, s17
    """)
    cs += L(f"""
    s_lshl_b32 s21, s14, 5
    s_add_u32 s21, s21, s15
    s_lshl_b32 s26, s21, 14
    s_lshl_b32 s27, s46, 11
    s_add_u32 s26, s26, s27
    s_lshr_b32 s27, s16, 3
    s_lshl_b32 s27, s27, 10
    s_add_u32 s26, s26, s27
    s_add_u32 s26, s26, {WS_XP}
    v_add_u32 v28, s26, v13
    v_add_u32 v29, 0x40000, v28
    v_mov_b32 v30, s24
    v_lshlrev_b32 v31, 14, v9
    s_lshl_b32 s26, s16, 10
    s_lshl_b32 s27, s15, 6
    s_add_u32 s26, s26, s27
    v_add_u32 v31, s26, v31
    v_lshl_add_u32 v31, v4, 4, v31
    v_add_u32 v17, 0x100000, v31
    v_add_u32 v18, s17, v13
    v_add_u32 v19, 0x10000, v13
    s_mov_b32 s25, {hx(1.0/512)}
    v_mov_b32 v27, {hx(1e-5)}
    """)
    def reads(k):
        s = k & 1
        o = [f"@waitv x{k}",
             f"ds_read_b128 {vr(FB(s,0),4)}, v61 offset:{(k*2)*1024}",
             f"ds_read_b128 {vr(FB(s,1),4)}, v61 offset:{(k*2+1)*1024}"]
        for hi in range(2):
            for rho in range(2):
                o.append(f"ds_read_b128 {vr(XB(s,hi,rho),4)}, v6 offset:{(rho*16 + k + 8*hi)*1024}")
        return o
    for it in xi[16:20]: a(it)
    a(reads(0))
    ncs = len(cs); per = (ncs + 6) // 7
    for k in range(8):
        seq = []
        if k < 7:
            seq += reads(k+1); seq.append("s_waitcnt lgkmcnt(6)")
        else:
            seq += L(f"""
            ds_read_b128 v[32:35], v25
            ds_read_b32 v36, v26
            ds_read_b128 v[40:43], v25 offset:16384
            ds_read_b32 v44, v26 offset:16384
            s_waitcnt lgkmcnt(4)
            """)
        s = k & 1
        if k == 0:
            seq.append(f"v_lshlrev_b32 v59, 16, v{XB(0,0,0)}")
            seq.append(f"v_lshlrev_b32 v60, 16, v{XB(0,0,1)}")
        for hi in range(2):
            for rho in range(2):
                first = (k == 0 and hi == 0)
                x = vr(XB(s,hi,rho),4)
                seq.append(f"{MF16} {vr(SQ(rho),4)}, {x}, {x}, {'0' if first else vr(SQ(rho),4)}")
                seq.append(f"{MF16} {vr(SM(rho),4)}, {x}, {vr(ONES,4)}, {'0' if first else vr(SM(rho),4)}")
        for hi in range(2):
            for rho in range(2):
                for tile in range(2):
                    c = "0" if k == 0 else vr(G(hi,rho,tile),4)
                    seq.append(f"{MF16} {vr(G(hi,rho,tile),4)}, {vr(XB(s,hi,rho),4)}, {vr(FB(s,tile),4)}, {c}")
        fill = cs[k*per:(k+1)*per] if k < 7 else []
        if k < 3:
            fill = weave(fill, xi[20+4*k:24+4*k])
        a(interleave(seq, fill))
    a.stamp(3)
    for rho in range(2):
        for r in range(4):
            a(f"ds_bpermute_b32 v{160+rho*4+r}, v16, v{SQ(rho)+r} offset:{4*r}")
    a("s_waitcnt lgkmcnt(8)")
    for rho in range(2):
        b = 32 + rho*8
        for k in range(4):
            a(f"v_alignbit_b32 v{48+rho*4+k}, v{b+k+1}, v{b+k}, v30")
        a(f"global_store_dwordx4 v{28+rho}, {vr(48+rho*4,4)}, s[6:7]")
    for rho in range(2):
        for r in range(4):
            a(f"v_mul_f32 v{SM(rho)+r}, s25, v{SM(rho)+r}")
    for rho in range(2):
        for tile in range(2):
            for r in range(4):
                a(f"v_fma_f32 v{G(0,rho,tile)+r}, v{G(1,rho,tile)+r}, v{56+tile}, v{G(0,rho,tile)+r}")
    for rho in range(2):
        for r in range(4):
            a(f"v_fma_f32 v{G(0,rho,1)+r}, -v{SM(rho)+r}, v58, v{G(0,rho,1)+r}")
    a("s_waitcnt lgkmcnt(0)")
    for rho in range(2):
        for r in range(4):
            q_ = 160+rho*4+r
            a(f"v_fma_f32 v{q_}, v{q_}, s25, v27")
            a(f"v_fma_f32 v{q_}, -v{SM(rho)+r}, v{SM(rho)+r}, v{q_}")
            a(f"v_rsq_f32 v{q_}, v{q_}")
    for rho in range(2):
        for tile in range(2):
            for r in range(4):
                a(f"v_mul_f32 v{G(0,rho,tile)+r}, v{G(0,rho,tile)+r}, v{160+rho*4+r}")
    for tile in range(2):
        for rho in range(2):
            a(f"v_cvt_pk_bf16_f32 v{184+tile*4+rho*2}, v{G(0,rho,tile)}, v{G(0,rho,tile)+1}")
            a(f"v_cvt_pk_bf16_f32 v{184+tile*4+rho*2+1}, v{G(0,rho,tile)+2}, v{G(0,rho,tile)+3}")
    a(f"""
    ds_write_b128 v18, v[184:187]
    ds_write_b128 v18, v[188:191] offset:1024
    s_cmp_lg_u32 s16, 0
    s_cbranch_scc1 K1_nomx
    @cond_begin
    s_lshl_b32 s26, s21, 6
    s_add_u32 s26, s26, {WS_MX}
    v_lshl_add_u32 v20, v4, 4, s26
    v_lshl_add_u32 v21, v3, 2, s26
    s_mov_b64 s[28:29], exec
    s_mov_b32 exec_lo, 0x00010001
    s_mov_b32 exec_hi, 0x00010001
    global_store_dwordx4 v20, {vr(SM(0),4)}, s[6:7]
    global_store_dwordx4 v20, {vr(SM(1),4)}, s[6:7] offset:1024
    s_mov_b64 exec, 0xffff
    v_add_u32 v21, {WS_X0 - WS_MX}, v21
    global_store_dword v21, v59, s[6:7]
    global_store_dword v21, v60, s[6:7] offset:1024
    s_mov_b64 exec, s[28:29]
    @cond_end
    K1_nomx:
    s_waitcnt lgkmcnt(0)
    """)
    a.stamp(4)
    a("s_barrier")
    a.stamp(5)
    AR = lambda k: 192 + k*4
    AI = lambda k: 160 + k*4
    NR = lambda k: 232 + k*4
    for k in range(4):
        b = 13 if k < 2 else 19
        a(f"ds_read_b128 {vr(AR(k),4)}, v{b} offset:{(k&1)*32768}")
        a(f"ds_read_b128 {vr(AI(k),4)}, v{b} offset:{(k&1)*32768 + 1024}")
    VA = lambda t, c: 128 + (t*2 + c)*4
    for k in range(4):
        a(f"s_waitcnt lgkmcnt({6-2*k})")
        for jj in range(4):
            a(f"v_xor_b32 v{NR(k)+jj}, v15, v{AR(k)+jj}")
        for t in range(2):
            c0 = "0" if k == 0 else vr(VA(t,0),4)
            c1 = "0" if k == 0 else vr(VA(t,1),4)
            a(f"{MF16} {vr(VA(t,0),4)}, {vr(AR(k),4)}, {vr(CS(t,0,k),4)}, {c0}")
            a(f"{MF16} {vr(VA(t,1),4)}, {vr(AI(k),4)}, {vr(CS(t,0,k),4)}, {c1}")
        for t in range(2):
            a(f"{MF16} {vr(VA(t,0),4)}, {vr(AI(k),4)}, {vr(CS(t,1,k),4)}, {vr(VA(t,0),4)}")
            a(f"{MF16} {vr(VA(t,1),4)}, {vr(NR(k),4)}, {vr(CS(t,1,k),4)}, {vr(VA(t,1),4)}")
    for t in range(2):
        o = 32 + t*4
        a(f"v_cvt_pk_bf16_f32 v{o}, v{VA(t,0)}, v{VA(t,0)+1}")
        a(f"v_cvt_pk_bf16_f32 v{o+1}, v{VA(t,0)+2}, v{VA(t,0)+3}")
        a(f"v_cvt_pk_bf16_f32 v{o+2}, v{VA(t,1)}, v{VA(t,1)+1}")
        a(f"v_cvt_pk_bf16_f32 v{o+3}, v{VA(t,1)+2}, v{VA(t,1)+3}")
        a(f"global_store_dwordx4 v{31 if t == 0 else 17}, {vr(o,4)}, s[6:7]")
    a.stamp(6)
    if STAMPS: a("s_waitcnt vmcnt(0)")
    if DBG: a("s_waitcnt vmcnt(0)")
    if DBG:
        a("""
        s_memrealtime s[96:97]
        s_load_dwordx2 s[98:99], s[0:1], 80
        s_waitcnt lgkmcnt(0)
        s_and_b32 s100, s2, 0x3f
        s_cmp_lg_u32 s100, 0
        s_cbranch_scc1 DBG_k1_1
        @cond_begin
        s_lshr_b32 s100, s2, 6
        s_lshl_b32 s100, s100, 4
        s_add_u32 s100, s100, 4
        v_mov_b32 v250, s100
        v_mov_b32 v251, s96
        s_mov_b64 s[100:101], exec
        s_mov_b64 exec, 1
        global_store_dword v250, v251, s[98:99]
        s_mov_b64 exec, s[100:101]
        @cond_end
        DBG_k1_1:
        """)
    a.stamp(7); a.stamp(15)
    a.dump_stamps(WS_ST)
    a("s_endpgm")
    a("K1_helper:")
    a("s_mov_b32 s45, s14")
    a.stamp(0); a.stamp(14)
    if CODEPF:
        a(f"""
        s_lshr_b32 s22, s2, 3
        s_lshl_b32 s22, s22, 2
        s_add_u32 s22, s22, s14
        s_sub_u32 s22, s22, 4
        s_cmp_ge_u32 s22, 6
        s_cbranch_scc1 K1_nopf0
        @cond_begin
        s_getpc_b64 s[30:31]
        K1_pc0:
        s_sub_u32 s30, s30, K1_pc0-k1_kernel
        s_subb_u32 s31, s31, 0
        s_lshl_b32 s22, s22, 10
        v_add_u32 v27, s22, v13
        global_load_dwordx4 v[64:67], v27, s[30:31] offset:512
        @cond_end
        K1_nopf0:
        """)
    a("s_barrier")
    for _ in range(HSLEEP): a("s_sleep 16")
    if NOHELP: a("s_cmp_ge_u32 s2, 4\ns_cbranch_scc1 K1_done")
    a(f"""
    s_sub_u32 s14, s14, 4
    s_lshl_b32 s17, s2, 2
    s_add_u32 s17, s17, s14
    s_lshl_b32 s24, s14, 12
    s_add_u32 s24, s24, {K1_LDS_HELP}
    v_add_u32 v14, s24, v13
    v_lshrrev_b32 v5, 2, v3
    v_and_b32 v6, 3, v3
    v_lshlrev_b32 v6, 3, v6
    v_lshrrev_b32 v7, 1, v4
    v_lshl_add_u32 v7, v7, 3, v5
    v_lshl_add_u32 v7, v7, 6, v6
    v_and_b32 v8, 1, v4
    v_lshl_add_u32 v7, v8, 11, v7
    v_add_u32 v7, s24, v7
    v_lshrrev_b32 v9, 1, v4
    v_lshlrev_b32 v9, 4, v9
    v_lshl_add_u32 v9, v8, 2, v9
    v_add_u32 v9, v9, v5
    v_lshl_add_u32 v9, v9, 7, v6
    v_add_u32 v9, s24, v9
    v_lshrrev_b32 v10, 3, v2
    v_and_b32 v11, 7, v2
    v_lshlrev_b32 v11, 4, v11
    v_lshl_add_u32 v10, v10, 10, v11
    s_waitcnt lgkmcnt(0)
    s_cmp_ge_u32 s17, 16
    s_cbranch_scc1 K1_nofl
    @cond_begin
    s_lshl_b32 s26, s17, 10
    s_add_u32 s26, s26, {WS_FL}
    v_add_u32 v12, s26, v13
    v_mov_b32 v16, 0
    v_mov_b32 v17, 0
    v_mov_b32 v18, 0
    v_mov_b32 v19, 0
    global_store_dwordx4 v12, v[16:19], s[6:7]
    s_nop 1
    @cond_end
    K1_nofl:
    """)
    if CODEPF:
        a(f"""
        s_sub_u32 s26, s17, 16
        s_cmp_ge_u32 s26, 21
        s_cbranch_scc1 K1_nopf
        @cond_begin
        s_getpc_b64 s[28:29]
        K1_pc:
        s_add_u32 s28, s28, k2_kernel-K1_pc
        s_addc_u32 s29, s29, 0
        s_lshl_b32 s26, s26, 10
        v_add_u32 v12, s26, v13
        global_load_dwordx4 v[60:63], v12, s[28:29]
        @cond_end
        K1_nopf:
        """)
    def down_load(sreg, rb, sd):
        a(f"""
        s_lshr_b32 s26, {sreg}, 3
        s_and_b32 s27, {sreg}, 7
        s_and_b32 s28, s26, 15
        s_mul_i32 s28, s28, 7
        s_lshr_b32 s29, s26, 4
        s_lshl_b32 s29, s29, 1
        s_add_u32 s28, s28, s29
        s_sub_u32 s29, s26, 48
        s_mul_i32 s29, s29, 14
        s_add_u32 s29, s29, 6            ; case C
        s_cmp_lt_u32 s26, 48
        s_cselect_b32 s28, s28, s29      ; tA
        s_cselect_b32 s29, 1, 7
        s_lshl_b32 s28, s28, 14
        s_lshl_b32 s29, s29, 14
        s_sub_u32 s29, s29, 0x2000
        s_lshl_b32 s35, s27, 7
        s_add_u32 s28, s28, s35
        v_add_u32 v12, s28, v10
        s_mul_i32 s28, s27, 224
        s_add_u32 s28, s28, s26
        s_lshl_b32 s28, s28, 10
        s_add_u32 s{sd}, s28, {WS_WD}
        """)
        for ins in range(4):
            a(f"global_load_dwordx4 {vr(rb+4*ins,4)}, v12, s[12:13]")
            if ins == 1: a("v_add_u32 v12, s29, v12")
            elif ins < 3: a("v_add_u32 v12, 0x2000, v12")
    def down_proc(rb, sd):
        for ins in range(4):
            a(f"ds_write_b128 v14, {vr(rb+4*ins,4)} offset:{ins*1024}")
        a(f"v_add_u32 v12, s{sd}, v13")
        a("s_waitcnt lgkmcnt(0)")
        for ct in range(4):
            a(f"ds_read_b64_tr_b16 v[{48+ct*4}:{49+ct*4}], v9 offset:{ct*32}")
            a(f"ds_read_b64_tr_b16 v[{50+ct*4}:{51+ct*4}], v9 offset:{ct*32 + 1024}")
        for ct in range(4):
            a(f"s_waitcnt lgkmcnt({6-2*ct})")
            a(f"global_store_dwordx4 v12, {vr(48+ct*4,4)}, s[6:7]")
            if ct < 3: a(f"v_add_u32 v12, {56*1024}, v12")
    a("""
    s_cmp_ge_u32 s17, 896
    s_cbranch_scc1 K1_hA_down
    """)
    a.cond_begin()
    a(f"""
    s_and_b32 s26, s17, 15
    s_lshr_b32 s27, s17, 4
    s_and_b32 s28, s26, 7
    s_lshl_b32 s28, s28, 5
    s_add_u32 s29, s28, 1
    s_sub_u32 s28, 511, s28
    s_cmp_lt_u32 s26, 8
    s_cselect_b32 s30, s29, s28
    s_cselect_b32 s31, 1, -1
    s_cselect_b32 s32, -1, 256
    s_lshl_b32 s33, s27, 6
    s_mov_b32 s34, 3584
    s_lshl_b32 s28, s27, 5
    s_add_u32 s28, s28, s26
    s_lshl_b32 s28, s28, 11
    s_add_u32 s40, s28, {WS_WUP}
    v_lshrrev_b32 v11, 2, v2
    v_and_b32 v15, 3, v2
    v_lshlrev_b32 v15, 4, v15
    """)
    for ins in range(2):
        a(f"""
        v_add_u32 v12, {16*ins}, v11
        v_mul_lo_u32 v12, v12, s31
        v_add_u32 v12, s30, v12
        v_cmp_ne_u32 vcc, s32, v12
        v_cndmask_b32 v12, 0, v12, vcc
        v_mul_lo_u32 v12, v12, s34
        v_add3_u32 v12, v12, s33, v15
        global_load_dwordx4 {vr(16+4*ins,4)}, v12, s[8:9]
        global_load_dwordx4 {vr(24+4*ins,4)}, v12, s[10:11]
        """)
    a("s_branch K1_hA_go")
    a.cond_end()
    a("K1_hA_down:")
    a.cond_begin()
    a("s_sub_u32 s25, s17, 896")
    down_load("s25", 16, 40)
    a.cond_end()
    a("K1_hA_go:")
    a("""
    s_cmp_ge_u32 s17, 320
    s_cbranch_scc1 K1_hB_skip
    """)
    a.cond_begin()
    a("s_add_u32 s25, s17, 128")
    down_load("s25", 32, 41)
    a.cond_end()
    a("K1_hB_skip:")
    a.stamp(1)
    a("s_waitcnt vmcnt(0)")
    a.stamp(2)
    a("""
    s_cmp_ge_u32 s17, 896
    s_cbranch_scc1 K1_hA_down2
    """)
    a.cond_begin()
    for ins in range(4):
        a(f"ds_write_b128 v14, {vr(16+4*ins,4)} offset:{ins*1024}")
    a("v_add_u32 v12, s40, v13")
    a("s_waitcnt lgkmcnt(0)")
    idx = 0
    for Pp in range(2):
        for aa in range(2):
            a(f"ds_read_b64_tr_b16 v[{48+idx*4}:{49+idx*4}], v7 offset:{aa*256 + Pp*32}")
            a(f"ds_read_b64_tr_b16 v[{50+idx*4}:{51+idx*4}], v7 offset:{aa*256 + Pp*32 + 1024}")
            idx += 1
    idx = 0
    for Pp in range(2):
        for aa in range(2):
            a(f"s_waitcnt lgkmcnt({6-2*idx})")
            a(f"global_store_dwordx4 v12, {vr(48+idx*4,4)}, s[6:7] offset:{aa*1024}")
            idx += 1
        if Pp == 0: a("v_add_u32 v12, 0x8000, v12")
    a("s_branch K1_hA_go2")
    a.cond_end()
    a("K1_hA_down2:")
    a.cond_begin()
    down_proc(16, 40)
    a.cond_end()
    a("K1_hA_go2:")
    a("""
    s_cmp_ge_u32 s17, 320
    s_cbranch_scc1 K1_hend
    s_nop 1
    """)
    a.cond_begin()
    down_proc(32, 41)
    a.cond_end()
    a("K1_hend:")
    a.stamp(3)
    if STAMPS: a("s_waitcnt vmcnt(0)")
    for k in range(4, 8): a.stamp(k)
    a.stamp(15)
    a.dump_stamps(WS_ST, wave="s45")
    a("K1_done:")
    a("s_endpgm")
    txt = a.finalize()
    if K1SC:
        out = []
        inh = False
        for l in txt.split("\n"):
            if l.startswith("K1_helper:"): inh = True
            if inh and l.strip().startswith("global_store") and "sc1" not in l:
                l = l.split(";")[0].rstrip() + (" sc1" if K1SC == 1 else " nt" if K1SC == 2 else " sc0 sc1")
            out.append(l)
        txt = "\n".join(out)
    return txt

K2_LDS = 163840
REG = 40960


def arrive(name, off):
    return f"""s_lshl_b32 s22, s15, 10
    s_lshl_b32 s23, s16, 4
    s_add_u32 s22, s22, s23
    s_lshl_b32 s23, s14, 2
    s_add_u32 s22, s22, s23
    s_add_u32 s22, s22, {WS_FL + off}
    v_mov_b32 v27, s22
    v_mov_b32 v28, 1
    s_mov_b64 s[36:37], exec
    s_mov_b64 exec, 1
    global_store_dword v27, v28, s[6:7] sc1
    s_mov_b64 exec, s[36:37]"""
def poll_issue(name, off):
    return f"""s_lshl_b32 s22, s15, 10
    s_add_u32 s22, s22, {WS_FL + off}
    v_lshl_add_u32 v30, v2, 2, s22
    global_load_dword v29, v30, s[6:7] sc1 ;@tag=fl{name}"""
def poll_check(name, off):
    return [f"@waitv fl{name}", f"""v_cmp_eq_u32 vcc, 1, v29
    s_cmp_eq_u64 vcc, exec
    s_cbranch_scc1 KD_ready{name}
    @cond_begin
    s_mov_b32 s23, 0
    KD_poll{name}:
    global_load_dword v29, v30, s[6:7] sc1
    s_waitcnt vmcnt(0)
    v_cmp_eq_u32 vcc, 1, v29
    s_add_u32 s23, s23, 1
    s_cmp_eq_u64 vcc, exec
    s_cbranch_scc1 KD_ready{name}
    s_cmp_lt_u32 s23, 0x4000
    s_cbranch_scc1 KD_poll{name}
    @cond_end
    KD_ready{name}:"""]

KD_STG = 32768
def phaseD_setup(WD3):
    SEL = lambda x: 104 + x*4
    o = []
    o.append(f"""s_and_b32 s22, s16, 1
    s_lshl_b32 s22, s22, 1
    s_lshl_b32 s23, s15, 2
    s_add_u32 s46, s22, s23
    s_sub_u32 s47, 128, s46
    s_cmp_eq_u32 s46, 0
    s_cselect_b32 s47, 64, s47
    s_add_u32 s48, s46, 1
    s_sub_u32 s49, 128, s48
    s_cmp_eq_u32 s14, 1
    s_cselect_b32 s50, s47, s46
    s_cmp_eq_u32 s14, 2
    s_cselect_b32 s50, s48, s50
    s_cmp_eq_u32 s14, 3
    s_cselect_b32 s50, s49, s50
    s_mul_i32 s22, s50, 57344
    s_add_u32 s22, s22, {WS_HH}
    v_add_u32 v7, s22, v5
    s_add_u32 s24, s6, 4096
    s_addc_u32 s25, s7, 0""")
    o.append(f"""s_lshr_b32 s30, s61, 1
    s_lshl_b32 s31, s61, 4
    s_sub_u32 s32, 496, s31
    s_lshr_b32 s32, s32, 5
    s_add_u32 s32, s32, 8
    s_cmp_lt_u32 s61, 16
    s_cselect_b32 s30, s30, s32
    s_sub_u32 s33, s30, 1
    s_cmp_eq_u32 s61, 0
    s_cselect_b32 s33, 15, s33
    s_cmp_eq_u32 s61, 16
    s_cselect_b32 s33, 7, s33
    s_max_i32 s33, s33, 0
    s_and_b32 s34, s61, 1
    s_cmp_gt_u32 s61, 16
    s_cselect_b32 s34, 1, s34
    s_lshl_b32 s52, s30, 10
    s_add_u32 s52, s52, {WS_HC}
    v_add_u32 v14, s52, v5
    s_lshl_b32 s52, s33, 10
    s_add_u32 s52, s52, {WS_HC}
    v_add_u32 v15, s52, v5""")
    o += L(f"""
    v_lshlrev_b32 v6, 2, v3
    v_add_u32 v6, {WS_MT}, v6
    v_lshlrev_b32 v12, 17, v3
    v_mov_b32 v13, s61
    v_lshl_add_u32 v12, v13, 5, v12
    v_lshl_add_u32 v12, v4, 3, v12
    v_add_u32 v16, s31, v3
    v_mov_b32 v23, 0x3f80
    """)
    for x, sk in ((0, 30), (1, 33)):
        o.append(f"""s_and_b32 s52, s{sk}, 7
        s_lshl_b32 s52, s52, 5
        s_sub_u32 s56, -1, s52
        s_sub_u32 s57, 511, s52
        s_cmp_lt_u32 s{sk}, 8
        s_cselect_b32 s56, s56, s57
        s_cselect_b32 s57, 1, -1
        s_cmp_eq_u32 s{sk}, 15
        s_cselect_b32 s58, 0, -1
        s_cselect_b32 s59, 256, -1""")
        o += L(f"""
        v_mul_lo_u32 v17, v16, s57
        v_add_u32 v17, s56, v17
        v_cmp_eq_u32 vcc, s59, v16
        v_cndmask_b32 v17, v17, -1, vcc
        v_cmp_eq_u32 vcc, s58, v16
        v_cndmask_b32 v17, v17, 31, vcc
        """)
        if x == 1:
            o.append("""s_cmp_eq_u32 s34, 1
            s_cselect_b32 s52, -1, 0
            v_or_b32 v17, s52, v17""")
        o += L(f"""
        v_bfe_u32 v18, v17, 2, 2
        v_cmp_eq_u32 vcc, v18, v4
        v_cndmask_b32 v17, -1, v17, vcc
        v_lshrrev_b32 v18, 4, v17
        v_lshlrev_b32 v18, 1, v18
        v_bfe_u32 v19, v17, 1, 1
        v_add_u32 v18, v18, v19
        v_and_b32 v19, 1, v17
        v_lshlrev_b32 v19, 4, v19
        v_lshlrev_b32 v19, v19, v23
        """)
        for jj in range(4):
            o.append(f"v_cmp_eq_u32 vcc, {jj}, v18")
            o.append(f"v_cndmask_b32 v{SEL(x)+jj}, 0, v19, vcc")
    return o

QD = [2, 1, 3, 4, 0, 2, 1]
def d_items(sg):
    l = []
    for k in range(0, 8, 2):
        tag = f" ;@tag=s{sg}" if k == 6 else ""
        b = 's[6:7]' if k < 4 else 's[24:25]'
        x = [f"s_add_u32 m0, s21, {QD[sg]*8192 + (k & 4)*1024}",
             f"global_load_lds_dwordx4 v7, {b} offset:{(k&3)*1024} sc1",
             f"global_load_lds_dwordx4 v7, {b} offset:{(k&3)*1024+1024} sc1{tag}"]
        if k == 6: x.append("v_add_u32 v7, 0x2000, v7")
        l.append("\n".join(x))
    return l

def phaseD(a, ep6, wd_rest, WD3, su):
    HB = lambda s: 128 + s*4
    ACC = lambda k: 160 + k*4
    HC = lambda k, x: 176 + (k*2 + x)*4
    SEL = lambda x: 104 + x*4
    MT = 216
    a(weave(ep6, wd_rest))
    if FINE: a.stamp(2)
    a(poll_check("B", 256))
    if FINE: a.stamp(3)
    if su: a(su)
    if FINE: a.stamp(4)
    a.stamp(5 if FINE else 8)
    hcl = []
    for k in range(4):
        hcl.append(f"s_lshl_b32 s22, s{46+k}, 14\nv_add_u32 v17, s22, v14\nglobal_load_dwordx4 {vr(HC(k,0),4)}, v17, s[6:7] sc1\nv_add_u32 v17, s22, v15\nglobal_load_dwordx4 {vr(HC(k,1),4)}, v17, s[6:7] sc1")
        hcl.append(f"s_lshl_b32 s22, s{46+k}, 6\nv_add_u32 v17, s22, v6\nglobal_load_dword v{MT+k}, v17, s[6:7] sc1")
    def rd(slot, sg, k, tile):
        return f"ds_read_b128 {vr(HB(slot),4)}, v{32+tile} offset:{QD[sg]*8192 + k*1024}"
    for sg in range(7):
        a(f"@waitv s{sg}" + (",wd" if sg == 0 else ""))
        a("s_barrier")
        if FINE: a.stamp(6 + sg)
        elif sg in (0, 2, 4): a.stamp(9 + sg//2)
        seq = [(k, t) for k in range(8) for t in range(4)]
        main = [rd(x & 7, sg, *seq[x]) for x in range(6)]
        for x, (k, t) in enumerate(seq):
            if x + 6 < 32:
                main.append(rd((x+6) & 7, sg, *seq[x+6])); main.append("s_waitcnt lgkmcnt(6)")
            else:
                main.append(f"s_waitcnt lgkmcnt({31-x})")
            c = "0" if (sg == 0 and k == 0) else vr(ACC(t),4)
            main.append(f"{MF16} {vr(ACC(t),4)}, {ar(WD3(sg*8+k),4)}, {vr(HB(x&7),4)}, {c}")
        fill = []
        if sg == 0: fill = d_items(2)[:2] + ["@waitv hh5", arrive("C", 512)] + d_items(2)[2:] + d_items(3)[:2] + ["@waitv hh6", arrive("D", 768)]
        if sg == 1: fill = d_items(3)[2:] + [poll_issue("C", 512)] + hcl
        if sg == 2: fill = poll_check("C", 512) + d_items(4) + [poll_issue("D", 768)] + d_items(5)
        if sg == 3: fill = ["s_nop 0"]*16 + poll_check("D", 768) + d_items(6)
        a(interleave(main, fill))
        if sg == 4:
            for x in range(2):
                for t in range(4):
                    a(f"{MF16} {vr(ACC(t),4)}, {vr(SEL(x),4)}, {vr(HC(t,x),4)}, {vr(ACC(t),4)}")
    if not FINE: a.stamp(12)
    for k in range(4):
        a(f"s_lshl_b32 s22, s{46+k}, 10")
        a(f"v_add_u32 v{220+k}, s22, v12")
        for r in range(4):
            a(f"v_add_f32 v{ACC(k)+r}, v{MT+k}, v{ACC(k)+r}")
        a(f"v_cvt_pk_bf16_f32 v{224+2*k}, v{ACC(k)}, v{ACC(k)+1}")
        a(f"v_cvt_pk_bf16_f32 v{225+2*k}, v{ACC(k)+2}, v{ACC(k)+3}")
        a(f"global_store_dwordx2 v{220+k}, v[{224+2*k}:{225+2*k}], s[8:9]")

def gen_k2():
    a = Asm(); a.stamps = STAMPS
    H = lambda rho, k: 128 + (rho*16 + k)*4
    XF = lambda rho, k: (rho*16 + k)*4
    T = lambda rho, d: 32 + (rho*2 + d)*4
    SEL = lambda d, tb: 48 + (d*2 + tb)*4
    NEGM = lambda rho: 64 + rho*4
    ACC = lambda s, tb: 72 + (s*2 + tb)*4
    TP = lambda rho, d: 104 + (rho*2 + d)*4
    VA = lambda s, tb: 128 + (s*2 + tb)*4
    WF = lambda s: 160 + s*4
    VW = [8, 9, 25, 26]
    SC = "sc1" if FUSE else ""
    def WD3(k):
        return 4*k if k < 32 else (128 + 4*(k-32) if k < 40 else 192 + 4*(k-40))
    a(f"""
    s_cmp_ge_u32 s2, 256
    s_cbranch_scc1 K2_done
    s_load_dwordx2 s[6:7], s[0:1], 88
    s_load_dwordx4 s[8:11], s[0:1], 72
    v_lshrrev_b32 v1, 6, v0
    v_and_b32 v2, 63, v0
    v_readfirstlane_b32 s14, v1
    v_and_b32 v3, 15, v2
    v_lshrrev_b32 v4, 4, v2
    v_lshlrev_b32 v5, 4, v2
    s_and_b32 s15, s2, 3
    s_lshl_b32 s15, s15, 2
    s_bfe_u32 s16, s2, 0x20003
    s_add_u32 s15, s15, s16          ; j
    s_bfe_u32 s16, s2, 0x10002
    s_lshl_b32 s16, s16, 3
    s_lshr_b32 s17, s2, 5
    s_add_u32 s16, s16, s17          ; n
    s_lshl_b32 s17, s15, 2
    s_add_u32 s17, s17, s14          ; a0
    s_sub_u32 s18, 128, s17
    s_cmp_eq_u32 s17, 0
    s_cselect_b32 s18, 64, s18       ; a1
    s_cselect_b32 s19, 0, 16384
    s_cselect_b32 s20, 16384, 0
    s_mul_i32 s21, s14, {REG}
    s_lshl_b32 s22, s17, 14
    s_lshl_b32 s23, s18, 14
    v_add_u32 v6, s22, v5
    v_add_u32 v7, s23, v5
    v_add_u32 v12, {WS_XP}, v6
    v_add_u32 v13, {WS_XP}, v7
    s_lshl_b32 s22, s17, 6
    s_lshl_b32 s23, s18, 6
    s_add_u32 s22, s22, {WS_MX}
    s_add_u32 s23, s23, {WS_MX}
    v_lshl_add_u32 v14, v3, 2, s22
    v_lshl_add_u32 v15, v3, 2, s23
    s_cmp_ge_u32 s16, 7
    s_cselect_b32 s53, 7, 0
    s_sub_u32 s53, s16, s53
    s_cmp_ge_u32 s53, 7
    s_cselect_b32 s22, 7, 0
    s_sub_u32 s53, s53, s22
    s_cmp_ge_u32 s15, 7
    s_cselect_b32 s54, 7, 0
    s_sub_u32 s54, s15, s54
    s_cmp_ge_u32 s54, 7
    s_cselect_b32 s22, 7, 0
    s_sub_u32 s54, s54, s22
    """)
    if not ROT2: a("s_mov_b32 s53, 0")
    if not ROTP: a("s_mov_b32 s54, 0")
    for i in range(7):
        a(f"""
        s_add_u32 s{46+i}, s53, {i}
        s_cmp_ge_u32 s{46+i}, 7
        s_cselect_b32 s22, 7, 0
        s_sub_u32 s{46+i}, s{46+i}, s22
        s_lshl_b32 s{46+i}, s{46+i}, 11
        """)
    a("""
    s_waitcnt lgkmcnt(0)
    s_add_u32 s26, s6, 8192
    s_addc_u32 s27, s7, 0
    s_add_u32 s28, s6, 12288
    s_addc_u32 s29, s7, 0
    """)
    if DBG:
        a("""
        s_memrealtime s[96:97]
        s_load_dwordx2 s[98:99], s[0:1], 80
        s_waitcnt lgkmcnt(0)
        s_and_b32 s100, s2, 0x3f
        s_cmp_lg_u32 s100, 0
        s_cbranch_scc1 DBG_k2_2
        @cond_begin
        s_lshr_b32 s100, s2, 6
        s_lshl_b32 s100, s100, 4
        s_add_u32 s100, s100, 8
        v_mov_b32 v250, s100
        v_mov_b32 v251, s96
        s_mov_b64 s[100:101], exec
        s_mov_b64 exec, 1
        global_store_dword v250, v251, s[98:99]
        s_mov_b64 exec, s[100:101]
        @cond_end
        DBG_k2_2:
        """)
    a.stamp(0); a.stamp(14)
    if CODEPF:
        a(f"""
        s_lshr_b32 s22, s2, 3
        s_lshl_b32 s22, s22, 2
        s_add_u32 s22, s22, s14
        s_cmp_ge_u32 s22, 19
        s_cbranch_scc1 K2_nopf
        @cond_begin
        s_getpc_b64 s[30:31]
        K2_pc:
        s_lshl_b32 s22, s22, 10
        v_add_u32 v27, s22, v5
        global_load_dwordx4 v[244:247], v27, s[30:31] offset:1024
        @cond_end
        K2_nopf:
        """)
    for sel in range(2):
        a(f"s_add_u32 m0, s21, {sel*16384 + 12288}")
        a(f"global_load_lds_dwordx4 v{6+sel}, s[28:29] offset:3072")
    a("""
    global_load_dword v16, v14, s[6:7]
    global_load_dword v18, v15, s[6:7]
    global_load_dword v17, v14, s[26:27]
    global_load_dword v19, v15, s[26:27] ;@tag=first
    """)
    pair_items = []
    for i in range(8):
        it = []
        if i < 7:
            for sel in range(2):
                for tb in range(2):
                    x = []
                    if tb == 0: x.append(f"v_add_u32 v{252+sel}, s{46+i}, v{6+sel}")
                    x += [f"s_add_u32 m0, s21, {sel*16384 + 2*i*1024}",
                          f"global_load_lds_dwordx4 v{252+sel}, s[6:7] offset:{tb*1024}"]
                    it.append(x)
            for rho in range(2):
                for d in range(2):
                    x = []
                    if d == 0: x.append(f"v_add_u32 v{254+rho}, s{46+i}, v{12+rho}")
                    tag = f" ;@tag=p{i}" if (d == 1 and rho == 1) else ""
                    x.append(f"global_load_dwordx4 {ar(XF(rho,i+8*d),4)}, v{254+rho}, s[6:7] offset:{d*1024}{tag}")
                    it.append(x)
        else:
            for sel in range(2):
                it.append([f"s_add_u32 m0, s21, {sel*16384 + 12288}", f"global_load_lds_dwordx4 v{6+sel}, s[28:29] offset:2048"])
            for rho in range(2):
                for d in range(2):
                    tag = f" ;@tag=p{i}" if (d == 1 and rho == 1) else ""
                    it.append([f"global_load_dwordx4 {ar(XF(rho,i+8*d),4)}, v{12+rho}, s[28:29] offset:{2048+d*1024}{tag}"])
        pair_items.append(it)
    for it in pair_items[0]: a(it)
    QB = [4, 0, 2, 1, 3, 4, 0]
    def wdma_items(p):
        l = []
        for k in range(4):
            tag = f" ;@tag=w{p}" if k == 3 else ""
            x = [f"s_add_u32 m0, s21, {QB[p]*8192 + 2*k*1024}",
                 f"global_load_lds_dwordx4 v{VW[k]}, s[6:7]",
                 f"global_load_lds_dwordx4 v{VW[k]}, s[6:7] offset:1024{tag}",
                 f"v_add_u32 v{VW[k]}, 0x8000, v{VW[k]}"]
            l.append(x)
        return l
    if not FINE: a.stamp(1)
    su = L(f"""
    v_mov_b32 v127, 0x3f80
    v_lshlrev_b32 v8, 7, v3
    v_add_u32 v9, s18, v8
    v_add_u32 v8, s17, v8
    s_mov_b32 s32, 0xffff0000
    s_mov_b32 s33, 0xffff0000
    v_lshlrev_b32 v25, 2, v4
    v_cvt_f32_u32 v25, v25
    v_mov_b32 v26, 0x80008000
    """)
    for rho in range(2):
        su += L(f"""
        v_cvt_f32_u32 v27, v{8+rho}
        v_mul_f32 v27, {hx(1.0/2048)}, v27
        v_mul_f32 v28, v27, v25
        """)
        for r in range(4):
            su.append(f"v_cos_f32 v{72+r}, v28")
            su.append(f"v_sin_f32 v{76+r}, v28")
            if r < 3: su.append("v_add_f32 v28, v27, v28")
        for r in range(8): su.append(f"v_mul_f32 v{80+r}, 0.5, v{72+r}")
        su += L(f"""
        v_cvt_pk_bf16_f32 v88, v72, v73
        v_cvt_pk_bf16_f32 v89, v74, v75
        v_cvt_pk_bf16_f32 v90, v76, v77
        v_cvt_pk_bf16_f32 v91, v78, v79
        v_cvt_pk_bf16_f32 v92, v80, v81
        v_cvt_pk_bf16_f32 v93, v82, v83
        v_cvt_pk_bf16_f32 v94, v84, v85
        v_cvt_pk_bf16_f32 v95, v86, v87
        v_xor_b32 v96, v26, v90
        v_xor_b32 v97, v26, v91
        v_xor_b32 v98, v26, v94
        v_xor_b32 v99, v26, v95
        """)
        for dst, c0, c1 in ((TP(rho,0), 98, 92), (TP(rho,1), 94, 92), (T(rho,0), 88, 90), (T(rho,1), 88, 96)):
            for k in range(2):
                su.append(f"v_cndmask_b32 v{dst+k}, v{c0+k}, v{c1+k}, s[32:33]")
                su.append(f"v_cndmask_b32 v{dst+2+k}, v{c1+k}, v{c0+k}, s[32:33]")
    su += L(f"""
    v_lshrrev_b32 v27, 2, v3
    v_lshl_add_u32 v27, v4, 2, v27
    v_lshlrev_b32 v27, 6, v27
    v_and_b32 v28, 3, v3
    v_lshl_add_u32 v27, v28, 4, v27
    v_and_b32 v28, 1, v4
    v_lshl_add_u32 v27, v28, 3, v27
    v_add_u32 v120, s21, v27
    v_xor_b32 v121, 8, v120
    v_add_u32 v122, s19, v120
    v_add_u32 v123, s19, v121
    v_add_u32 v124, s20, v120
    v_add_u32 v125, s20, v121
    v_add_u32 v27, 48, v3
    v_lshlrev_b32 v126, 2, v27
    """)
    a(weave(su, pair_items[1] + pair_items[2]))
    def trread(dst, rho, d, g_):
        if d == 0: b0, b1, off = 120, 121, rho*16384 + g_*1024
        else: b0, b1, off = 122+2*rho, 123+2*rho, g_*1024
        return [f"ds_read_b64_tr_b16 {ar(dst,2)}, v{b0} offset:{off}", f"ds_read_b64_tr_b16 {ar(dst+2,2)}, v{b1} offset:{off}"]
    if not FINE: a.stamp(2)
    a("@waitv first")
    for rho in range(2):
        a(trread(VA(2+rho,0), rho, 0, 15)); a(trread(VA(2+rho,1), rho, 1, 15))
    se = L(f"""
    v_lshlrev_b32 v27, 3, v4
    v_sub_u32 v28, v3, v27
    v_sub_u32 v29, 0, v3
    v_sub_u32 v29, v29, v27
    """)
    for (d, tb, src, add) in ((0,0,28,0), (0,1,28,16), (1,0,29,31), (1,1,29,15)):
        se += L(f"""
        v_add_u32 v30, {add}, v{src}
        v_and_b32 v31, 1, v30
        v_lshlrev_b32 v31, 4, v31
        v_lshlrev_b32 v31, v31, v127
        v_lshrrev_b32 v30, 1, v30
        """)
        for jj in range(4):
            se.append(f"v_cmp_eq_u32 s[{56+2*(jj&1)}:{57+2*(jj&1)}], {jj}, v30\nv_cmp_eq_u32 vcc, {jj}, v30" if False else f"v_cmp_eq_u32 s[{56+2*(jj&1)}:{57+2*(jj&1)}], {jj}, v30")
            if jj & 1:
                se.append(f"v_cndmask_b32 v{SEL(d,tb)+jj-1}, 0, v31, s[56:57]")
                se.append(f"v_cndmask_b32 v{SEL(d,tb)+jj}, 0, v31, s[58:59]")
    a(se[:20])
    a("s_waitcnt lgkmcnt(0)")
    for rho in range(2):
        a(f"{MF16} {vr(ACC(2+rho,0),4)}, {ar(VA(2+rho,0),4)}, {vr(TP(rho,0),4)}, 0")
    for rho in range(2):
        a(f"{MF16} {vr(ACC(2+rho,0),4)}, {ar(VA(2+rho,1),4)}, {vr(TP(rho,1),4)}, {vr(ACC(2+rho,0),4)}")
    a(se[20:38])
    for rho in range(2):
        a(f"ds_bpermute_b32 v{22+rho}, v126, v{ACC(2+rho,0)+3}")
    a(se[38:])
    a(f"""
    s_mul_i32 s42, s16, 7
    s_add_u32 s30, s42, s54
    s_lshl_b32 s30, s30, 15
    s_add_u32 s30, s30, {WS_WUP}
    """)
    for k in range(4):
        a(f"""
        s_lshl_b32 s22, s14, 2
        s_add_u32 s22, s22, {k}
        s_and_b32 s23, s22, 7
        s_add_u32 s31, s23, s53
        s_cmp_ge_u32 s31, 7
        s_cselect_b32 s55, 7, 0
        s_sub_u32 s31, s31, s55
        s_cmp_eq_u32 s23, 7
        s_cselect_b32 s31, 7, s31
        s_and_b32 s22, s22, 8
        s_add_u32 s31, s31, s22
        s_lshl_b32 s31, s31, 11
        s_add_u32 s31, s31, s30
        v_add_u32 v{VW[k]}, s31, v5
        """)
    a(f"""
    s_and_b32 s22, s16, 7
    s_sub_u32 s23, s22, s53
    s_add_u32 s31, s23, 7
    s_cmp_lt_i32 s23, 0
    s_cselect_b32 s23, s31, s23
    s_cmp_eq_u32 s22, 7
    s_cselect_b32 s23, 7, s23
    s_and_b32 s22, s16, 8
    s_add_u32 s60, s23, s22
    s_lshl_b32 s22, s16, 10
    s_add_u32 s22, s22, {WS_HC}
    v_mov_b32 v27, s17
    v_mov_b32 v28, s18
    v_cndmask_b32 v27, v27, v28, s[32:33]
    v_lshrrev_b32 v28, 1, v4
    v_lshlrev_b32 v10, 14, v27
    v_lshl_add_u32 v10, v28, 9, v10
    v_lshl_add_u32 v10, v3, 4, v10
    v_add_u32 v10, s22, v10
    s_mov_b32 s36, 57344
    v_mul_lo_u32 v11, v27, s36
    v_lshl_add_u32 v11, v28, 8, v11
    v_lshl_add_u32 v11, v3, 4, v11
    s_mov_b32 s34, 0
    s_mov_b32 s35, 0xffff0000
    s_waitcnt lgkmcnt(0)
    """)
    for rho in range(2):
        a(f"v_add_f32 v{16+2*rho}, v{16+2*rho}, v{22+rho}")
        for r in range(4):
            a(f"v_sub_f32 v{NEGM(rho)+r}, 0, v{16+2*rho}")
    for r in range(20, 24): a(f"v_mov_b32 v{r}, 0")
    mt_store = f"""s_cmp_eq_u32 s16, 0
    s_cbranch_scc0 K2_nomt
    @cond_begin
    v_add_u32 v14, {WS_MT - WS_MX}, v14
    v_add_u32 v15, {WS_MT - WS_MX}, v15
    s_mov_b64 s[36:37], exec
    s_mov_b64 exec, 0xffff
    global_store_dword v14, v16, s[6:7] {SC}
    global_store_dword v15, v18, s[6:7] {SC}
    s_mov_b64 exec, s[36:37]
    @cond_end
    K2_nomt:"""
    groups = [(i, d) for i in range(8) for d in range(2)]
    def reads(gi):
        i, d = groups[gi]
        o = []
        if d == 0: o.append(f"@waitv p{i}")
        for rho in range(2):
            s = (gi & 1)*2 + rho
            o += trread(VA(s, 0), rho, d, 2*i) + trread(VA(s, 1), rho, d, 2*i+1)
        return o
    def mm(gi):
        i, d = groups[gi]
        kap = i + 8*d
        o = []
        for rho in range(2):
            s = (gi & 1)*2 + rho
            for tb in range(2):
                o.append(f"{MF16} {vr(ACC(s,tb),4)}, {ar(VA(s,tb),4)}, {vr(T(rho,d),4)}, {vr(NEGM(rho),4)}")
        for rho in range(2):
            s = (gi & 1)*2 + rho
            for tb in range(2):
                o.append(f"{MF16} {vr(ACC(s,tb),4)}, {vr(SEL(d,tb),4)}, {ar(XF(rho,kap),4)}, {vr(ACC(s,tb),4)}")
        return o
    def post(gi):
        i, d = groups[gi]
        kap = i + 8*d
        o = []
        for rho in range(2):
            s = (gi & 1)*2 + rho
            h = H(rho, kap)
            for tb in range(2):
                o.append(f"v_cvt_pk_bf16_f32 v{h+2*tb}, v{ACC(s,tb)}, v{ACC(s,tb)+1}")
                o.append(f"v_cvt_pk_bf16_f32 v{h+2*tb+1}, v{ACC(s,tb)+2}, v{ACC(s,tb)+3}")
        h0 = H(0, kap); h = H(1, kap)
        if GRAM:
            for rho in range(2):
                hh_ = vr(H(rho, kap), 4); gacc = vr(112+4*rho, 4)
                o.append(f"{MF16} {gacc}, {hh_}, {hh_}, {'0' if gi == 0 else gacc} ")
        for k in range(4): o.append(f"v_permlane16_swap_b32 v{h0+k}, v{h+k}")
        if DOTS_IN_C and not GRAM:
            for k in range(4):
                o.append(f"v_dot2c_f32_bf16 v{20+(k&1)}, v{h0+k}, v{h0+k}")
                o.append(f"v_dot2c_f32_bf16 v{22+(k&1)}, v{h+k}, v{h+k}")
        o.append(f"""s_cmp_eq_u32 s60, {kap}
        s_cbranch_scc0 K2_nh{kap}
        @cond_begin
        global_store_dwordx4 v10, {vr(h0,4)}, s[6:7] {SC}
        global_store_dwordx4 v10, {vr(h,4)}, s[6:7] offset:256 {SC}
        @cond_end
        K2_nh{kap}:""")
        return o
    def fix(rho):
        F = ACC(rho, 1) + 3; M = ACC(2+rho, 1) + 3
        return L(f"""
        v_add_f32 v27, v{F}, v{M}
        v_mul_f32 v27, 0.5, v27
        v_sub_f32 v28, v{17+2*rho}, v{16+2*rho}
        v_cndmask_b32 v{F}, v{F}, v27, s[34:35]
        v_cndmask_b32 v{M}, v{M}, v28, s[34:35]
        """)
    wd_items = []; wd_early = []
    if FUSE:
        a(f"""
        s_lshr_b32 s22, s16, 1
        s_lshl_b32 s22, s22, 2
        s_add_u32 s61, s22, s14          ; nu
        s_mul_i32 s22, s61, {56*1024}
        s_add_u32 s22, s22, {WS_WD}
        v_add_u32 v24, s22, v5
        v_add_u32 v1, {40*1024}, v24
        """)
        for k in range(40, 56):
            x = f"global_load_dwordx4 {ar(WD3(k),4)}, v1, s[6:7] offset:{(k&3)*1024}"
            if (k & 3) == 3: x += "\nv_add_u32 v1, 0x1000, v1"
            wd_early.append([x])
        for k in range(40):
            x = f"global_load_dwordx4 {ar(WD3(k),4)}, v24, s[6:7] offset:{(k&3)*1024}"
            if k == 39: x += " ;@tag=wd"
            if (k & 3) == 3: x += "\nv_add_u32 v24, 0x1000, v24"
            wd_items.append([x])
    if not FINE: a.stamp(3)
    a(reads(0))
    extra = {0: pair_items[3] + pair_items[4][:4], 1: pair_items[4][4:] + pair_items[5], 2: pair_items[6], 3: pair_items[7],
             4: wd_early[:8], 5: wdma_items(0), 6: wd_early[8:], 7: wdma_items(1)}
    for i in range(8):
        seq = []
        for gi in (2*i, 2*i+1):
            if gi + 1 < 16:
                seq += reads(gi+1); seq.append("s_waitcnt lgkmcnt(8)")
            else: seq.append("s_waitcnt lgkmcnt(0)")
            m_ = mm(gi)
            fill = post(gi-1) if 1 <= gi <= 14 else []
            seq += m_[:2] + interleave(m_[2:], fill)
        if i == 0: seq.append(mt_store)
        a(weave(seq, extra[i]))
    a(fix(0)); a(fix(1))
    a(post(14)); a(post(15))
    if not FINE: a.stamp(4)
    for k in range(4): a(f"v_add_u32 v{32+k}, {k*REG}, v5")
    dsu = phaseD_setup(WD3)
    dots = []
    for kap in range(16):
        for k in range(4):
            dots.append(f"v_dot2c_f32_bf16 v{20+(k&1)}, v{H(0,kap)+k}, v{H(0,kap)+k}")
            dots.append(f"v_dot2c_f32_bf16 v{22+(k&1)}, v{H(1,kap)+k}, v{H(1,kap)+k}")
    if GRAM:
        stats = L(f"""
        v_and_b32 v27, 3, v3
        v_cmp_eq_u32 s[56:57], 1, v27
        v_cmp_eq_u32 s[58:59], 2, v27
        v_cmp_eq_u32 vcc, 3, v27
        v_cndmask_b32 v20, v112, v113, s[56:57]
        v_cndmask_b32 v22, v116, v117, s[56:57]
        v_cndmask_b32 v20, v20, v114, s[58:59]
        v_cndmask_b32 v22, v22, v118, s[58:59]
        v_cndmask_b32 v20, v20, v115, vcc
        v_cndmask_b32 v22, v22, v119, vcc
        v_lshrrev_b32 v27, 2, v3
        v_lshl_add_u32 v27, v27, 4, v3
        v_lshlrev_b32 v27, 2, v27
        ds_bpermute_b32 v21, v27, v20
        ds_bpermute_b32 v23, v27, v22
        s_mov_b32 s38, {hx(1.0/512)}
        v_mov_b32 v27, {hx(1e-5)}
        s_waitcnt lgkmcnt(0)
        v_cndmask_b32 v20, v21, v23, s[32:33]
        v_fma_f32 v20, v20, s38, v27
        v_rsq_f32 v20, v20
        v_mul_f32 v21, {hx(-math.log2(math.e))}, v20
        """)
        a(stats); stats = []
    else:
        stats = L(f"""
        v_add_f32 v20, v20, v21
        v_add_f32 v22, v22, v23
        v_add_f32 v20, v20, v22
        v_mov_b32 v21, v20
        v_permlane32_swap_b32 v20, v21
        v_add_f32 v20, v20, v21
        s_mov_b32 s38, {hx(1.0/512)}
        v_mov_b32 v27, {hx(1e-5)}
        v_fma_f32 v20, v20, s38, v27
        v_rsq_f32 v20, v20
        v_mul_f32 v21, {hx(-math.log2(math.e))}, v20
        """)
    MACC = lambda st: 72 + st*16
    def wread(p, phi):
        return f"ds_read_b128 {ar(WF(phi & 7),4)}, v{32 + (phi>>3)} offset:{QB[p]*8192 + (phi&7)*1024}"
    def epilogue(p):
        st = p & 1
        if p < 6: off = f"s_lshl_b32 s44, s16, 10\ns_add_u32 s44, s44, {WS_HH + (p>>1)*16*1024 + (p&1)*512}"
        else:     off = f"s_lshl_b32 s44, s16, 9\ns_add_u32 s44, s44, {WS_HH + 48*1024}"
        f = [off + "\ns_add_u32 s40, s6, s44\ns_addc_u32 s41, s7, 0"]
        m = MACC(st)
        for r in range(8): f.append(f"v_mul_f32 v{40+r}, v21, v{m+r}")
        for r in range(8):
            f.append(f"v_exp_f32 v{40+r}, v{40+r}")
            f.append(f"v_mul_f32 v{48+r}, v20, v{m+8+r}")
        for r in range(8): f.append(f"v_add_f32 v{40+r}, 1.0, v{40+r}")
        for r in range(8): f.append(f"v_rcp_f32 v{40+r}, v{40+r}")
        for r in range(8): f.append(f"v_mul_f32 v{40+r}, v{40+r}, v{48+r}")
        for r in range(4): f.append(f"v_cvt_pk_bf16_f32 v{56+r}, v{40+2*r}, v{41+2*r}")
        f.append(f"global_store_dwordx4 v11, v[56:59], s[40:41] {SC} ;@tag=hh{p}")
        return f
    PF = 6
    bar = {0: "w0", 1: "w1", 2: "w2,w3", 4: "w4,w5", 6: "w6"}
    for p in range(7):
        if p in bar:
            a(f"@waitv {bar[p]}")
            a("s_barrier")
            if p < 2 and not FINE: a.stamp(5+p)
            main = [wread(p, x) for x in range(PF)]
        else:
            main = []
        st = p & 1
        nxt_ok = (p+1 < 7) and (p+1 not in bar)
        for phi in range(32):
            kap, aa = phi >> 1, phi & 1
            if aa == 0:
                if phi + PF < 32:
                    main += [wread(p, phi+PF), wread(p, phi+PF+1), f"s_waitcnt lgkmcnt({PF})"]
                elif nxt_ok:
                    main += [wread(p+1, phi+PF-32), wread(p+1, phi+PF-31), f"s_waitcnt lgkmcnt({PF})"]
                else:
                    main.append(f"s_waitcnt lgkmcnt({30-phi})")
            c = "0" if phi == 0 else vr(MACC(st),16)
            main.append(f"{MF32} {vr(MACC(st),16)}, {ar(WF(phi&7),4)}, {vr(H(aa,kap),4)}, {c}")
        dm = []
        if p == 0: dm = wdma_items(2) + wdma_items(3)
        if p == 1: dm = wdma_items(4)
        if p == 2: dm = wdma_items(5)
        if p == 4: dm = wdma_items(6)
        dm = [[ "\n".join(x) ] for x in dm]
        if FUSE:
            mine = wd_items[p*WD_IN_MAIN:(p+1)*WD_IN_MAIN]
            dm = [[y] for y in weave([x[0] for x in dm], mine)] if dm else mine
        if DOTS_IN_C: dots = []
        if p == 0: body = dots[:96] + (stats if DOTS_IN_C else [])
        elif p == 1: body = dots[96:] + ([] if DOTS_IN_C else stats) + epilogue(0)
        else: body = epilogue(p-1)
        fl = weave(body, dm)
        if FUSE:
            def ins(lst, frac, items):
                k = int(len(lst)*frac)
                return lst[:k] + items + lst[k:]
            if p == 0: fl = weave(dsu, [[x] for x in fl]) if EARLY_SU else [dsu[0]] + fl
            if p == 3: fl = ins(fl, 0.5, ["@waitv hh1", arrive("A", 0)])
            if p == 5:
                fl = ins(fl, 0.5, ["@waitv hh3", arrive("B", 256)])
                fl = ins(fl, 0.3, [poll_issue("A", 0)])
            if p == 6:
                fl = poll_check("A", 0) + ins(weave(fl, [[x] for x in d_items(0) + d_items(1)]), 0.6, [poll_issue("B", 256)])
        a(interleave(main, fl))
    a.stamp(1 if FINE else 7)
    if not FUSE:
        a(epilogue(6))
    else:
        phaseD(a, epilogue(6), wd_items[7*WD_IN_MAIN:], WD3, [] if EARLY_SU else dsu[1:])
    if STAMPS: a("s_waitcnt vmcnt(0)")
    if DBG: a("s_waitcnt vmcnt(0)")
    if DBG:
        a("""
        s_memrealtime s[96:97]
        s_load_dwordx2 s[98:99], s[0:1], 80
        s_waitcnt lgkmcnt(0)
        s_and_b32 s100, s2, 0x3f
        s_cmp_lg_u32 s100, 0
        s_cbranch_scc1 DBG_k2_3
        @cond_begin
        s_lshr_b32 s100, s2, 6
        s_lshl_b32 s100, s100, 4
        s_add_u32 s100, s100, 12
        v_mov_b32 v250, s100
        v_mov_b32 v251, s96
        s_mov_b64 s[100:101], exec
        s_mov_b64 exec, 1
        global_store_dword v250, v251, s[98:99]
        s_mov_b64 exec, s[100:101]
        @cond_end
        DBG_k2_3:
        """)
    a.stamp(13); a.stamp(15)
    a.dump_stamps(WS_ST + (1 << 20))
    a("K2_done:")
    a("s_endpgm")
    return a.finalize()

K3_STG = 28672
K3_LDS = 5*K3_STG
def gen_k3():
    a = Asm(); a.stamps = STAMPS
    WD = lambda k3: k3*4
    HB = lambda s: 64 + s*4
    ACC = lambda k: 32 + k*4
    HC = lambda k, x: 96 + (k*2 + x)*4
    SEL = lambda x: 48 + x*4
    a(f"""
    s_cmp_ge_u32 s2, 256
    s_cbranch_scc1 K3_done
    s_load_dwordx2 s[4:5], s[0:1], 72
    s_load_dwordx2 s[6:7], s[0:1], 88
    v_lshrrev_b32 v1, 6, v0
    v_and_b32 v2, 63, v0
    v_readfirstlane_b32 s14, v1
    v_and_b32 v3, 15, v2
    v_lshrrev_b32 v4, 4, v2
    v_lshlrev_b32 v5, 4, v2
    s_and_b32 s15, s2, 7
    s_lshl_b32 s15, s15, 2
    s_bfe_u32 s16, s2, 0x20003
    s_add_u32 s15, s15, s16
    s_lshr_b32 s16, s2, 5
    s_lshl_b32 s17, s16, 2
    s_add_u32 s17, s17, s14          ; nu
    s_lshl_b32 s18, s15, 2           ; tt0
    s_add_u32 s19, s18, s14
    s_mul_i32 s20, s17, {56*1024}
    s_add_u32 s20, s20, {WS_WD}
    v_add_u32 v6, s20, v5
    s_mul_i32 s20, s19, 57344
    s_add_u32 s20, s20, {WS_HH}
    v_add_u32 v7, s20, v5
    s_mul_i32 s21, s14, 7168
    s_add_u32 s46, s15, s16
    s_and_b32 s46, s46, {7 if ROT3 else 0}            ; rot
    s_mul_i32 s20, s46, 7168
    v_add_u32 v6, s20, v6
    v_add_u32 v7, s20, v7
    s_waitcnt lgkmcnt(0)
    s_add_u32 s24, s6, 4096
    s_addc_u32 s25, s7, 0
    """)
    a.stamp(0); a.stamp(14)
    def items(sg):
        buf = (sg % 5)*K3_STG
        l = []
        for k in range(7):
            x = [f"s_add_u32 m0, s21, {buf + (k & 4)*1024}",
                 f"global_load_lds_dwordx4 v7, {'s[6:7]' if k < 4 else 's[24:25]'} offset:{(k&3)*1024}"]
            if k == 6:
                x.append(f"s_cmp_eq_u32 s46, {7-sg}\ns_cselect_b32 s47, -7, 1\ns_mul_i32 s47, s47, 7168\nv_add_u32 v7, s47, v7")
            l.append(x)
            tag = f" ;@tag=s{sg}" if k == 6 else ""
            x = [f"global_load_dwordx4 {ar(WD(sg*7+k),4)}, v6, {'s[6:7]' if k < 4 else 's[24:25]'} offset:{(k&3)*1024}{tag}"]
            if k == 6: x.append("v_add_u32 v6, s47, v6")
            l.append(x)
        return l
    for it in items(0): a(it)
    su = L(f"""
    v_lshlrev_b32 v8, 7, v3
    v_add_u32 v8, s18, v8
    v_lshlrev_b32 v9, 10, v8
    s_lshl_b32 s20, s17, 5
    v_add_u32 v9, s20, v9
    v_lshl_add_u32 v9, v4, 3, v9
    s_lshl_b32 s20, s18, 6
    s_add_u32 s20, s20, {WS_MT}
    v_lshl_add_u32 v11, v3, 2, s20
    """)
    su.append(f"""s_lshr_b32 s30, s17, 1
    s_lshl_b32 s31, s17, 4
    s_sub_u32 s32, 496, s31
    s_lshr_b32 s32, s32, 5
    s_add_u32 s32, s32, 8
    s_cmp_lt_u32 s17, 16
    s_cselect_b32 s30, s30, s32
    s_sub_u32 s33, s30, 1
    s_cmp_eq_u32 s17, 0
    s_cselect_b32 s33, 15, s33
    s_cmp_eq_u32 s17, 16
    s_cselect_b32 s33, 7, s33
    s_max_i32 s33, s33, 0
    s_and_b32 s34, s17, 1
    s_cmp_gt_u32 s17, 16
    s_cselect_b32 s34, 1, s34
    s_lshl_b32 s35, s18, 14
    s_add_u32 s35, s35, {WS_HC}
    s_lshl_b32 s36, s30, 10
    s_add_u32 s36, s36, s35
    v_add_u32 v14, s36, v5
    s_lshl_b32 s36, s33, 10
    s_add_u32 s36, s36, s35
    v_add_u32 v15, s36, v5""")
    su += L(f"""
    v_add_u32 v16, s31, v3
    v_mov_b32 v23, 0x3f80
    v_add_u32 v12, {2*K3_STG}, v5
    v_add_u32 v13, {4*K3_STG}, v5
    """)
    for x, sk in ((0, 30), (1, 33)):
        su.append(f"""s_and_b32 s36, s{sk}, 7
        s_lshl_b32 s36, s36, 5
        s_sub_u32 s37, -1, s36
        s_sub_u32 s38, 511, s36
        s_cmp_lt_u32 s{sk}, 8
        s_cselect_b32 s37, s37, s38
        s_cselect_b32 s38, 1, -1
        s_cmp_eq_u32 s{sk}, 15
        s_cselect_b32 s39, 0, -1
        s_cselect_b32 s40, 256, -1""")
        su += L(f"""
        v_mul_lo_u32 v17, v16, s38
        v_add_u32 v17, s37, v17
        v_cmp_eq_u32 vcc, s40, v16
        v_cndmask_b32 v17, v17, -1, vcc
        v_cmp_eq_u32 vcc, s39, v16
        v_cndmask_b32 v17, v17, 31, vcc
        """)
        if x == 1:
            su.append("""s_cmp_eq_u32 s34, 1
            s_cselect_b32 s36, -1, 0
            v_or_b32 v17, s36, v17""")
        su += L(f"""
        v_bfe_u32 v18, v17, 2, 2
        v_cmp_eq_u32 vcc, v18, v4
        v_cndmask_b32 v17, -1, v17, vcc
        v_lshrrev_b32 v18, 4, v17
        v_lshlrev_b32 v18, 1, v18
        v_bfe_u32 v19, v17, 1, 1
        v_add_u32 v18, v18, v19
        v_and_b32 v19, 1, v17
        v_lshlrev_b32 v19, 4, v19
        v_lshlrev_b32 v19, v19, v23
        """)
        for jj in range(4):
            su.append(f"v_cmp_eq_u32 vcc, {jj}, v18")
            su.append(f"v_cndmask_b32 v{SEL(x)+jj}, 0, v19, vcc")
    a(weave(su, items(1) + items(2)))
    hcl = []
    for k in range(4):
        hcl.append([f"global_load_dwordx4 {vr(HC(k,0),4)}, v14, s[6:7]", "v_add_u32 v14, 0x4000, v14"])
        hcl.append([f"global_load_dwordx4 {vr(HC(k,1),4)}, v15, s[6:7]", "v_add_u32 v15, 0x4000, v15"])
        hcl.append([f"global_load_dword v{24+k}, v11, s[6:7] offset:{64*k}"])
    a.stamp(1)
    def rd(slot, sg, k, tile):
        b = sg % 5
        base = (5, 5, 12, 12, 13)[b]
        off = (b & 1)*K3_STG if b < 4 else 0
        return f"ds_read_b128 {vr(HB(slot),4)}, v{base} offset:{off + tile*7168 + k*1024}"
    for sg in range(8):
        a(f"@waitv s{sg}")
        a("s_barrier")
        a.stamp(2+sg)
        seq = [(k, t) for k in range(7) for t in range(4)]
        main = [rd(x & 7, sg, *seq[x]) for x in range(6)]
        for x, (k, t) in enumerate(seq):
            if x + 6 < 28:
                main.append(rd((x+6) & 7, sg, *seq[x+6])); main.append("s_waitcnt lgkmcnt(6)")
            else:
                main.append(f"s_waitcnt lgkmcnt({27-x})")
            c = "0" if (sg == 0 and k == 0) else vr(ACC(t),4)
            main.append(f"{MF16} {vr(ACC(t),4)}, {ar(WD(sg*7+k),4)}, {vr(HB(x&7),4)}, {c}")
        fill = []
        if sg + 3 < 8: fill += items(sg+3)
        if sg == 4: fill += hcl
        a(interleave(main, fill))
        if sg == 7:
            a("s_waitcnt vmcnt(0)")
            for x in range(2):
                for t in range(4):
                    a(f"{MF16} {vr(ACC(t),4)}, {vr(SEL(x),4)}, {vr(HC(t,x),4)}, {vr(ACC(t),4)}")
    a.stamp(10)
    for k in range(4):
        for r in range(4):
            a(f"v_add_f32 v{ACC(k)+r}, v{24+k}, v{ACC(k)+r}")
        a(f"v_cvt_pk_bf16_f32 v{56+2*k}, v{ACC(k)}, v{ACC(k)+1}")
        a(f"v_cvt_pk_bf16_f32 v{57+2*k}, v{ACC(k)+2}, v{ACC(k)+3}")
        a(f"global_store_dwordx2 v9, v[{56+2*k}:{57+2*k}], s[4:5] offset:{1024*k}")
    if STAMPS: a("s_waitcnt vmcnt(0)")
    a.stamp(11); a.stamp(15)
    a.dump_stamps(WS_ST + (2 << 20))
    a("K3_done:")
    a("s_endpgm")
    return a.finalize()

def build_all():
    out = []
    hdr = open("sequential_preLN__spectral_fnet__glu_gated_glu__prompt.s.ref").read().split("\n")
    out += [l for l in hdr if l.startswith(";") and "@launch" not in l]
    out.append(f"; @launch kernel=k1_kernel grid=(256,1,1) block=(512,1,1) lds={K1_LDS}")
    out.append(f"; @launch kernel=k2_kernel grid=(256,1,1) block=(256,1,1) lds={K2_LDS}")
    if not FUSE: out.append(f"; @launch kernel=k3_kernel grid=(256,1,1) block=(256,1,1) lds={K3_LDS}")
    out.append('.amdgcn_target "amdgcn-amd-amdhsa--gfx950"')
    out.append(".text")
    out.append(header("k1_kernel") + gen_k1())
    out.append(header("k2_kernel") + gen_k2())
    if not FUSE: out.append(header("k3_kernel") + gen_k3())
    out.append('.section .rodata,"a"')
    for k in (kd("k1_kernel", 256, 256), kd("k2_kernel", 512, 256)) + (() if FUSE else (kd("k3_kernel", 128+224, 128),)):
        out.append(".p2align 6\n" + k)
    return "\n".join(out) + "\n"

if __name__ == "__main__":
    for x in sys.argv[2:]:
        if x == "stamps": STAMPS = True
        elif "=" in x:
            k_, v_ = x.split("="); globals()[k_] = int(v_)
    open(sys.argv[1] if len(sys.argv) > 1 else "v5.s", "w").write(build_all())
```

```python
import sys, math, struct
from asmlib import Asm, vr, ar, sr, weave, L

WS_V   = 0
WS_MX  = 2 << 20
WS_X0  = (2 << 20) + 8192
WS_MT  = (2 << 20) + (64 << 10)
WS_FL  = (2 << 20) + (128 << 10)
WS_XP  = 3 << 20
WS_HC  = 5 << 20
WS_WUP = 8 << 20
WS_WD  = 12 << 20
WS_HH  = 16 << 20
WS_ST  = 32 << 20
STAMPS = False
ROT2 = False
ROTP = False
ROT3 = False
DOTS_IN_C = True
FUSE = True
WD_IN_MAIN = 6
K1SC = 0
DBG = 0
NOHELP = 0
CODEPF = 1
FINE = 0
GRAM = 1
EARLY_SU = 1
HSLEEP = 0

def f2u(f): return struct.unpack('<I', struct.pack('<f', f))[0]
def hx(f): return "0x%08x" % f2u(f)
def kd(name, vgpr, accum, sgpr=102):
    return f"""
.amdhsa_kernel {name}
  .amdhsa_next_free_vgpr {vgpr}
  .amdhsa_next_free_sgpr {sgpr}
  .amdhsa_accum_offset {accum}
  .amdhsa_group_segment_fixed_size 0
  .amdhsa_kernarg_size 96
  .amdhsa_user_sgpr_count 2
  .amdhsa_user_sgpr_kernarg_segment_ptr 1
  .amdhsa_system_sgpr_workgroup_id_x 1
.end_amdhsa_kernel
"""
def header(name):
    return f".globl {name}\n.p2align 8\n.type {name},@function\n{name}:\n"

def interleave(main, fill, key='v_mfma'):
    out = []
    nm = sum(1 for m in main if m.startswith(key))
    fi = 0; seen = 0
    for m in main:
        out.append(m)
        if m.startswith(key):
            seen += 1
            tgt = (len(fill) * seen + nm - 1) // nm
            while fi < tgt:
                out.append(fill[fi]); fi += 1
    out += fill[fi:]
    return out

MF16 = "v_mfma_f32_16x16x32_bf16"
MF32 = "v_mfma_f32_32x32x16_bf16"

K1_LDS_F = 131072
K1_LDS_HELP = 147456
K1_LDS = 163840

def gen_k1():
    a = Asm(); a.stamps = STAMPS
    CS = lambda t, cs, k: 64 + ((t*2 + cs)*4 + k)*4
    G = lambda hi, rho, tile: 128 + ((hi*2 + rho)*2 + tile)*4
    FB = lambda s, tile: 160 + (s*6 + tile)*4
    XB = lambda s, hi, rho: 160 + (s*6 + 2 + hi*2 + rho)*4
    SM = lambda rho: 208 + rho*4
    SQ = lambda rho: 216 + rho*4
    ONES = 224
    a(f"""
    s_cmp_ge_u32 s2, 256
    s_cbranch_scc1 K1_done
    s_load_dwordx2 s[4:5], s[0:1], 0
    s_load_dwordx2 s[6:7], s[0:1], 88
    s_load_dwordx4 s[8:11], s[0:1], 48
    s_load_dwordx2 s[12:13], s[0:1], 64
    v_lshrrev_b32 v1, 6, v0
    v_and_b32 v2, 63, v0
    v_readfirstlane_b32 s14, v1
    v_and_b32 v3, 15, v2
    v_lshrrev_b32 v4, 4, v2
    v_lshlrev_b32 v13, 4, v2         ; lane*16
    s_and_b32 s15, s2, 7
    s_lshl_b32 s15, s15, 1
    s_bfe_u32 s16, s2, 0x10003
    s_or_b32 s15, s15, s16           ; s2 index
    s_lshr_b32 s16, s2, 4            ; eb
    s_cmp_ge_u32 s14, 4
    s_cbranch_scc1 K1_helper
    """)
    if DBG:
        a("""
        s_memrealtime s[96:97]
        s_load_dwordx2 s[98:99], s[0:1], 80
        s_waitcnt lgkmcnt(0)
        s_and_b32 s100, s2, 0x3f
        s_cmp_lg_u32 s100, 0
        s_cbranch_scc1 DBG_k1_0
        @cond_begin
        s_lshr_b32 s100, s2, 6
        s_lshl_b32 s100, s100, 4
        s_add_u32 s100, s100, 0
        v_mov_b32 v250, s100
        v_mov_b32 v251, s96
        s_mov_b64 s[100:101], exec
        s_mov_b64 exec, 1
        global_store_dword v250, v251, s[98:99]
        s_mov_b64 exec, s[100:101]
        @cond_end
        DBG_k1_0:
        """)
    a.stamp(0); a.stamp(14)
    a(f"""
    v_lshrrev_b32 v5, 2, v2
    v_lshlrev_b32 v5, 17, v5
    s_lshl_b32 s17, s14, 15
    s_lshl_b32 s18, s15, 10
    s_add_u32 s18, s18, s17
    v_add_u32 v5, s18, v5
    v_sub_u32 v6, 0, v4
    v_xor_b32 v6, v6, v2
    v_and_b32 v6, 3, v6
    v_lshl_add_u32 v7, v6, 4, v5
    s_and_b32 s46, s16, 7            ; rot
    """)
    for b in range(8):
        a(f"""
        s_add_u32 s47, s46, {b}
        s_and_b32 s47, s47, 7
        s_lshl_b32 s47, s47, 6
        v_add_u32 v{240+b}, s47, v7
        """)
    a("""
    s_waitcnt lgkmcnt(0)
    s_add_u32 s48, s4, 0x4000
    s_addc_u32 s49, s5, 0
    """)
    xi = []
    for k in range(8):
        for hi in range(2):
            for rho in range(2):
                kk = k + 8*hi
                tag = f" ;@tag=x{k}" if (hi == 1 and rho == 1) else ""
                xi.append([f"s_add_u32 m0, s17, {(rho*16+kk)*1024 - 512*hi}",
                           f"global_load_lds_dwordx4 v{240+k}, {'s[48:49]' if rho else 's[4:5]'} offset:{512*hi}{tag}"])
    for it in xi[:8]: a(it)
    a.stamp(1)
    fg = L(f"""
    s_mov_b32 s20, 0x41c80000
    s_lshl_b32 s21, s16, 4
    s_add_u32 s21, s21, 1
    v_add_u32 v9, s21, v3
    v_cvt_f32_u32 v10, v9
    v_mul_f32 v10, {hx(-1.0/512)}, v10
    v_lshlrev_b32 v11, 31, v9
    v_or_b32 v56, 1.0, v11
    s_lshl_b32 s21, s14, 1
    s_add_u32 s21, s21, s46
    s_add_u32 s50, s21, 1
    s_and_b32 s21, s21, 7
    s_and_b32 s50, s50, 7
    s_lshl_b32 s21, s21, 5
    s_lshl_b32 s50, s50, 5
    v_lshlrev_b32 v12, 3, v4
    v_add_u32 v62, s50, v12
    v_add_u32 v12, s21, v12
    v_cvt_f32_u32 v12, v12
    v_cvt_f32_u32 v62, v62
    v_mul_f32 v12, v10, v12
    v_mul_f32 v62, v10, v62
    s_lshl_b32 s21, s14, 12
    s_add_u32 s21, s21, {K1_LDS_F}
    v_add_u32 v14, s21, v13
    """)
    fg.append("""s_cmp_eq_u32 s16, 15
    s_cselect_b32 s22, 0x80008000, 0
    s_cselect_b32 s23, 0x80008000, 0
    s_cselect_b32 s18, 0x8000, 0
    s_cmp_eq_u32 s14, 0
    s_cselect_b32 s18, s18, 0
    s_mov_b32 s19, 0""")
    fg += L("""
    v_mov_b32 v15, 0x3f80
    v_cndmask_b32 v57, v56, 0, s[22:23]
    v_cndmask_b32 v58, 0, 1.0, s[22:23]
    """)
    for kk in range(2):
        if kk == 1: fg.append("v_mov_b32 v12, v62")
        for j in range(8):
            fg.append(f"v_cos_f32 v{16+j}, v12")
            fg.append(f"v_sin_f32 v{24+j}, v12")
            if j < 7: fg.append("v_add_f32 v12, v10, v12")
        o = 32 + kk*8
        for jj in range(4):
            fg.append(f"v_cvt_pk_bf16_f32 v{o+jj}, v{16+2*jj}, v{17+2*jj}")
            fg.append(f"v_cvt_pk_bf16_f32 v{o+4+jj}, v{24+2*jj}, v{25+2*jj}")
        if kk == 1: fg.append(f"v_cndmask_b32 v{o+4}, v{o+4}, v15, s[18:19]")
        fg.append(f"ds_write_b128 v14, {vr(o,4)} offset:{kk*2048}")
        fg.append(f"ds_write_b128 v14, {vr(o+4,4)} offset:{kk*2048+1024}")
    ad = L(f"""
    v_lshrrev_b32 v5, 2, v3
    v_sub_u32 v5, 0, v5
    v_and_b32 v5, 3, v5
    v_xor_b32 v6, v5, v4
    v_lshlrev_b32 v6, 4, v6
    v_lshl_add_u32 v6, v3, 6, v6
    v_add_u32 v6, s17, v6
    v_add_u32 v61, {K1_LDS_F}, v13
    """)
    for r in range(4): ad.append(f"v_mov_b32 v{ONES+r}, 0x3f803f80")
    a(weave(fg + ad, xi[8:16]))
    a("s_waitcnt lgkmcnt(0)")
    a.stamp(2)
    a("s_barrier")
    cs = L(f"""
    s_lshl_b32 s21, s14, 4
    v_add_u32 v9, s21, v3
    v_cvt_f32_u32 v10, v9
    v_mul_f32 v10, {hx(1.0/128)}, v10
    v_mul_f32 v11, {hx(8.0)}, v10
    v_lshlrev_b32 v12, 5, v4
    v_cvt_f32_u32 v12, v12
    v_mul_f32 v12, v10, v12
    v_mov_b32 v15, 0x80008000
    """)
    for k in range(4):
        for hh in range(2):
            cs.append("v_mov_b32 v14, v12")
            for r in range(4):
                j = hh*4 + r
                cs.append(f"v_cos_f32 v{16+j}, v14")
                cs.append(f"v_sin_f32 v{24+j}, v14")
                if r < 3: cs.append("v_add_f32 v14, v11, v14")
            cs.append("v_add_f32 v12, v10, v12")
        for jj in range(4):
            cs.append(f"v_cvt_pk_bf16_f32 v{CS(0,0,k)+jj}, v{16+2*jj}, v{17+2*jj}")
            cs.append(f"v_cvt_pk_bf16_f32 v{CS(0,1,k)+jj}, v{24+2*jj}, v{25+2*jj}")
        for c_ in range(2):
            for jj in range(2):
                cs.append(f"v_mov_b32 v{CS(1,c_,k)+jj}, v{CS(0,c_,k)+jj}")
                cs.append(f"v_xor_b32 v{CS(1,c_,k)+2+jj}, v15, v{CS(0,c_,k)+2+jj}")
    cs.append("v_mul_u32_u24 v16, 80, v4")
    cs.append(f"""s_sub_u32 s21, 23, s16
    s_cmp_lt_u32 s16, 8
    s_cselect_b32 s21, s16, s21
    s_cselect_b32 s24, 16, 0
    s_add_u32 s50, s21, 1
    s_and_b32 s50, s50, 15
    s_sub_u32 s51, s21, s46
    s_and_b32 s51, s51, 7
    s_and_b32 s21, s21, 8
    s_add_u32 s21, s21, s51
    s_lshl_b32 s21, s21, 10
    s_sub_u32 s51, s50, s46
    s_and_b32 s51, s51, 7
    s_and_b32 s50, s50, 8
    s_add_u32 s50, s50, s51
    s_lshl_b32 s50, s50, 10
    s_mov_b32 s52, 0
    s_mov_b32 s53, 0xffff0000""")
    cs += L(f"""
    v_add_u32 v25, s21, v6
    v_add_u32 v26, 1, v4
    v_and_b32 v26, 3, v26
    v_xor_b32 v26, v26, v5
    v_lshlrev_b32 v26, 4, v26
    v_lshl_add_u32 v26, v3, 6, v26
    v_mov_b32 v27, s21
    v_mov_b32 v28, s50
    v_cndmask_b32 v27, v27, v28, s[52:53]
    v_add3_u32 v26, v26, v27, s17
    """)
    cs += L(f"""
    s_lshl_b32 s21, s14, 5
    s_add_u32 s21, s21, s15
    s_lshl_b32 s26, s21, 14
    s_lshl_b32 s27, s46, 11
    s_add_u32 s26, s26, s27
    s_lshr_b32 s27, s16, 3
    s_lshl_b32 s27, s27, 10
    s_add_u32 s26, s26, s27
    s_add_u32 s26, s26, {WS_XP}
    v_add_u32 v28, s26, v13
    v_add_u32 v29, 0x40000, v28
    v_mov_b32 v30, s24
    v_lshlrev_b32 v31, 14, v9
    s_lshl_b32 s26, s16, 10
    s_lshl_b32 s27, s15, 6
    s_add_u32 s26, s26, s27
    v_add_u32 v31, s26, v31
    v_lshl_add_u32 v31, v4, 4, v31
    v_add_u32 v17, 0x100000, v31
    v_add_u32 v18, s17, v13
    v_add_u32 v19, 0x10000, v13
    s_mov_b32 s25, {hx(1.0/512)}
    v_mov_b32 v27, {hx(1e-5)}
    """)
    def reads(k):
        s = k & 1
        o = [f"@waitv x{k}",
             f"ds_read_b128 {vr(FB(s,0),4)}, v61 offset:{(k*2)*1024}",
             f"ds_read_b128 {vr(FB(s,1),4)}, v61 offset:{(k*2+1)*1024}"]
        for hi in range(2):
            for rho in range(2):
                o.append(f"ds_read_b128 {vr(XB(s,hi,rho),4)}, v6 offset:{(rho*16 + k + 8*hi)*1024}")
        return o
    for it in xi[16:20]: a(it)
    a(reads(0))
    ncs = len(cs); per = (ncs + 6) // 7
    for k in range(8):
        seq = []
        if k < 7:
            seq += reads(k+1); seq.append("s_waitcnt lgkmcnt(6)")
        else:
            seq += L(f"""
            ds_read_b128 v[32:35], v25
            ds_read_b32 v36, v26
            ds_read_b128 v[40:43], v25 offset:16384
            ds_read_b32 v44, v26 offset:16384
            s_waitcnt lgkmcnt(4)
            """)
        s = k & 1
        if k == 0:
            seq.append(f"v_lshlrev_b32 v59, 16, v{XB(0,0,0)}")
            seq.append(f"v_lshlrev_b32 v60, 16, v{XB(0,0,1)}")
        for hi in range(2):
            for rho in range(2):
                first = (k == 0 and hi == 0)
                x = vr(XB(s,hi,rho),4)
                seq.append(f"{MF16} {vr(SQ(rho),4)}, {x}, {x}, {'0' if first else vr(SQ(rho),4)}")
                seq.append(f"{MF16} {vr(SM(rho),4)}, {x}, {vr(ONES,4)}, {'0' if first else vr(SM(rho),4)}")
        for hi in range(2):
            for rho in range(2):
                for tile in range(2):
                    c = "0" if k == 0 else vr(G(hi,rho,tile),4)
                    seq.append(f"{MF16} {vr(G(hi,rho,tile),4)}, {vr(XB(s,hi,rho),4)}, {vr(FB(s,tile),4)}, {c}")
        fill = cs[k*per:(k+1)*per] if k < 7 else []
        if k < 3:
            fill = weave(fill, xi[20+4*k:24+4*k])
        a(interleave(seq, fill))
    a.stamp(3)
    for rho in range(2):
        for r in range(4):
            a(f"ds_bpermute_b32 v{160+rho*4+r}, v16, v{SQ(rho)+r} offset:{4*r}")
    a("s_waitcnt lgkmcnt(8)")
    for rho in range(2):
        b = 32 + rho*8
        for k in range(4):
            a(f"v_alignbit_b32 v{48+rho*4+k}, v{b+k+1}, v{b+k}, v30")
        a(f"global_store_dwordx4 v{28+rho}, {vr(48+rho*4,4)}, s[6:7]")
    for rho in range(2):
        for r in range(4):
            a(f"v_mul_f32 v{SM(rho)+r}, s25, v{SM(rho)+r}")
    for rho in range(2):
        for tile in range(2):
            for r in range(4):
                a(f"v_fma_f32 v{G(0,rho,tile)+r}, v{G(1,rho,tile)+r}, v{56+tile}, v{G(0,rho,tile)+r}")
    for rho in range(2):
        for r in range(4):
            a(f"v_fma_f32 v{G(0,rho,1)+r}, -v{SM(rho)+r}, v58, v{G(0,rho,1)+r}")
    a("s_waitcnt lgkmcnt(0)")
    for rho in range(2):
        for r in range(4):
            q_ = 160+rho*4+r
            a(f"v_fma_f32 v{q_}, v{q_}, s25, v27")
            a(f"v_fma_f32 v{q_}, -v{SM(rho)+r}, v{SM(rho)+r}, v{q_}")
            a(f"v_rsq_f32 v{q_}, v{q_}")
    for rho in range(2):
        for tile in range(2):
            for r in range(4):
                a(f"v_mul_f32 v{G(0,rho,tile)+r}, v{G(0,rho,tile)+r}, v{160+rho*4+r}")
    for tile in range(2):
        for rho in range(2):
            a(f"v_cvt_pk_bf16_f32 v{184+tile*4+rho*2}, v{G(0,rho,tile)}, v{G(0,rho,tile)+1}")
            a(f"v_cvt_pk_bf16_f32 v{184+tile*4+rho*2+1}, v{G(0,rho,tile)+2}, v{G(0,rho,tile)+3}")
    a(f"""
    ds_write_b128 v18, v[184:187]
    ds_write_b128 v18, v[188:191] offset:1024
    s_cmp_lg_u32 s16, 0
    s_cbranch_scc1 K1_nomx
    @cond_begin
    s_lshl_b32 s26, s21, 6
    s_add_u32 s26, s26, {WS_MX}
    v_lshl_add_u32 v20, v4, 4, s26
    v_lshl_add_u32 v21, v3, 2, s26
    s_mov_b64 s[28:29], exec
    s_mov_b32 exec_lo, 0x00010001
    s_mov_b32 exec_hi, 0x00010001
    global_store_dwordx4 v20, {vr(SM(0),4)}, s[6:7]
    global_store_dwordx4 v20, {vr(SM(1),4)}, s[6:7] offset:1024
    s_mov_b64 exec, 0xffff
    v_add_u32 v21, {WS_X0 - WS_MX}, v21
    global_store_dword v21, v59, s[6:7]
    global_store_dword v21, v60, s[6:7] offset:1024
    s_mov_b64 exec, s[28:29]
    @cond_end
    K1_nomx:
    s_waitcnt lgkmcnt(0)
    """)
    a.stamp(4)
    a("s_barrier")
    a.stamp(5)
    AR = lambda k: 192 + k*4
    AI = lambda k: 160 + k*4
    NR = lambda k: 232 + k*4
    for k in range(4):
        b = 13 if k < 2 else 19
        a(f"ds_read_b128 {vr(AR(k),4)}, v{b} offset:{(k&1)*32768}")
        a(f"ds_read_b128 {vr(AI(k),4)}, v{b} offset:{(k&1)*32768 + 1024}")
    VA = lambda t, c: 128 + (t*2 + c)*4
    for k in range(4):
        a(f"s_waitcnt lgkmcnt({6-2*k})")
        for jj in range(4):
            a(f"v_xor_b32 v{NR(k)+jj}, v15, v{AR(k)+jj}")
        for t in range(2):
            c0 = "0" if k == 0 else vr(VA(t,0),4)
            c1 = "0" if k == 0 else vr(VA(t,1),4)
            a(f"{MF16} {vr(VA(t,0),4)}, {vr(AR(k),4)}, {vr(CS(t,0,k),4)}, {c0}")
            a(f"{MF16} {vr(VA(t,1),4)}, {vr(AI(k),4)}, {vr(CS(t,0,k),4)}, {c1}")
        for t in range(2):
            a(f"{MF16} {vr(VA(t,0),4)}, {vr(AI(k),4)}, {vr(CS(t,1,k),4)}, {vr(VA(t,0),4)}")
            a(f"{MF16} {vr(VA(t,1),4)}, {vr(NR(k),4)}, {vr(CS(t,1,k),4)}, {vr(VA(t,1),4)}")
    for t in range(2):
        o = 32 + t*4
        a(f"v_cvt_pk_bf16_f32 v{o}, v{VA(t,0)}, v{VA(t,0)+1}")
        a(f"v_cvt_pk_bf16_f32 v{o+1}, v{VA(t,0)+2}, v{VA(t,0)+3}")
        a(f"v_cvt_pk_bf16_f32 v{o+2}, v{VA(t,1)}, v{VA(t,1)+1}")
        a(f"v_cvt_pk_bf16_f32 v{o+3}, v{VA(t,1)+2}, v{VA(t,1)+3}")
        a(f"global_store_dwordx4 v{31 if t == 0 else 17}, {vr(o,4)}, s[6:7]")
    a.stamp(6)
    if STAMPS: a("s_waitcnt vmcnt(0)")
    if DBG: a("s_waitcnt vmcnt(0)")
    if DBG:
        a("""
        s_memrealtime s[96:97]
        s_load_dwordx2 s[98:99], s[0:1], 80
        s_waitcnt lgkmcnt(0)
        s_and_b32 s100, s2, 0x3f
        s_cmp_lg_u32 s100, 0
        s_cbranch_scc1 DBG_k1_1
        @cond_begin
        s_lshr_b32 s100, s2, 6
        s_lshl_b32 s100, s100, 4
        s_add_u32 s100, s100, 4
        v_mov_b32 v250, s100
        v_mov_b32 v251, s96
        s_mov_b64 s[100:101], exec
        s_mov_b64 exec, 1
        global_store_dword v250, v251, s[98:99]
        s_mov_b64 exec, s[100:101]
        @cond_end
        DBG_k1_1:
        """)
    a.stamp(7); a.stamp(15)
    a.dump_stamps(WS_ST)
    a("s_endpgm")
    a("K1_helper:")
    a("s_mov_b32 s45, s14")
    a.stamp(0); a.stamp(14)
    a("s_barrier")
    for _ in range(HSLEEP): a("s_sleep 16")
    if NOHELP: a("s_cmp_ge_u32 s2, 4\ns_cbranch_scc1 K1_done")
    a(f"""
    s_sub_u32 s14, s14, 4
    s_lshl_b32 s17, s2, 2
    s_add_u32 s17, s17, s14
    s_lshl_b32 s24, s14, 12
    s_add_u32 s24, s24, {K1_LDS_HELP}
    v_add_u32 v14, s24, v13
    v_lshrrev_b32 v5, 2, v3
    v_and_b32 v6, 3, v3
    v_lshlrev_b32 v6, 3, v6
    v_lshrrev_b32 v7, 1, v4
    v_lshl_add_u32 v7, v7, 3, v5
    v_lshl_add_u32 v7, v7, 6, v6
    v_and_b32 v8, 1, v4
    v_lshl_add_u32 v7, v8, 11, v7
    v_add_u32 v7, s24, v7
    v_lshrrev_b32 v9, 1, v4
    v_lshlrev_b32 v9, 4, v9
    v_lshl_add_u32 v9, v8, 2, v9
    v_add_u32 v9, v9, v5
    v_lshl_add_u32 v9, v9, 7, v6
    v_add_u32 v9, s24, v9
    v_lshrrev_b32 v10, 3, v2
    v_and_b32 v11, 7, v2
    v_lshlrev_b32 v11, 4, v11
    v_lshl_add_u32 v10, v10, 10, v11
    s_waitcnt lgkmcnt(0)
    s_cmp_ge_u32 s17, 16
    s_cbranch_scc1 K1_nofl
    @cond_begin
    s_lshl_b32 s26, s17, 10
    s_add_u32 s26, s26, {WS_FL}
    v_add_u32 v12, s26, v13
    v_mov_b32 v16, 0
    v_mov_b32 v17, 0
    v_mov_b32 v18, 0
    v_mov_b32 v19, 0
    global_store_dwordx4 v12, v[16:19], s[6:7]
    s_nop 1
    @cond_end
    K1_nofl:
    """)
    if CODEPF:
        a(f"""
        s_sub_u32 s26, s17, 16
        s_cmp_ge_u32 s26, 21
        s_cbranch_scc1 K1_nopf
        @cond_begin
        s_getpc_b64 s[28:29]
        K1_pc:
        s_add_u32 s28, s28, k2_kernel-K1_pc
        s_addc_u32 s29, s29, 0
        s_lshl_b32 s26, s26, 10
        v_add_u32 v12, s26, v13
        global_load_dwordx4 v[60:63], v12, s[28:29]
        @cond_end
        K1_nopf:
        """)
    def down_load(sreg, rb, sd):
        a(f"""
        s_lshr_b32 s26, {sreg}, 3
        s_and_b32 s27, {sreg}, 7
        s_and_b32 s28, s26, 15
        s_mul_i32 s28, s28, 7
        s_lshr_b32 s29, s26, 4
        s_lshl_b32 s29, s29, 1
        s_add_u32 s28, s28, s29
        s_sub_u32 s29, s26, 48
        s_mul_i32 s29, s29, 14
        s_add_u32 s29, s29, 6            ; case C
        s_cmp_lt_u32 s26, 48
        s_cselect_b32 s28, s28, s29      ; tA
        s_cselect_b32 s29, 1, 7
        s_lshl_b32 s28, s28, 14
        s_lshl_b32 s29, s29, 14
        s_sub_u32 s29, s29, 0x2000
        s_lshl_b32 s35, s27, 7
        s_add_u32 s28, s28, s35
        v_add_u32 v12, s28, v10
        s_mul_i32 s28, s27, 224
        s_add_u32 s28, s28, s26
        s_lshl_b32 s28, s28, 10
        s_add_u32 s{sd}, s28, {WS_WD}
        """)
        for ins in range(4):
            a(f"global_load_dwordx4 {vr(rb+4*ins,4)}, v12, s[12:13]")
            if ins == 1: a("v_add_u32 v12, s29, v12")
            elif ins < 3: a("v_add_u32 v12, 0x2000, v12")
    def down_proc(rb, sd):
        for ins in range(4):
            a(f"ds_write_b128 v14, {vr(rb+4*ins,4)} offset:{ins*1024}")
        a(f"v_add_u32 v12, s{sd}, v13")
        a("s_waitcnt lgkmcnt(0)")
        for ct in range(4):
            a(f"ds_read_b64_tr_b16 v[{48+ct*4}:{49+ct*4}], v9 offset:{ct*32}")
            a(f"ds_read_b64_tr_b16 v[{50+ct*4}:{51+ct*4}], v9 offset:{ct*32 + 1024}")
        for ct in range(4):
            a(f"s_waitcnt lgkmcnt({6-2*ct})")
            a(f"global_store_dwordx4 v12, {vr(48+ct*4,4)}, s[6:7]")
            if ct < 3: a(f"v_add_u32 v12, {56*1024}, v12")
    a("""
    s_cmp_ge_u32 s17, 896
    s_cbranch_scc1 K1_hA_down
    """)
    a.cond_begin()
    a(f"""
    s_and_b32 s26, s17, 15
    s_lshr_b32 s27, s17, 4
    s_and_b32 s28, s26, 7
    s_lshl_b32 s28, s28, 5
    s_add_u32 s29, s28, 1
    s_sub_u32 s28, 511, s28
    s_cmp_lt_u32 s26, 8
    s_cselect_b32 s30, s29, s28
    s_cselect_b32 s31, 1, -1
    s_cselect_b32 s32, -1, 256
    s_lshl_b32 s33, s27, 6
    s_mov_b32 s34, 3584
    s_lshl_b32 s28, s27, 5
    s_add_u32 s28, s28, s26
    s_lshl_b32 s28, s28, 11
    s_add_u32 s40, s28, {WS_WUP}
    v_lshrrev_b32 v11, 2, v2
    v_and_b32 v15, 3, v2
    v_lshlrev_b32 v15, 4, v15
    """)
    for ins in range(2):
        a(f"""
        v_add_u32 v12, {16*ins}, v11
        v_mul_lo_u32 v12, v12, s31
        v_add_u32 v12, s30, v12
        v_cmp_ne_u32 vcc, s32, v12
        v_cndmask_b32 v12, 0, v12, vcc
        v_mul_lo_u32 v12, v12, s34
        v_add3_u32 v12, v12, s33, v15
        global_load_dwordx4 {vr(16+4*ins,4)}, v12, s[8:9]
        global_load_dwordx4 {vr(24+4*ins,4)}, v12, s[10:11]
        """)
    a("s_branch K1_hA_go")
    a.cond_end()
    a("K1_hA_down:")
    a.cond_begin()
    a("s_sub_u32 s25, s17, 896")
    down_load("s25", 16, 40)
    a.cond_end()
    a("K1_hA_go:")
    a("""
    s_mul_i32 s44, s17, 5
    s_and_b32 s44, s44, 15
    s_cmp_ge_u32 s44, 5
    s_cbranch_scc1 K1_hB_skip
    """)
    a.cond_begin()
    a("""
    s_lshr_b32 s25, s17, 4
    s_mul_i32 s25, s25, 5
    s_add_u32 s25, s25, s44
    s_add_u32 s25, s25, 128
    """)
    down_load("s25", 32, 41)
    a.cond_end()
    a("K1_hB_skip:")
    a.stamp(1)
    a("s_waitcnt vmcnt(0)")
    a.stamp(2)
    a("""
    s_cmp_ge_u32 s17, 896
    s_cbranch_scc1 K1_hA_down2
    """)
    a.cond_begin()
    for ins in range(4):
        a(f"ds_write_b128 v14, {vr(16+4*ins,4)} offset:{ins*1024}")
    a("v_add_u32 v12, s40, v13")
    a("s_waitcnt lgkmcnt(0)")
    idx = 0
    for Pp in range(2):
        for aa in range(2):
            a(f"ds_read_b64_tr_b16 v[{48+idx*4}:{49+idx*4}], v7 offset:{aa*256 + Pp*32}")
            a(f"ds_read_b64_tr_b16 v[{50+idx*4}:{51+idx*4}], v7 offset:{aa*256 + Pp*32 + 1024}")
            idx += 1
    idx = 0
    for Pp in range(2):
        for aa in range(2):
            a(f"s_waitcnt lgkmcnt({6-2*idx})")
            a(f"global_store_dwordx4 v12, {vr(48+idx*4,4)}, s[6:7] offset:{aa*1024}")
            idx += 1
        if Pp == 0: a("v_add_u32 v12, 0x8000, v12")
    a("s_branch K1_hA_go2")
    a.cond_end()
    a("K1_hA_down2:")
    a.cond_begin()
    down_proc(16, 40)
    a.cond_end()
    a("K1_hA_go2:")
    a("""
    s_cmp_ge_u32 s44, 5
    s_cbranch_scc1 K1_hend
    s_nop 1
    """)
    a.cond_begin()
    down_proc(32, 41)
    a.cond_end()
    a("K1_hend:")
    a.stamp(3)
    if STAMPS: a("s_waitcnt vmcnt(0)")
    for k in range(4, 8): a.stamp(k)
    a.stamp(15)
    a.dump_stamps(WS_ST, wave="s45")
    a("K1_done:")
    a("s_endpgm")
    txt = a.finalize()
    if K1SC:
        out = []
        inh = False
        for l in txt.split("\n"):
            if l.startswith("K1_helper:"): inh = True
            if inh and l.strip().startswith("global_store") and "sc1" not in l:
                l = l.split(";")[0].rstrip() + (" sc1" if K1SC == 1 else " nt" if K1SC == 2 else " sc0 sc1")
            out.append(l)
        txt = "\n".join(out)
    return txt

K2_LDS = 163840
REG = 40960


def arrive(name, off):
    return f"""s_lshl_b32 s22, s15, 10
    s_lshl_b32 s23, s16, 4
    s_add_u32 s22, s22, s23
    s_lshl_b32 s23, s14, 2
    s_add_u32 s22, s22, s23
    s_add_u32 s22, s22, {WS_FL + off}
    v_mov_b32 v27, s22
    v_mov_b32 v28, 1
    s_mov_b64 s[36:37], exec
    s_mov_b64 exec, 1
    global_store_dword v27, v28, s[6:7] sc1
    s_mov_b64 exec, s[36:37]"""
def poll_issue(name, off):
    return f"""s_lshl_b32 s22, s15, 10
    s_add_u32 s22, s22, {WS_FL + off}
    v_lshl_add_u32 v30, v2, 2, s22
    global_load_dword v29, v30, s[6:7] sc1 ;@tag=fl{name}"""
def poll_check(name, off):
    return [f"@waitv fl{name}", f"""v_cmp_eq_u32 vcc, 1, v29
    s_cmp_eq_u64 vcc, exec
    s_cbranch_scc1 KD_ready{name}
    @cond_begin
    s_mov_b32 s23, 0
    KD_poll{name}:
    global_load_dword v29, v30, s[6:7] sc1
    s_waitcnt vmcnt(0)
    v_cmp_eq_u32 vcc, 1, v29
    s_add_u32 s23, s23, 1
    s_cmp_eq_u64 vcc, exec
    s_cbranch_scc1 KD_ready{name}
    s_cmp_lt_u32 s23, 0x20000
    s_cbranch_scc1 KD_poll{name}
    @cond_end
    KD_ready{name}:"""]

KD_STG = 32768
def phaseD_setup(WD3):
    SEL = lambda x: 104 + x*4
    o = []
    o.append(f"""s_and_b32 s22, s16, 1
    s_lshl_b32 s22, s22, 1
    s_lshl_b32 s23, s15, 2
    s_add_u32 s46, s22, s23
    s_sub_u32 s47, 128, s46
    s_cmp_eq_u32 s46, 0
    s_cselect_b32 s47, 64, s47
    s_add_u32 s48, s46, 1
    s_sub_u32 s49, 128, s48
    s_cmp_eq_u32 s14, 1
    s_cselect_b32 s50, s47, s46
    s_cmp_eq_u32 s14, 2
    s_cselect_b32 s50, s48, s50
    s_cmp_eq_u32 s14, 3
    s_cselect_b32 s50, s49, s50
    s_mul_i32 s22, s50, 57344
    s_add_u32 s22, s22, {WS_HH}
    v_add_u32 v7, s22, v5
    s_add_u32 s24, s6, 4096
    s_addc_u32 s25, s7, 0""")
    o.append(f"""s_lshr_b32 s30, s61, 1
    s_lshl_b32 s31, s61, 4
    s_sub_u32 s32, 496, s31
    s_lshr_b32 s32, s32, 5
    s_add_u32 s32, s32, 8
    s_cmp_lt_u32 s61, 16
    s_cselect_b32 s30, s30, s32
    s_sub_u32 s33, s30, 1
    s_cmp_eq_u32 s61, 0
    s_cselect_b32 s33, 15, s33
    s_cmp_eq_u32 s61, 16
    s_cselect_b32 s33, 7, s33
    s_max_i32 s33, s33, 0
    s_and_b32 s34, s61, 1
    s_cmp_gt_u32 s61, 16
    s_cselect_b32 s34, 1, s34
    s_lshl_b32 s52, s30, 10
    s_add_u32 s52, s52, {WS_HC}
    v_add_u32 v14, s52, v5
    s_lshl_b32 s52, s33, 10
    s_add_u32 s52, s52, {WS_HC}
    v_add_u32 v15, s52, v5""")
    o += L(f"""
    v_lshlrev_b32 v6, 2, v3
    v_add_u32 v6, {WS_MT}, v6
    v_lshlrev_b32 v12, 17, v3
    v_mov_b32 v13, s61
    v_lshl_add_u32 v12, v13, 5, v12
    v_lshl_add_u32 v12, v4, 3, v12
    v_add_u32 v16, s31, v3
    v_mov_b32 v23, 0x3f80
    """)
    for x, sk in ((0, 30), (1, 33)):
        o.append(f"""s_and_b32 s52, s{sk}, 7
        s_lshl_b32 s52, s52, 5
        s_sub_u32 s56, -1, s52
        s_sub_u32 s57, 511, s52
        s_cmp_lt_u32 s{sk}, 8
        s_cselect_b32 s56, s56, s57
        s_cselect_b32 s57, 1, -1
        s_cmp_eq_u32 s{sk}, 15
        s_cselect_b32 s58, 0, -1
        s_cselect_b32 s59, 256, -1""")
        o += L(f"""
        v_mul_lo_u32 v17, v16, s57
        v_add_u32 v17, s56, v17
        v_cmp_eq_u32 vcc, s59, v16
        v_cndmask_b32 v17, v17, -1, vcc
        v_cmp_eq_u32 vcc, s58, v16
        v_cndmask_b32 v17, v17, 31, vcc
        """)
        if x == 1:
            o.append("""s_cmp_eq_u32 s34, 1
            s_cselect_b32 s52, -1, 0
            v_or_b32 v17, s52, v17""")
        o += L(f"""
        v_bfe_u32 v18, v17, 2, 2
        v_cmp_eq_u32 vcc, v18, v4
        v_cndmask_b32 v17, -1, v17, vcc
        v_lshrrev_b32 v18, 4, v17
        v_lshlrev_b32 v18, 1, v18
        v_bfe_u32 v19, v17, 1, 1
        v_add_u32 v18, v18, v19
        v_and_b32 v19, 1, v17
        v_lshlrev_b32 v19, 4, v19
        v_lshlrev_b32 v19, v19, v23
        """)
        for jj in range(4):
            o.append(f"v_cmp_eq_u32 vcc, {jj}, v18")
            o.append(f"v_cndmask_b32 v{SEL(x)+jj}, 0, v19, vcc")
    return o

QD = [2, 1, 3, 4, 0, 2, 1]
def d_items(sg):
    l = []
    for k in range(0, 8, 2):
        tag = f" ;@tag=s{sg}" if k == 6 else ""
        b = 's[6:7]' if k < 4 else 's[24:25]'
        x = [f"s_add_u32 m0, s21, {QD[sg]*8192 + (k & 4)*1024}",
             f"global_load_lds_dwordx4 v7, {b} offset:{(k&3)*1024} sc1",
             f"global_load_lds_dwordx4 v7, {b} offset:{(k&3)*1024+1024} sc1{tag}"]
        if k == 6: x.append("v_add_u32 v7, 0x2000, v7")
        l.append("\n".join(x))
    return l

def phaseD(a, ep6, wd_rest, WD3, su):
    HB = lambda s: 128 + s*4
    ACC = lambda k: 160 + k*4
    HC = lambda k, x: 176 + (k*2 + x)*4
    SEL = lambda x: 104 + x*4
    MT = 216
    a(weave(ep6, wd_rest))
    if FINE: a.stamp(2)
    a(poll_check("B", 256))
    if FINE: a.stamp(3)
    if su: a(su)
    if FINE: a.stamp(4)
    a.stamp(5 if FINE else 8)
    hcl = []
    for k in range(4):
        hcl.append(f"s_lshl_b32 s22, s{46+k}, 14\nv_add_u32 v17, s22, v14\nglobal_load_dwordx4 {vr(HC(k,0),4)}, v17, s[6:7] sc1\nv_add_u32 v17, s22, v15\nglobal_load_dwordx4 {vr(HC(k,1),4)}, v17, s[6:7] sc1")
        hcl.append(f"s_lshl_b32 s22, s{46+k}, 6\nv_add_u32 v17, s22, v6\nglobal_load_dword v{MT+k}, v17, s[6:7] sc1")
    def rd(slot, sg, k, tile):
        return f"ds_read_b128 {vr(HB(slot),4)}, v{32+tile} offset:{QD[sg]*8192 + k*1024}"
    for sg in range(7):
        a(f"@waitv s{sg}" + (",wd" if sg == 0 else ""))
        a("s_barrier")
        if FINE: a.stamp(6 + sg)
        elif sg in (0, 2, 4): a.stamp(9 + sg//2)
        seq = [(k, t) for k in range(8) for t in range(4)]
        main = [rd(x & 7, sg, *seq[x]) for x in range(6)]
        for x, (k, t) in enumerate(seq):
            if x + 6 < 32:
                main.append(rd((x+6) & 7, sg, *seq[x+6])); main.append("s_waitcnt lgkmcnt(6)")
            else:
                main.append(f"s_waitcnt lgkmcnt({31-x})")
            c = "0" if (sg == 0 and k == 0) else vr(ACC(t),4)
            main.append(f"{MF16} {vr(ACC(t),4)}, {ar(WD3(sg*8+k),4)}, {vr(HB(x&7),4)}, {c}")
        fill = []
        if sg == 0: fill = d_items(2)[:2] + ["@waitv hh5", arrive("C", 512)] + d_items(2)[2:] + d_items(3)[:2] + ["@waitv hh6", arrive("D", 768)]
        if sg == 1: fill = d_items(3)[2:] + [poll_issue("C", 512)] + hcl
        if sg == 2: fill = poll_check("C", 512) + d_items(4) + [poll_issue("D", 768)] + d_items(5)
        if sg == 3: fill = ["s_nop 0"]*16 + poll_check("D", 768) + d_items(6)
        a(interleave(main, fill))
        if sg == 4:
            for x in range(2):
                for t in range(4):
                    a(f"{MF16} {vr(ACC(t),4)}, {vr(SEL(x),4)}, {vr(HC(t,x),4)}, {vr(ACC(t),4)}")
    if not FINE: a.stamp(12)
    for k in range(4):
        a(f"s_lshl_b32 s22, s{46+k}, 10")
        a(f"v_add_u32 v{220+k}, s22, v12")
        for r in range(4):
            a(f"v_add_f32 v{ACC(k)+r}, v{MT+k}, v{ACC(k)+r}")
        a(f"v_cvt_pk_bf16_f32 v{224+2*k}, v{ACC(k)}, v{ACC(k)+1}")
        a(f"v_cvt_pk_bf16_f32 v{225+2*k}, v{ACC(k)+2}, v{ACC(k)+3}")
        a(f"global_store_dwordx2 v{220+k}, v[{224+2*k}:{225+2*k}], s[8:9]")

def gen_k2():
    a = Asm(); a.stamps = STAMPS
    H = lambda rho, k: 128 + (rho*16 + k)*4
    XF = lambda rho, k: (rho*16 + k)*4
    T = lambda rho, d: 32 + (rho*2 + d)*4
    SEL = lambda d, tb: 48 + (d*2 + tb)*4
    NEGM = lambda rho: 64 + rho*4
    ACC = lambda s, tb: 72 + (s*2 + tb)*4
    TP = lambda rho, d: 104 + (rho*2 + d)*4
    VA = lambda s, tb: 128 + (s*2 + tb)*4
    WF = lambda s: 160 + s*4
    VW = [8, 9, 25, 26]
    SC = "sc1" if FUSE else ""
    def WD3(k):
        return 4*k if k < 32 else (128 + 4*(k-32) if k < 40 else 192 + 4*(k-40))
    a(f"""
    s_cmp_ge_u32 s2, 256
    s_cbranch_scc1 K2_done
    s_load_dwordx2 s[6:7], s[0:1], 88
    s_load_dwordx4 s[8:11], s[0:1], 72
    v_lshrrev_b32 v1, 6, v0
    v_and_b32 v2, 63, v0
    v_readfirstlane_b32 s14, v1
    v_and_b32 v3, 15, v2
    v_lshrrev_b32 v4, 4, v2
    v_lshlrev_b32 v5, 4, v2
    s_and_b32 s15, s2, 3
    s_lshl_b32 s15, s15, 2
    s_bfe_u32 s16, s2, 0x20003
    s_add_u32 s15, s15, s16          ; j
    s_bfe_u32 s16, s2, 0x10002
    s_lshl_b32 s16, s16, 3
    s_lshr_b32 s17, s2, 5
    s_add_u32 s16, s16, s17          ; n
    s_lshl_b32 s17, s15, 2
    s_add_u32 s17, s17, s14          ; a0
    s_sub_u32 s18, 128, s17
    s_cmp_eq_u32 s17, 0
    s_cselect_b32 s18, 64, s18       ; a1
    s_cselect_b32 s19, 0, 16384
    s_cselect_b32 s20, 16384, 0
    s_mul_i32 s21, s14, {REG}
    s_lshl_b32 s22, s17, 14
    s_lshl_b32 s23, s18, 14
    v_add_u32 v6, s22, v5
    v_add_u32 v7, s23, v5
    v_add_u32 v12, {WS_XP}, v6
    v_add_u32 v13, {WS_XP}, v7
    s_lshl_b32 s22, s17, 6
    s_lshl_b32 s23, s18, 6
    s_add_u32 s22, s22, {WS_MX}
    s_add_u32 s23, s23, {WS_MX}
    v_lshl_add_u32 v14, v3, 2, s22
    v_lshl_add_u32 v15, v3, 2, s23
    s_cmp_ge_u32 s16, 7
    s_cselect_b32 s53, 7, 0
    s_sub_u32 s53, s16, s53
    s_cmp_ge_u32 s53, 7
    s_cselect_b32 s22, 7, 0
    s_sub_u32 s53, s53, s22
    s_cmp_ge_u32 s15, 7
    s_cselect_b32 s54, 7, 0
    s_sub_u32 s54, s15, s54
    s_cmp_ge_u32 s54, 7
    s_cselect_b32 s22, 7, 0
    s_sub_u32 s54, s54, s22
    """)
    if not ROT2: a("s_mov_b32 s53, 0")
    if not ROTP: a("s_mov_b32 s54, 0")
    for i in range(7):
        a(f"""
        s_add_u32 s{46+i}, s53, {i}
        s_cmp_ge_u32 s{46+i}, 7
        s_cselect_b32 s22, 7, 0
        s_sub_u32 s{46+i}, s{46+i}, s22
        s_lshl_b32 s{46+i}, s{46+i}, 11
        """)
    a("""
    s_waitcnt lgkmcnt(0)
    s_add_u32 s26, s6, 8192
    s_addc_u32 s27, s7, 0
    s_add_u32 s28, s6, 12288
    s_addc_u32 s29, s7, 0
    """)
    if DBG:
        a("""
        s_memrealtime s[96:97]
        s_load_dwordx2 s[98:99], s[0:1], 80
        s_waitcnt lgkmcnt(0)
        s_and_b32 s100, s2, 0x3f
        s_cmp_lg_u32 s100, 0
        s_cbranch_scc1 DBG_k2_2
        @cond_begin
        s_lshr_b32 s100, s2, 6
        s_lshl_b32 s100, s100, 4
        s_add_u32 s100, s100, 8
        v_mov_b32 v250, s100
        v_mov_b32 v251, s96
        s_mov_b64 s[100:101], exec
        s_mov_b64 exec, 1
        global_store_dword v250, v251, s[98:99]
        s_mov_b64 exec, s[100:101]
        @cond_end
        DBG_k2_2:
        """)
    a.stamp(0); a.stamp(14)
    for sel in range(2):
        a(f"s_add_u32 m0, s21, {sel*16384 + 12288}")
        a(f"global_load_lds_dwordx4 v{6+sel}, s[28:29] offset:3072")
    a("""
    global_load_dword v16, v14, s[6:7]
    global_load_dword v18, v15, s[6:7]
    global_load_dword v17, v14, s[26:27]
    global_load_dword v19, v15, s[26:27] ;@tag=first
    """)
    pair_items = []
    for i in range(8):
        it = []
        if i < 7:
            for sel in range(2):
                for tb in range(2):
                    x = []
                    if tb == 0: x.append(f"v_add_u32 v{252+sel}, s{46+i}, v{6+sel}")
                    x += [f"s_add_u32 m0, s21, {sel*16384 + 2*i*1024}",
                          f"global_load_lds_dwordx4 v{252+sel}, s[6:7] offset:{tb*1024}"]
                    it.append(x)
            for rho in range(2):
                for d in range(2):
                    x = []
                    if d == 0: x.append(f"v_add_u32 v{254+rho}, s{46+i}, v{12+rho}")
                    tag = f" ;@tag=p{i}" if (d == 1 and rho == 1) else ""
                    x.append(f"global_load_dwordx4 {ar(XF(rho,i+8*d),4)}, v{254+rho}, s[6:7] offset:{d*1024}{tag}")
                    it.append(x)
        else:
            for sel in range(2):
                it.append([f"s_add_u32 m0, s21, {sel*16384 + 12288}", f"global_load_lds_dwordx4 v{6+sel}, s[28:29] offset:2048"])
            for rho in range(2):
                for d in range(2):
                    tag = f" ;@tag=p{i}" if (d == 1 and rho == 1) else ""
                    it.append([f"global_load_dwordx4 {ar(XF(rho,i+8*d),4)}, v{12+rho}, s[28:29] offset:{2048+d*1024}{tag}"])
        pair_items.append(it)
    for it in pair_items[0]: a(it)
    QB = [4, 0, 2, 1, 3, 4, 0]
    def wdma_items(p):
        l = []
        for k in range(4):
            tag = f" ;@tag=w{p}" if k == 3 else ""
            x = [f"s_add_u32 m0, s21, {QB[p]*8192 + 2*k*1024}",
                 f"global_load_lds_dwordx4 v{VW[k]}, s[6:7]",
                 f"global_load_lds_dwordx4 v{VW[k]}, s[6:7] offset:1024{tag}",
                 f"v_add_u32 v{VW[k]}, 0x8000, v{VW[k]}"]
            l.append(x)
        return l
    if not FINE: a.stamp(1)
    su = L(f"""
    v_mov_b32 v127, 0x3f80
    v_lshlrev_b32 v8, 7, v3
    v_add_u32 v9, s18, v8
    v_add_u32 v8, s17, v8
    s_mov_b32 s32, 0xffff0000
    s_mov_b32 s33, 0xffff0000
    v_lshlrev_b32 v25, 2, v4
    v_cvt_f32_u32 v25, v25
    v_mov_b32 v26, 0x80008000
    """)
    for rho in range(2):
        su += L(f"""
        v_cvt_f32_u32 v27, v{8+rho}
        v_mul_f32 v27, {hx(1.0/2048)}, v27
        v_mul_f32 v28, v27, v25
        """)
        for r in range(4):
            su.append(f"v_cos_f32 v{72+r}, v28")
            su.append(f"v_sin_f32 v{76+r}, v28")
            if r < 3: su.append("v_add_f32 v28, v27, v28")
        for r in range(8): su.append(f"v_mul_f32 v{80+r}, 0.5, v{72+r}")
        su += L(f"""
        v_cvt_pk_bf16_f32 v88, v72, v73
        v_cvt_pk_bf16_f32 v89, v74, v75
        v_cvt_pk_bf16_f32 v90, v76, v77
        v_cvt_pk_bf16_f32 v91, v78, v79
        v_cvt_pk_bf16_f32 v92, v80, v81
        v_cvt_pk_bf16_f32 v93, v82, v83
        v_cvt_pk_bf16_f32 v94, v84, v85
        v_cvt_pk_bf16_f32 v95, v86, v87
        v_xor_b32 v96, v26, v90
        v_xor_b32 v97, v26, v91
        v_xor_b32 v98, v26, v94
        v_xor_b32 v99, v26, v95
        """)
        for dst, c0, c1 in ((TP(rho,0), 98, 92), (TP(rho,1), 94, 92), (T(rho,0), 88, 90), (T(rho,1), 88, 96)):
            for k in range(2):
                su.append(f"v_cndmask_b32 v{dst+k}, v{c0+k}, v{c1+k}, s[32:33]")
                su.append(f"v_cndmask_b32 v{dst+2+k}, v{c1+k}, v{c0+k}, s[32:33]")
    su += L(f"""
    v_lshrrev_b32 v27, 2, v3
    v_lshl_add_u32 v27, v4, 2, v27
    v_lshlrev_b32 v27, 6, v27
    v_and_b32 v28, 3, v3
    v_lshl_add_u32 v27, v28, 4, v27
    v_and_b32 v28, 1, v4
    v_lshl_add_u32 v27, v28, 3, v27
    v_add_u32 v120, s21, v27
    v_xor_b32 v121, 8, v120
    v_add_u32 v122, s19, v120
    v_add_u32 v123, s19, v121
    v_add_u32 v124, s20, v120
    v_add_u32 v125, s20, v121
    v_add_u32 v27, 48, v3
    v_lshlrev_b32 v126, 2, v27
    """)
    a(weave(su, pair_items[1] + pair_items[2]))
    def trread(dst, rho, d, g_):
        if d == 0: b0, b1, off = 120, 121, rho*16384 + g_*1024
        else: b0, b1, off = 122+2*rho, 123+2*rho, g_*1024
        return [f"ds_read_b64_tr_b16 {ar(dst,2)}, v{b0} offset:{off}", f"ds_read_b64_tr_b16 {ar(dst+2,2)}, v{b1} offset:{off}"]
    if not FINE: a.stamp(2)
    a("@waitv first")
    for rho in range(2):
        a(trread(VA(2+rho,0), rho, 0, 15)); a(trread(VA(2+rho,1), rho, 1, 15))
    se = L(f"""
    v_lshlrev_b32 v27, 3, v4
    v_sub_u32 v28, v3, v27
    v_sub_u32 v29, 0, v3
    v_sub_u32 v29, v29, v27
    """)
    for (d, tb, src, add) in ((0,0,28,0), (0,1,28,16), (1,0,29,31), (1,1,29,15)):
        se += L(f"""
        v_add_u32 v30, {add}, v{src}
        v_and_b32 v31, 1, v30
        v_lshlrev_b32 v31, 4, v31
        v_lshlrev_b32 v31, v31, v127
        v_lshrrev_b32 v30, 1, v30
        """)
        for jj in range(4):
            se.append(f"v_cmp_eq_u32 s[{56+2*(jj&1)}:{57+2*(jj&1)}], {jj}, v30\nv_cmp_eq_u32 vcc, {jj}, v30" if False else f"v_cmp_eq_u32 s[{56+2*(jj&1)}:{57+2*(jj&1)}], {jj}, v30")
            if jj & 1:
                se.append(f"v_cndmask_b32 v{SEL(d,tb)+jj-1}, 0, v31, s[56:57]")
                se.append(f"v_cndmask_b32 v{SEL(d,tb)+jj}, 0, v31, s[58:59]")
    a(se[:20])
    a("s_waitcnt lgkmcnt(0)")
    for rho in range(2):
        a(f"{MF16} {vr(ACC(2+rho,0),4)}, {ar(VA(2+rho,0),4)}, {vr(TP(rho,0),4)}, 0")
    for rho in range(2):
        a(f"{MF16} {vr(ACC(2+rho,0),4)}, {ar(VA(2+rho,1),4)}, {vr(TP(rho,1),4)}, {vr(ACC(2+rho,0),4)}")
    a(se[20:38])
    for rho in range(2):
        a(f"ds_bpermute_b32 v{22+rho}, v126, v{ACC(2+rho,0)+3}")
    a(se[38:])
    a(f"""
    s_mul_i32 s42, s16, 7
    s_add_u32 s30, s42, s54
    s_lshl_b32 s30, s30, 15
    s_add_u32 s30, s30, {WS_WUP}
    """)
    for k in range(4):
        a(f"""
        s_lshl_b32 s22, s14, 2
        s_add_u32 s22, s22, {k}
        s_and_b32 s23, s22, 7
        s_add_u32 s31, s23, s53
        s_cmp_ge_u32 s31, 7
        s_cselect_b32 s55, 7, 0
        s_sub_u32 s31, s31, s55
        s_cmp_eq_u32 s23, 7
        s_cselect_b32 s31, 7, s31
        s_and_b32 s22, s22, 8
        s_add_u32 s31, s31, s22
        s_lshl_b32 s31, s31, 11
        s_add_u32 s31, s31, s30
        v_add_u32 v{VW[k]}, s31, v5
        """)
    a(f"""
    s_and_b32 s22, s16, 7
    s_sub_u32 s23, s22, s53
    s_add_u32 s31, s23, 7
    s_cmp_lt_i32 s23, 0
    s_cselect_b32 s23, s31, s23
    s_cmp_eq_u32 s22, 7
    s_cselect_b32 s23, 7, s23
    s_and_b32 s22, s16, 8
    s_add_u32 s60, s23, s22
    s_lshl_b32 s22, s16, 10
    s_add_u32 s22, s22, {WS_HC}
    v_mov_b32 v27, s17
    v_mov_b32 v28, s18
    v_cndmask_b32 v27, v27, v28, s[32:33]
    v_lshrrev_b32 v28, 1, v4
    v_lshlrev_b32 v10, 14, v27
    v_lshl_add_u32 v10, v28, 9, v10
    v_lshl_add_u32 v10, v3, 4, v10
    v_add_u32 v10, s22, v10
    s_mov_b32 s36, 57344
    v_mul_lo_u32 v11, v27, s36
    v_lshl_add_u32 v11, v28, 8, v11
    v_lshl_add_u32 v11, v3, 4, v11
    s_mov_b32 s34, 0
    s_mov_b32 s35, 0xffff0000
    s_waitcnt lgkmcnt(0)
    """)
    for rho in range(2):
        a(f"v_add_f32 v{16+2*rho}, v{16+2*rho}, v{22+rho}")
        for r in range(4):
            a(f"v_sub_f32 v{NEGM(rho)+r}, 0, v{16+2*rho}")
    for r in range(20, 24): a(f"v_mov_b32 v{r}, 0")
    mt_store = f"""s_cmp_eq_u32 s16, 0
    s_cbranch_scc0 K2_nomt
    @cond_begin
    v_add_u32 v14, {WS_MT - WS_MX}, v14
    v_add_u32 v15, {WS_MT - WS_MX}, v15
    s_mov_b64 s[36:37], exec
    s_mov_b64 exec, 0xffff
    global_store_dword v14, v16, s[6:7] {SC}
    global_store_dword v15, v18, s[6:7] {SC}
    s_mov_b64 exec, s[36:37]
    @cond_end
    K2_nomt:"""
    groups = [(i, d) for i in range(8) for d in range(2)]
    def reads(gi):
        i, d = groups[gi]
        o = []
        if d == 0: o.append(f"@waitv p{i}")
        for rho in range(2):
            s = (gi & 1)*2 + rho
            o += trread(VA(s, 0), rho, d, 2*i) + trread(VA(s, 1), rho, d, 2*i+1)
        return o
    def mm(gi):
        i, d = groups[gi]
        kap = i + 8*d
        o = []
        for rho in range(2):
            s = (gi & 1)*2 + rho
            for tb in range(2):
                o.append(f"{MF16} {vr(ACC(s,tb),4)}, {ar(VA(s,tb),4)}, {vr(T(rho,d),4)}, {vr(NEGM(rho),4)}")
        for rho in range(2):
            s = (gi & 1)*2 + rho
            for tb in range(2):
                o.append(f"{MF16} {vr(ACC(s,tb),4)}, {vr(SEL(d,tb),4)}, {ar(XF(rho,kap),4)}, {vr(ACC(s,tb),4)}")
        return o
    def post(gi):
        i, d = groups[gi]
        kap = i + 8*d
        o = []
        for rho in range(2):
            s = (gi & 1)*2 + rho
            h = H(rho, kap)
            for tb in range(2):
                o.append(f"v_cvt_pk_bf16_f32 v{h+2*tb}, v{ACC(s,tb)}, v{ACC(s,tb)+1}")
                o.append(f"v_cvt_pk_bf16_f32 v{h+2*tb+1}, v{ACC(s,tb)+2}, v{ACC(s,tb)+3}")
        h0 = H(0, kap); h = H(1, kap)
        if GRAM:
            for rho in range(2):
                hh_ = vr(H(rho, kap), 4); gacc = vr(112+4*rho, 4)
                o.append(f"{MF16} {gacc}, {hh_}, {hh_}, {'0' if gi == 0 else gacc} ")
        for k in range(4): o.append(f"v_permlane16_swap_b32 v{h0+k}, v{h+k}")
        if DOTS_IN_C and not GRAM:
            for k in range(4):
                o.append(f"v_dot2c_f32_bf16 v{20+(k&1)}, v{h0+k}, v{h0+k}")
                o.append(f"v_dot2c_f32_bf16 v{22+(k&1)}, v{h+k}, v{h+k}")
        o.append(f"""s_cmp_eq_u32 s60, {kap}
        s_cbranch_scc0 K2_nh{kap}
        @cond_begin
        global_store_dwordx4 v10, {vr(h0,4)}, s[6:7] {SC}
        global_store_dwordx4 v10, {vr(h,4)}, s[6:7] offset:256 {SC}
        @cond_end
        K2_nh{kap}:""")
        return o
    def fix(rho):
        F = ACC(rho, 1) + 3; M = ACC(2+rho, 1) + 3
        return L(f"""
        v_add_f32 v27, v{F}, v{M}
        v_mul_f32 v27, 0.5, v27
        v_sub_f32 v28, v{17+2*rho}, v{16+2*rho}
        v_cndmask_b32 v{F}, v{F}, v27, s[34:35]
        v_cndmask_b32 v{M}, v{M}, v28, s[34:35]
        """)
    wd_items = []; wd_early = []
    if FUSE:
        a(f"""
        s_lshr_b32 s22, s16, 1
        s_lshl_b32 s22, s22, 2
        s_add_u32 s61, s22, s14          ; nu
        s_mul_i32 s22, s61, {56*1024}
        s_add_u32 s22, s22, {WS_WD}
        v_add_u32 v24, s22, v5
        v_add_u32 v1, {40*1024}, v24
        """)
        for k in range(40, 56):
            x = f"global_load_dwordx4 {ar(WD3(k),4)}, v1, s[6:7] offset:{(k&3)*1024}"
            if (k & 3) == 3: x += "\nv_add_u32 v1, 0x1000, v1"
            wd_early.append([x])
        for k in range(40):
            x = f"global_load_dwordx4 {ar(WD3(k),4)}, v24, s[6:7] offset:{(k&3)*1024}"
            if k == 39: x += " ;@tag=wd"
            if (k & 3) == 3: x += "\nv_add_u32 v24, 0x1000, v24"
            wd_items.append([x])
    if not FINE: a.stamp(3)
    a(reads(0))
    extra = {0: pair_items[3] + pair_items[4][:4], 1: pair_items[4][4:] + pair_items[5], 2: pair_items[6], 3: pair_items[7],
             4: wd_early[:8], 5: wdma_items(0), 6: wd_early[8:], 7: wdma_items(1)}
    for i in range(8):
        seq = []
        for gi in (2*i, 2*i+1):
            if gi + 1 < 16:
                seq += reads(gi+1); seq.append("s_waitcnt lgkmcnt(8)")
            else: seq.append("s_waitcnt lgkmcnt(0)")
            m_ = mm(gi)
            fill = post(gi-1) if 1 <= gi <= 14 else []
            seq += m_[:2] + interleave(m_[2:], fill)
        if i == 0: seq.append(mt_store)
        a(weave(seq, extra[i]))
    a(fix(0)); a(fix(1))
    a(post(14)); a(post(15))
    if not FINE: a.stamp(4)
    for k in range(4): a(f"v_add_u32 v{32+k}, {k*REG}, v5")
    dsu = phaseD_setup(WD3)
    dots = []
    for kap in range(16):
        for k in range(4):
            dots.append(f"v_dot2c_f32_bf16 v{20+(k&1)}, v{H(0,kap)+k}, v{H(0,kap)+k}")
            dots.append(f"v_dot2c_f32_bf16 v{22+(k&1)}, v{H(1,kap)+k}, v{H(1,kap)+k}")
    if GRAM:
        stats = L(f"""
        v_and_b32 v27, 3, v3
        v_cmp_eq_u32 s[56:57], 1, v27
        v_cmp_eq_u32 s[58:59], 2, v27
        v_cmp_eq_u32 vcc, 3, v27
        v_cndmask_b32 v20, v112, v113, s[56:57]
        v_cndmask_b32 v22, v116, v117, s[56:57]
        v_cndmask_b32 v20, v20, v114, s[58:59]
        v_cndmask_b32 v22, v22, v118, s[58:59]
        v_cndmask_b32 v20, v20, v115, vcc
        v_cndmask_b32 v22, v22, v119, vcc
        v_lshrrev_b32 v27, 2, v3
        v_lshl_add_u32 v27, v27, 4, v3
        v_lshlrev_b32 v27, 2, v27
        ds_bpermute_b32 v21, v27, v20
        ds_bpermute_b32 v23, v27, v22
        s_mov_b32 s38, {hx(1.0/512)}
        v_mov_b32 v27, {hx(1e-5)}
        s_waitcnt lgkmcnt(0)
        v_cndmask_b32 v20, v21, v23, s[32:33]
        v_fma_f32 v20, v20, s38, v27
        v_rsq_f32 v20, v20
        v_mul_f32 v21, {hx(-math.log2(math.e))}, v20
        """)
        a(stats); stats = []
    else:
        stats = L(f"""
        v_add_f32 v20, v20, v21
        v_add_f32 v22, v22, v23
        v_add_f32 v20, v20, v22
        v_mov_b32 v21, v20
        v_permlane32_swap_b32 v20, v21
        v_add_f32 v20, v20, v21
        s_mov_b32 s38, {hx(1.0/512)}
        v_mov_b32 v27, {hx(1e-5)}
        v_fma_f32 v20, v20, s38, v27
        v_rsq_f32 v20, v20
        v_mul_f32 v21, {hx(-math.log2(math.e))}, v20
        """)
    MACC = lambda st: 72 + st*16
    def wread(p, phi):
        return f"ds_read_b128 {ar(WF(phi & 7),4)}, v{32 + (phi>>3)} offset:{QB[p]*8192 + (phi&7)*1024}"
    def epilogue(p):
        st = p & 1
        if p < 6: off = f"s_lshl_b32 s44, s16, 10\ns_add_u32 s44, s44, {WS_HH + (p>>1)*16*1024 + (p&1)*512}"
        else:     off = f"s_lshl_b32 s44, s16, 9\ns_add_u32 s44, s44, {WS_HH + 48*1024}"
        f = [off + "\ns_add_u32 s40, s6, s44\ns_addc_u32 s41, s7, 0"]
        m = MACC(st)
        for r in range(8): f.append(f"v_mul_f32 v{40+r}, v21, v{m+r}")
        for r in range(8):
            f.append(f"v_exp_f32 v{40+r}, v{40+r}")
            f.append(f"v_mul_f32 v{48+r}, v20, v{m+8+r}")
        for r in range(8): f.append(f"v_add_f32 v{40+r}, 1.0, v{40+r}")
        for r in range(8): f.append(f"v_rcp_f32 v{40+r}, v{40+r}")
        for r in range(8): f.append(f"v_mul_f32 v{40+r}, v{40+r}, v{48+r}")
        for r in range(4): f.append(f"v_cvt_pk_bf16_f32 v{56+r}, v{40+2*r}, v{41+2*r}")
        f.append(f"global_store_dwordx4 v11, v[56:59], s[40:41] {SC} ;@tag=hh{p}")
        return f
    PF = 6
    bar = {0: "w0", 1: "w1", 2: "w2,w3", 4: "w4,w5", 6: "w6"}
    for p in range(7):
        if p in bar:
            a(f"@waitv {bar[p]}")
            a("s_barrier")
            if p < 2 and not FINE: a.stamp(5+p)
            main = [wread(p, x) for x in range(PF)]
        else:
            main = []
        st = p & 1
        nxt_ok = (p+1 < 7) and (p+1 not in bar)
        for phi in range(32):
            kap, aa = phi >> 1, phi & 1
            if aa == 0:
                if phi + PF < 32:
                    main += [wread(p, phi+PF), wread(p, phi+PF+1), f"s_waitcnt lgkmcnt({PF})"]
                elif nxt_ok:
                    main += [wread(p+1, phi+PF-32), wread(p+1, phi+PF-31), f"s_waitcnt lgkmcnt({PF})"]
                else:
                    main.append(f"s_waitcnt lgkmcnt({30-phi})")
            c = "0" if phi == 0 else vr(MACC(st),16)
            main.append(f"{MF32} {vr(MACC(st),16)}, {ar(WF(phi&7),4)}, {vr(H(aa,kap),4)}, {c}")
        dm = []
        if p == 0: dm = wdma_items(2) + wdma_items(3)
        if p == 1: dm = wdma_items(4)
        if p == 2: dm = wdma_items(5)
        if p == 4: dm = wdma_items(6)
        dm = [[ "\n".join(x) ] for x in dm]
        if FUSE:
            mine = wd_items[p*WD_IN_MAIN:(p+1)*WD_IN_MAIN]
            dm = [[y] for y in weave([x[0] for x in dm], mine)] if dm else mine
        if DOTS_IN_C: dots = []
        if p == 0: body = dots[:96] + (stats if DOTS_IN_C else [])
        elif p == 1: body = dots[96:] + ([] if DOTS_IN_C else stats) + epilogue(0)
        else: body = epilogue(p-1)
        fl = weave(body, dm)
        if FUSE:
            def ins(lst, frac, items):
                k = int(len(lst)*frac)
                return lst[:k] + items + lst[k:]
            if p == 0: fl = weave(dsu, [[x] for x in fl]) if EARLY_SU else [dsu[0]] + fl
            if p == 3: fl = ins(fl, 0.5, ["@waitv hh1", arrive("A", 0)])
            if p == 5:
                fl = ins(fl, 0.5, ["@waitv hh3", arrive("B", 256)])
                fl = ins(fl, 0.3, [poll_issue("A", 0)])
            if p == 6:
                fl = poll_check("A", 0) + ins(weave(fl, [[x] for x in d_items(0) + d_items(1)]), 0.6, [poll_issue("B", 256)])
        a(interleave(main, fl))
    a.stamp(1 if FINE else 7)
    if not FUSE:
        a(epilogue(6))
    else:
        phaseD(a, epilogue(6), wd_items[7*WD_IN_MAIN:], WD3, [] if EARLY_SU else dsu[1:])
    if STAMPS: a("s_waitcnt vmcnt(0)")
    if DBG: a("s_waitcnt vmcnt(0)")
    if DBG:
        a("""
        s_memrealtime s[96:97]
        s_load_dwordx2 s[98:99], s[0:1], 80
        s_waitcnt lgkmcnt(0)
        s_and_b32 s100, s2, 0x3f
        s_cmp_lg_u32 s100, 0
        s_cbranch_scc1 DBG_k2_3
        @cond_begin
        s_lshr_b32 s100, s2, 6
        s_lshl_b32 s100, s100, 4
        s_add_u32 s100, s100, 12
        v_mov_b32 v250, s100
        v_mov_b32 v251, s96
        s_mov_b64 s[100:101], exec
        s_mov_b64 exec, 1
        global_store_dword v250, v251, s[98:99]
        s_mov_b64 exec, s[100:101]
        @cond_end
        DBG_k2_3:
        """)
    a.stamp(13); a.stamp(15)
    a.dump_stamps(WS_ST + (1 << 20))
    a("K2_done:")
    a("s_endpgm")
    return a.finalize()

K3_STG = 28672
K3_LDS = 5*K3_STG
def gen_k3():
    a = Asm(); a.stamps = STAMPS
    WD = lambda k3: k3*4
    HB = lambda s: 64 + s*4
    ACC = lambda k: 32 + k*4
    HC = lambda k, x: 96 + (k*2 + x)*4
    SEL = lambda x: 48 + x*4
    a(f"""
    s_cmp_ge_u32 s2, 256
    s_cbranch_scc1 K3_done
    s_load_dwordx2 s[4:5], s[0:1], 72
    s_load_dwordx2 s[6:7], s[0:1], 88
    v_lshrrev_b32 v1, 6, v0
    v_and_b32 v2, 63, v0
    v_readfirstlane_b32 s14, v1
    v_and_b32 v3, 15, v2
    v_lshrrev_b32 v4, 4, v2
    v_lshlrev_b32 v5, 4, v2
    s_and_b32 s15, s2, 7
    s_lshl_b32 s15, s15, 2
    s_bfe_u32 s16, s2, 0x20003
    s_add_u32 s15, s15, s16
    s_lshr_b32 s16, s2, 5
    s_lshl_b32 s17, s16, 2
    s_add_u32 s17, s17, s14          ; nu
    s_lshl_b32 s18, s15, 2           ; tt0
    s_add_u32 s19, s18, s14
    s_mul_i32 s20, s17, {56*1024}
    s_add_u32 s20, s20, {WS_WD}
    v_add_u32 v6, s20, v5
    s_mul_i32 s20, s19, 57344
    s_add_u32 s20, s20, {WS_HH}
    v_add_u32 v7, s20, v5
    s_mul_i32 s21, s14, 7168
    s_add_u32 s46, s15, s16
    s_and_b32 s46, s46, {7 if ROT3 else 0}            ; rot
    s_mul_i32 s20, s46, 7168
    v_add_u32 v6, s20, v6
    v_add_u32 v7, s20, v7
    s_waitcnt lgkmcnt(0)
    s_add_u32 s24, s6, 4096
    s_addc_u32 s25, s7, 0
    """)
    a.stamp(0); a.stamp(14)
    def items(sg):
        buf = (sg % 5)*K3_STG
        l = []
        for k in range(7):
            x = [f"s_add_u32 m0, s21, {buf + (k & 4)*1024}",
                 f"global_load_lds_dwordx4 v7, {'s[6:7]' if k < 4 else 's[24:25]'} offset:{(k&3)*1024}"]
            if k == 6:
                x.append(f"s_cmp_eq_u32 s46, {7-sg}\ns_cselect_b32 s47, -7, 1\ns_mul_i32 s47, s47, 7168\nv_add_u32 v7, s47, v7")
            l.append(x)
            tag = f" ;@tag=s{sg}" if k == 6 else ""
            x = [f"global_load_dwordx4 {ar(WD(sg*7+k),4)}, v6, {'s[6:7]' if k < 4 else 's[24:25]'} offset:{(k&3)*1024}{tag}"]
            if k == 6: x.append("v_add_u32 v6, s47, v6")
            l.append(x)
        return l
    for it in items(0): a(it)
    su = L(f"""
    v_lshlrev_b32 v8, 7, v3
    v_add_u32 v8, s18, v8
    v_lshlrev_b32 v9, 10, v8
    s_lshl_b32 s20, s17, 5
    v_add_u32 v9, s20, v9
    v_lshl_add_u32 v9, v4, 3, v9
    s_lshl_b32 s20, s18, 6
    s_add_u32 s20, s20, {WS_MT}
    v_lshl_add_u32 v11, v3, 2, s20
    """)
    su.append(f"""s_lshr_b32 s30, s17, 1
    s_lshl_b32 s31, s17, 4
    s_sub_u32 s32, 496, s31
    s_lshr_b32 s32, s32, 5
    s_add_u32 s32, s32, 8
    s_cmp_lt_u32 s17, 16
    s_cselect_b32 s30, s30, s32
    s_sub_u32 s33, s30, 1
    s_cmp_eq_u32 s17, 0
    s_cselect_b32 s33, 15, s33
    s_cmp_eq_u32 s17, 16
    s_cselect_b32 s33, 7, s33
    s_max_i32 s33, s33, 0
    s_and_b32 s34, s17, 1
    s_cmp_gt_u32 s17, 16
    s_cselect_b32 s34, 1, s34
    s_lshl_b32 s35, s18, 14
    s_add_u32 s35, s35, {WS_HC}
    s_lshl_b32 s36, s30, 10
    s_add_u32 s36, s36, s35
    v_add_u32 v14, s36, v5
    s_lshl_b32 s36, s33, 10
    s_add_u32 s36, s36, s35
    v_add_u32 v15, s36, v5""")
    su += L(f"""
    v_add_u32 v16, s31, v3
    v_mov_b32 v23, 0x3f80
    v_add_u32 v12, {2*K3_STG}, v5
    v_add_u32 v13, {4*K3_STG}, v5
    """)
    for x, sk in ((0, 30), (1, 33)):
        su.append(f"""s_and_b32 s36, s{sk}, 7
        s_lshl_b32 s36, s36, 5
        s_sub_u32 s37, -1, s36
        s_sub_u32 s38, 511, s36
        s_cmp_lt_u32 s{sk}, 8
        s_cselect_b32 s37, s37, s38
        s_cselect_b32 s38, 1, -1
        s_cmp_eq_u32 s{sk}, 15
        s_cselect_b32 s39, 0, -1
        s_cselect_b32 s40, 256, -1""")
        su += L(f"""
        v_mul_lo_u32 v17, v16, s38
        v_add_u32 v17, s37, v17
        v_cmp_eq_u32 vcc, s40, v16
        v_cndmask_b32 v17, v17, -1, vcc
        v_cmp_eq_u32 vcc, s39, v16
        v_cndmask_b32 v17, v17, 31, vcc
        """)
        if x == 1:
            su.append("""s_cmp_eq_u32 s34, 1
            s_cselect_b32 s36, -1, 0
            v_or_b32 v17, s36, v17""")
        su += L(f"""
        v_bfe_u32 v18, v17, 2, 2
        v_cmp_eq_u32 vcc, v18, v4
        v_cndmask_b32 v17, -1, v17, vcc
        v_lshrrev_b32 v18, 4, v17
        v_lshlrev_b32 v18, 1, v18
        v_bfe_u32 v19, v17, 1, 1
        v_add_u32 v18, v18, v19
        v_and_b32 v19, 1, v17
        v_lshlrev_b32 v19, 4, v19
        v_lshlrev_b32 v19, v19, v23
        """)
        for jj in range(4):
            su.append(f"v_cmp_eq_u32 vcc, {jj}, v18")
            su.append(f"v_cndmask_b32 v{SEL(x)+jj}, 0, v19, vcc")
    a(weave(su, items(1) + items(2)))
    hcl = []
    for k in range(4):
        hcl.append([f"global_load_dwordx4 {vr(HC(k,0),4)}, v14, s[6:7]", "v_add_u32 v14, 0x4000, v14"])
        hcl.append([f"global_load_dwordx4 {vr(HC(k,1),4)}, v15, s[6:7]", "v_add_u32 v15, 0x4000, v15"])
        hcl.append([f"global_load_dword v{24+k}, v11, s[6:7] offset:{64*k}"])
    a.stamp(1)
    def rd(slot, sg, k, tile):
        b = sg % 5
        base = (5, 5, 12, 12, 13)[b]
        off = (b & 1)*K3_STG if b < 4 else 0
        return f"ds_read_b128 {vr(HB(slot),4)}, v{base} offset:{off + tile*7168 + k*1024}"
    for sg in range(8):
        a(f"@waitv s{sg}")
        a("s_barrier")
        a.stamp(2+sg)
        seq = [(k, t) for k in range(7) for t in range(4)]
        main = [rd(x & 7, sg, *seq[x]) for x in range(6)]
        for x, (k, t) in enumerate(seq):
            if x + 6 < 28:
                main.append(rd((x+6) & 7, sg, *seq[x+6])); main.append("s_waitcnt lgkmcnt(6)")
            else:
                main.append(f"s_waitcnt lgkmcnt({27-x})")
            c = "0" if (sg == 0 and k == 0) else vr(ACC(t),4)
            main.append(f"{MF16} {vr(ACC(t),4)}, {ar(WD(sg*7+k),4)}, {vr(HB(x&7),4)}, {c}")
        fill = []
        if sg + 3 < 8: fill += items(sg+3)
        if sg == 4: fill += hcl
        a(interleave(main, fill))
        if sg == 7:
            a("s_waitcnt vmcnt(0)")
            for x in range(2):
                for t in range(4):
                    a(f"{MF16} {vr(ACC(t),4)}, {vr(SEL(x),4)}, {vr(HC(t,x),4)}, {vr(ACC(t),4)}")
    a.stamp(10)
    for k in range(4):
        for r in range(4):
            a(f"v_add_f32 v{ACC(k)+r}, v{24+k}, v{ACC(k)+r}")
        a(f"v_cvt_pk_bf16_f32 v{56+2*k}, v{ACC(k)}, v{ACC(k)+1}")
        a(f"v_cvt_pk_bf16_f32 v{57+2*k}, v{ACC(k)+2}, v{ACC(k)+3}")
        a(f"global_store_dwordx2 v9, v[{56+2*k}:{57+2*k}], s[4:5] offset:{1024*k}")
    if STAMPS: a("s_waitcnt vmcnt(0)")
    a.stamp(11); a.stamp(15)
    a.dump_stamps(WS_ST + (2 << 20))
    a("K3_done:")
    a("s_endpgm")
    return a.finalize()

def build_all():
    out = []
    hdr = open("sequential_preLN__spectral_fnet__glu_gated_glu__prompt.s.ref").read().split("\n")
    out += [l for l in hdr if l.startswith(";") and "@launch" not in l]
    out.append(f"; @launch kernel=k1_kernel grid=(256,1,1) block=(512,1,1) lds={K1_LDS}")
    out.append(f"; @launch kernel=k2_kernel grid=(256,1,1) block=(256,1,1) lds={K2_LDS}")
    if not FUSE: out.append(f"; @launch kernel=k3_kernel grid=(256,1,1) block=(256,1,1) lds={K3_LDS}")
    out += [
        "; ---------------------------------------------------------------------------------------------",
        "; Algorithm (generated by a Python emitter, hand-designed schedule):",
        ";  y = Re(DFT_seq(DFT_hid(LN(x)))) is evaluated as a two-level Cooley-Tukey factorisation of the constant",
        ";  DFT matrices (s = 16*s1 + s2, t = t1 + 128*t2), using the real-input symmetry y[t,512-e] = y[-t,e].",
        ";  k1: LN1 + hidden DFT (MFMA) + 128-point DFT over s1 -> V ; also re-lays out x and the three weight",
        ";      matrices into MFMA fragment order in the workspace and clears the hand-off flags.",
        ";  k2: 16-point stage over s2 + residual -> h, LN2, gate/up GEMM + sigmoid GLU, then (after a flag hand-off",
        ";      inside each group of 16 workgroups that share 128 tokens) the down GEMM + residual.",
        "; ---------------------------------------------------------------------------------------------",
    ]
    out.append('.amdgcn_target "amdgcn-amd-amdhsa--gfx950"')
    out.append(".text")
    out.append(header("k1_kernel") + gen_k1())
    out.append(header("k2_kernel") + gen_k2())
    if not FUSE: out.append(header("k3_kernel") + gen_k3())
    out.append('.section .rodata,"a"')
    for k in (kd("k1_kernel", 256, 256), kd("k2_kernel", 512, 256)) + (() if FUSE else (kd("k3_kernel", 128+224, 128),)):
        out.append(".p2align 6\n" + k)
    return "\n".join(out) + "\n"

if __name__ == "__main__":
    for x in sys.argv[2:]:
        if x == "stamps": STAMPS = True
        elif "=" in x:
            k_, v_ = x.split("="); globals()[k_] = int(v_)
    open(sys.argv[1] if len(sys.argv) > 1 else "v5.s", "w").write(build_all())
```
